```python
import torch

def _softmax(x, axis=-1):
    return torch.softmax(x, dim=axis)
def _gelu(x):
    return torch.nn.functional.gelu(x, approximate="tanh")
def _silu(x):
    return torch.nn.functional.silu(x)
def _sigmoid(x):
    return torch.sigmoid(x)
def _layernorm(x, axis=-1, eps=1e-5):
    m = x.mean(dim=axis, keepdim=True)
    v = x.var(dim=axis, keepdim=True, unbiased=False)
    return (x - m) / torch.sqrt(v + eps)
def _scatter_add(tgt, idx, src, axis=0):
    return tgt.clone().index_add_(axis, idx, src)
def _segment_sum(src, seg, n):
    out = torch.zeros((n,) + src.shape[1:], dtype=src.dtype)
    return out.index_add_(0, seg, src)
def _pad(x, pw):
    flat = tuple(v for pair in reversed(pw) for v in pair)
    return torch.nn.functional.pad(x, flat)

kernel_name = 'sequential_preLN__mha_block__glu_gated_swiglu__prompt'

def setup_inputs():

    _w = (lambda a: (lambda t: t.to(torch.bfloat16) if t.is_floating_point() else t)(torch.as_tensor(a)))
    def _A_setup():
        B, S, D, H = 1, 2048, 640, 32
        return {
            "x": _w((lambda *s: torch.randn(*s, dtype=torch.bfloat16) * 0.05)(B, S, D)),
            "wqkv": _w((lambda *s: torch.randn(*s, dtype=torch.bfloat16) * 0.05)(D, 3 * D)),
            "wo": _w((lambda *s: torch.randn(*s, dtype=torch.bfloat16) * 0.05)(D, D)),
        }
    _A_in = _A_setup()

    def _B_setup():
        B, S, D, F = 1, 2048, 640, 1536
        return {
            "x": _w((lambda *s: torch.randn(*s, dtype=torch.bfloat16) * 0.05)(B, S, D)),
            "w1": _w((lambda *s: torch.randn(*s, dtype=torch.bfloat16) * 0.4)(D, F) * (2.0 / D) ** 0.5),
            "w3": _w((lambda *s: torch.randn(*s, dtype=torch.bfloat16) * 0.4)(D, F) * (2.0 / D) ** 0.5),
            "w2": _w((lambda *s: torch.randn(*s, dtype=torch.bfloat16) * 0.4)(F, D) * (2.0 / F) ** 0.5),
        }
    _B_in = _B_setup()

    return {
        "A_x": _A_in["x"],
        "A_wqkv": _A_in["wqkv"],
        "A_wo": _A_in["wo"],
        "B_x": _B_in["x"],
        "B_w1": _B_in["w1"],
        "B_w3": _B_in["w3"],
        "B_w2": _B_in["w2"],
    }

def reference(A_x, A_wqkv, A_wo, B_x, B_w1, B_w3, B_w2):
    def _A_ref(x, wqkv, wo):
        B, S, D = x.shape
        H = 32
        Dh = D // H
        qkv = (lambda x, *d: x.permute(*d))((x @ wqkv).reshape(B, S, 3, H, Dh), 2, 0, 3, 1, 4)
        q, k, v = qkv[0], qkv[1], qkv[2]
        scores = torch.einsum("bhqd,bhkd->bhqk", q, k) * (Dh ** -0.5)
        p = _softmax(scores, axis=-1)
        o = torch.einsum("bhqk,bhkd->bhqd", p, v)
        return (lambda x, *d: x.permute(*d))(o, 0, 2, 1, 3).reshape(B, S, D) @ wo

    def _B_ref(x, w1, w3, w2):
        gate = torch.einsum("bsd,df->bsf", x, w1)
        up = torch.einsum("bsd,df->bsf", x, w3)
        h = _silu(gate) * up
        out = torch.einsum("bsf,fd->bsd", h, w2)
        return out

    x = A_x
    h = x + _A_ref(_layernorm(x, axis=-1), A_wqkv, A_wo)
    h2 = h + _B_ref(_layernorm(h, axis=-1), B_w1, B_w3, B_w2)
    return h2
```

```python
import re, sys

TRANS = re.compile(r"^v_(exp|log|rcp|rsq|sqrt|sin|cos)_")
REG = re.compile(r"^(-|\|)?([vas])(\d+)\|?$")
REGR = re.compile(r"^(-|\|)?([vas])\[(\d+):(\d+)\]\|?$")

def regs_of(tok):
    tok = tok.strip()
    if tok.startswith("neg(") or tok.startswith("abs("):
        tok = tok[4:-1]
    if tok.startswith("-|"):
        tok = tok[1:]
    m = REG.match(tok)
    if m: return [(m.group(2), int(m.group(3)))]
    m = REGR.match(tok)
    if m: return [(m.group(2), i) for i in range(int(m.group(3)), int(m.group(4)) + 1)]
    if tok == "vcc": return [("s", 106), ("s", 107)]
    if tok == "vcc_lo": return [("s", 106)]
    if tok == "vcc_hi": return [("s", 107)]
    if tok == "exec": return [("s", 126), ("s", 127)]
    if tok == "exec_lo": return [("s", 126)]
    if tok == "exec_hi": return [("s", 127)]
    if tok == "m0": return [("s", 124)]
    return []

def mfma_passes(op):
    if "_16b" in op: return 2
    if "_4b" in op: return 8
    if "_2b" in op: return 16
    if "32x32" in op: return 8
    if "16x16" in op: return 4
    raise ValueError(op)

class Ins:
    __slots__ = ("text", "op", "kind", "wr", "rd", "passes", "A", "B", "C", "D", "wide", "lds", "dpp", "sdwa", "target", "nop", "data", "label", "sread")
    def __init__(self, text):
        self.text = text
        t = text.split(";")[0].strip()
        self.label = None; self.op = None; self.kind = None
        self.wr = []; self.rd = []; self.target = None; self.nop = 0; self.data = []
        self.wide = False; self.lds = False; self.dpp = False; self.sdwa = False
        if not t or t.startswith("."):
            self.kind = "none"; return
        if t.endswith(":"):
            self.kind = "label"; self.label = t[:-1]; return
        parts = t.split(None, 1)
        op = parts[0]; self.op = op
        rest = parts[1] if len(parts) > 1 else ""
        ops = []; cur = ""; depth = 0
        for ch in rest:
            if ch in "[(": depth += 1
            if ch in "])": depth -= 1
            if ch == "," and depth == 0:
                ops.append(cur.strip()); cur = ""
            else: cur += ch
        if cur.strip(): ops.append(cur.strip())
        mods = []
        if ops:
            last = ops[-1].split()
            ops[-1] = last[0]; mods = last[1:]
        R = [regs_of(o) for o in ops]
        allr = lambda L: [r for x in L for r in x]
        if op.startswith("v_mfma"):
            self.kind = "mfma"; self.passes = mfma_passes(op)
            self.D, self.A, self.B, self.C = R[0], R[1], R[2], R[3]
            self.wr = R[0]; self.rd = R[1] + R[2] + R[3]
        elif op.startswith("v_"):
            self.kind = "valu"
            self.dpp = op.endswith("_dpp") or any(m.startswith(("row_", "quad_perm", "wave_")) for m in mods)
            self.sdwa = op.endswith("_sdwa") or any(m.startswith("op_sel:") for m in mods)
            if op == "v_nop": pass
            elif "permlane" in op and "swap" in op:
                self.wr = R[0] + R[1]; self.rd = R[0] + R[1]
            elif op.startswith("v_cmp"):
                self.wr = R[0]; self.rd = allr(R[1:])
                assert not op.startswith("v_cmpx")
            elif "_co_" in op:
                self.wr = R[0] + R[1]; self.rd = allr(R[2:])
            else:
                self.wr = R[0]; self.rd = allr(R[1:])
                if op.startswith(("v_fmac", "v_dot2c", "v_mac")) or self.sdwa or self.dpp or op.startswith("v_writelane"):
                    self.rd = self.rd + R[0]
                if op.startswith("v_cndmask") and len(ops) == 3: self.rd += regs_of("vcc")
        elif op.startswith("ds_"):
            self.kind = "ds"
            if op.startswith(("ds_read", "ds_bpermute", "ds_permute", "ds_swizzle")) or "_rtn" in op:
                self.wr = R[0]; self.rd = allr(R[1:])
            else:
                self.rd = allr(R)
        elif op.startswith(("buffer_", "global_")):
            self.kind = "vmem"
            self.lds = "lds" in mods or "_lds_" in op
            if op in ("buffer_wbl2", "buffer_inv"): pass
            elif "_load" in op:
                if self.lds: self.rd = allr(R) + regs_of("m0")
                else:
                    self.wr = R[0]; self.rd = allr(R[1:])
                    if "d16" in op: self.data = R[0]
            elif "_store" in op:
                self.rd = allr(R)
                self.data = R[0] if op.startswith("buffer") else R[1]
                self.wide = op.endswith(("x3", "x4"))
            elif "atomic" in op:
                self.rd = allr(R)
                if "sc0" in mods: self.wr = R[0]
            else: raise ValueError(op)
        elif op.startswith("s_"):
            self.kind = "salu"
            if op == "s_nop": self.nop = int(ops[0], 0)
            elif op.startswith(("s_cbranch", "s_branch")):
                self.kind = "branch"; self.target = ops[0]
            elif op == "s_endpgm": self.kind = "end"
            elif op == "s_waitcnt": self.kind = "wait"; self.data = t
            elif op.startswith(("s_load", "s_buffer_load", "s_memtime", "s_memrealtime")):
                self.kind = "smem"; self.wr = R[0]; self.rd = allr(R[1:])
            elif op.startswith(("s_cmp", "s_bitcmp", "s_barrier", "s_setprio", "s_sleep", "s_setreg")):
                self.rd = allr(R)
            else:
                self.wr = R[0]; self.rd = allr(R[1:])
                if "saveexec" in op: self.wr = self.wr + regs_of("exec")
        else:
            raise ValueError("unknown instruction: " + text)

MD_C = {2: 4, 4: 6, 8: 10, 16: 18}
MD_AB = {2: 5, 4: 8, 8: 12, 16: 20}
MC_W = {2: 1, 4: 3, 8: 7, 16: 15}

def need_states(hist, ins):
    need = 0
    rd = set(ins.rd); wr = set(ins.wr)
    for age, p in hist:
        n = 0
        pw = set(p.wr)
        if p.kind == "valu":
            vw = {r for r in pw if r[0] != "s"}; sw = pw - vw
            isdot = p.op.startswith("v_dot")
            if ins.kind == "mfma" and vw & rd: n = max(n, 3 if isdot else 2)
            if ins.kind == "valu":
                if TRANS.match(p.op) and not TRANS.match(ins.op) and vw & rd: n = max(n, 1)
                if ins.op.startswith(("v_readlane", "v_readfirstlane")) and vw & rd: n = max(n, 1)
                if ("permlane" in ins.op or ins.dpp) and vw & rd: n = max(n, 2)
                if sw & rd: n = max(n, 4 if ins.op.startswith(("v_readlane", "v_writelane")) else 2)
                if p.sdwa and vw & (rd | wr): n = max(n, 1)
                if isdot and vw & (rd | wr) and not (ins.op == p.op and ins.wr == p.wr): n = max(n, 3)
            if ins.kind in ("vmem", "ds"):
                if sw & rd: n = max(n, 5)
                if isdot and vw & rd: n = max(n, 3)
            if ins.kind in ("salu", "branch", "smem") and sw & rd: n = max(n, 1)
        elif p.kind == "mfma":
            D = set(p.D)
            if ins.kind == "mfma":
                if D & set(ins.C):
                    if ins.C == p.D and ins.passes == p.passes: n = max(n, 2 if p.passes == 2 else 0)
                    else: n = max(n, MD_C[p.passes])
                if D & (set(ins.A) | set(ins.B)): n = max(n, MD_AB[p.passes])
                if D & set(ins.D) and not (ins.D == p.D and ins.passes == p.passes): n = max(n, MD_AB[p.passes])
            elif ins.kind in ("valu", "vmem", "ds"):
                if D & (rd | wr): n = max(n, MD_AB[p.passes])
                if ins.kind == "valu" and set(p.C) & wr: n = max(n, MC_W[p.passes])
        elif p.kind == "salu":
            if ("s", 124) in pw and ins.kind == "vmem" and ins.lds: n = max(n, 1)
        elif p.kind == "vmem":
            if p.wide and set(p.data) & wr: n = max(n, 2)
        if n - age > need: need = n - age
    return need

def paths(ins, maxback=1):
    lab = {x.label: i for i, x in enumerate(ins) if x.kind == "label"}
    out = []
    stack = [(0, [], {})]
    while stack:
        pc, tr, taken = stack.pop()
        tr = list(tr)
        while True:
            assert pc < len(ins), "fell off the end"
            x = ins[pc]; tr.append(pc)
            if x.kind == "end": break
            if x.kind == "branch":
                t = lab[x.target]
                ms = re.search(r"@seq=([NT]+)", x.text)
                if ms:
                    n = taken.get(pc, 0); taken = dict(taken); taken[pc] = n + 1
                    if ms.group(1)[min(n, len(ms.group(1)) - 1)] == "T": pc = t
                    else: pc += 1
                    continue
                if x.op == "s_branch":
                    if t <= pc:
                        if taken.get(pc, 0) >= maxback: break
                        taken = dict(taken); taken[pc] = taken.get(pc, 0) + 1
                    pc = t; continue
                if t <= pc:
                    if taken.get(pc, 0) < maxback:
                        taken = dict(taken); taken[pc] = taken.get(pc, 0) + 1
                        pc = t; continue
                else:
                    stack.append((t, list(tr), taken))
            pc += 1
        out.append(tr)
        assert len(out) < 3000, "too many paths"
    return out

def pad_and_check(lines, name="", verbose=True):
    ins = [Ins(l) for l in lines]
    ps = paths(ins)
    pad = [0] * len(ins)
    changed = True
    while changed:
        changed = False
        for tr in ps:
            hist = []
            for pc in tr:
                x = ins[pc]
                if x.kind in ("none", "label"): continue
                if pad[pc]: hist = [(a + pad[pc], p) for a, p in hist]
                n = need_states(hist, x)
                if n > 0:
                    pad[pc] += n; changed = True
                    hist = [(a + n, p) for a, p in hist]
                st = x.nop + 1
                hist = [(a + st, p) for a, p in hist if a + st < 21]
                if x.kind in ("valu", "mfma", "salu", "vmem"): hist.insert(0, (0, x))
    errs = set()
    for tr in ps:
        vm = []; lg = []
        for pc in tr:
            x = ins[pc]
            if x.kind in ("none", "label"): continue
            if x.kind == "wait":
                m = re.search(r"vmcnt\((\d+)\)", x.data)
                if m:
                    n = int(m.group(1)); vm = vm[max(0, len(vm) - n):] if n else []
                m = re.search(r"lgkmcnt\((\d+)\)", x.data)
                if m:
                    n = int(m.group(1))
                    if n == 0: lg = []
                    elif not any(k == "smem" for k, _ in lg): lg = lg[len(lg) - n:] if n < len(lg) else lg
                continue
            use = set(x.rd) | set(x.wr)
            for q, same in ((vm, "vmem"), (lg, "ds")):
                for k, d in q:
                    u = use
                    if x.kind == same and k == same: u = set(x.rd)
                    if d & u: errs.add((pc, "outstanding %s dest used: %s" % (k, x.text.strip())))
            if x.kind == "vmem":
                vm.append(("vmem", set(x.wr)))
                if len(vm) > 63: errs.add((pc, "vmcnt overflow"))
            elif x.kind == "ds":
                lg.append(("ds", set(x.wr)))
                if len(lg) > 15: lg = lg
            elif x.kind == "smem": lg.append(("smem", set(x.wr)))
    for pc, e in sorted(errs): print(f"[{name}] WAITCNT ERROR line {pc}: {e}", file=sys.stderr)
    if errs: raise SystemExit(1)
    out = []
    npad = 0
    for i, x in enumerate(ins):
        n = pad[i]
        npad += n
        while n > 0:
            k = min(n, 16); out.append(f"    s_nop {k-1}"); n -= k
        out.append(x.text)
    mv = max([r[1] for x in ins for r in x.rd + x.wr if r[0] == "v"] + [0])
    ma = max([r[1] for x in ins for r in x.rd + x.wr if r[0] == "a"] + [-1])
    if verbose: print(f"[{name}] {sum(1 for x in ins if x.op)} instrs, {len(ps)} paths, {npad} pad states, max v{mv} a{ma}", file=sys.stderr)
    return out, mv + 1, ma + 1

class Kern:
    def __init__(self, name, grid, block, lds):
        self.name = name; self.grid = grid; self.block = block; self.lds = lds
        self.lines = []; self.nl = 0
    def __call__(self, text):
        for l in text.split("\n"):
            l = l.strip()
            if not l: continue
            self.lines.append(l if l.endswith(":") or l.startswith(".") else "    " + l)
    def lab(self, base):
        self.nl += 1
        return f"L_{self.name}_{base}_{self.nl}"
    def finish(self):
        body, nv, na = pad_and_check(self.lines, self.name)
        acc = (nv + 3) // 4 * 4
        nfv = acc + na if na else nv
        txt = f".text\n.globl {self.name}\n.p2align 8\n.type {self.name},@function\n{self.name}:\n" + "\n".join(body) + "\n"
        txt += f""".section .rodata,"a"
.p2align 6
.amdhsa_kernel {self.name}
  .amdhsa_next_free_vgpr {nfv}
  .amdhsa_next_free_sgpr 102
  .amdhsa_accum_offset {acc}
  .amdhsa_group_segment_fixed_size 0
  .amdhsa_kernarg_size 80
  .amdhsa_user_sgpr_count 2
  .amdhsa_user_sgpr_kernarg_segment_ptr 1
  .amdhsa_system_sgpr_workgroup_id_x 1
.end_amdhsa_kernel
"""
        return txt

def vr(a, n=1, k="v"):
    return f"{k}{a}" if n == 1 else f"{k}[{a}:{a+n-1}]"

class Alloc:
    def __init__(self, start=0): self.n = start
    def __call__(self, cnt=1, align=1):
        if cnt > 1 and align == 1: align = 2
        self.n = (self.n + align - 1) // align * align
        r = self.n; self.n += cnt
        return r

def write_file(path, kerns, order=None):
    order = order or kerns
    head = "; generated by gen/gen.py (hand-written generator)\n"
    for k in order:
        head += f"; @launch kernel={k.name} grid=({k.grid},1,1) block=({k.block},1,1) lds={k.lds}\n"
    head += '.amdgcn_target "amdgcn-amd-amdhsa--gfx950"\n'
    seen = set(); body = ""
    for k in kerns:
        if k.name in seen: continue
        seen.add(k.name); body += k.finish()
    open(path, "w").write(head + body)
```

```python
from asmlib import *
T, D, H, F = 2048, 640, 32, 1536
TS = 2624
HS = 64 * TS
KV_OFF = 0
Q_OFF = 0x600000
OF_OFF = 0xC00000
HF_OFF = 0x1000000
ST_OFF = 0x1300000
HH_OFF = 0x1400000
WOF_OFF = 0x1C00000
W2F_OFF = 0x1D00000
W13F_OFF = 0x2000000
WS_SIZE = 0x2800000
ARG = dict(x=0, wqkv=8, wo=16, w1=32, w3=40, w2=48, out=56, dbg=64, ws=72)
SIZE = dict(x=T*D*2, wqkv=D*3*D*2, wo=D*D*2, w1=D*F*2, w3=D*F*2, w2=F*D*2, out=T*D*2, dbg=256, ws=WS_SIZE)
LOG2E = 1.4426950408889634
import struct
def f32(x): return "0x%08x" % struct.unpack("<I", struct.pack("<f", x))[0]

def load_srds(k, spec):
    for name, s in spec:
        k(f"s_load_dwordx2 s[{s}:{s+1}], s[0:1], {ARG[name]}")
    for name, s in spec:
        k(f"s_mov_b32 s{s+2}, {SIZE[name]}")
        k(f"s_mov_b32 s{s+3}, 0x00020000")
```

```python
from common import *

def build_k1():
    k = Kern("qkv_kernel", 240, 512, 4 * 32768 + 2048)
    SX, SW, SWS = 12, 16, 20
    STAT = 4 * 32768
    L_end = k.lab("end"); L_help = k.lab("help")
    k(f"""
    s_cmp_ge_u32 s2, 240
    s_cbranch_scc1 {L_end}
    """)
    load_srds(k, [("x", SX), ("wqkv", SW), ("ws", SWS)])
    k(f"""
    s_and_b32 s27, s2, 7
    s_lshr_b32 s25, s2, 3        ; j = 0..29
    s_lshl_b32 s24, s27, 1
    s_cmp_ge_u32 s25, 15
    s_cselect_b32 s27, 15, 0
    s_cselect_b32 s28, 1, 0
    s_sub_u32 s25, s25, s27      ; ct
    s_add_u32 s24, s24, s28      ; rt
    v_lshrrev_b32 v1, 6, v0
    v_and_b32 v2, 63, v0         ; lane
    v_readfirstlane_b32 s26, v1  ; wave
    v_and_b32 v3, 31, v2         ; m
    v_lshrrev_b32 v4, 5, v2      ; hf
    v_bfe_u32 v5, v3, 1, 3
    v_xor_b32 v5, v5, v4
    v_lshlrev_b32 v5, 4, v5
    v_lshl_add_u32 v5, v3, 7, v5
    s_cmp_ge_u32 s26, 4
    s_cbranch_scc1 {L_help}
    """)
    a = Alloc(8)
    XA = a(4); WA = a(2); SEL = a(4); CS = a(4); OFF = a(8)
    FB = [a(16, 4), a(16, 4)]
    ACC = a(64, 4)
    T0 = FB[0]
    k(f"""
    s_lshr_b32 s27, s26, 1       ; wr
    s_and_b32 s28, s26, 1        ; wc
    s_lshl_b32 s29, s27, 13
    v_add_u32 v{XA}, s29, v5
    v_xor_b32 v{XA+1}, 32, v{XA}
    v_xor_b32 v{XA+2}, 64, v{XA}
    v_xor_b32 v{XA+3}, 0x60, v{XA}
    v_bfe_u32 v6, v2, 2, 2       ; r
    v_lshl_add_u32 v7, v4, 3, v6 ; row
    v_lshlrev_b32 v7, 8, v7
    v_bfe_u32 v1, v2, 4, 1
    v_lshl_add_u32 v7, v1, 5, v7
    v_and_b32 v1, 3, v2
    v_lshl_add_u32 v7, v1, 3, v7
    v_add_u32 v7, 16384, v7
    s_lshl_b32 s30, s28, 1
    s_add_u32 s30, s30, s27      ; n0
    s_xor_b32 s31, s30, 1        ; n1
    v_xor_b32 v1, s30, v6
    v_lshl_add_u32 v{WA}, v1, 6, v7
    v_xor_b32 v{WA+1}, 64, v{WA}
    ; selector
    v_lshrrev_b32 v1, 2, v2
    v_lshrrev_b32 v6, 4, v2
    v_xor_b32 v1, v1, v6
    v_and_b32 v1, 1, v1
    v_add_u32 v1, -1, v1
    v_and_b32 v{SEL}, 0x3f803f80, v1
    v_mov_b32 v{SEL+1}, v{SEL}
    v_mov_b32 v{SEL+2}, v{SEL}
    v_mov_b32 v{SEL+3}, v{SEL}
    """)
    for i in range(4): k(f"v_mov_b32 v{CS+i}, 0")
    for i in range(64): k(f"v_mov_b32 v{ACC+i}, 0")
    L_V = k.lab("v")
    k(f"""
    s_lshl_b32 s32, s24, 2
    s_lshl_b32 s33, s27, 1
    s_add_u32 s32, s32, s33
    s_mul_i32 s32, s32, {TS}
    s_cmp_ge_u32 s25, 10
    s_cbranch_scc1 {L_V}
    """)
    def reads(buf, off, s):
        b = FB[buf]
        k(f"ds_read_b64_tr_b16 v[{b+8}:{b+9}], v{WA} offset:{off + s*4096}")
        k(f"ds_read_b64_tr_b16 v[{b+10}:{b+11}], v{WA} offset:{off + s*4096 + 1024}")
        k(f"ds_read_b128 v[{b}:{b+3}], v{XA+s} offset:{off}")
        k(f"ds_read_b128 v[{b+4}:{b+7}], v{XA+s} offset:{off + 4096}")
        k(f"ds_read_b64_tr_b16 v[{b+12}:{b+13}], v{WA+1} offset:{off + s*4096}")
        k(f"ds_read_b64_tr_b16 v[{b+14}:{b+15}], v{WA+1} offset:{off + s*4096 + 1024}")
    def acc(ts, ns): return ACC + (ts * 2 + ns) * 16
    def mfmas(buf, isv):
        b = FB[buf]
        k(f"v_mfma_f32_16x16x32_bf16 v[{CS}:{CS+3}], v[{SEL}:{SEL+3}], v[{b+8}:{b+11}], v[{CS}:{CS+3}]")
        for ns in range(2):
            for ts in range(2):
                x = vr(b + 4 * ts, 4); w = vr(b + 8 + 4 * ns, 4); c = vr(acc(ts, ns), 16)
                k(f"v_mfma_f32_32x32x16_bf16 {c}, {x if isv else w}, {w if isv else x}, {c}")
    def mainloop(isv):
        L = k.lab("loop")
        k("s_mov_b32 s34, 5")
        k("s_waitcnt lgkmcnt(0)")
        k("s_barrier")
        reads(0, 0, 0)
        k(f"{L}:")
        for half in range(2):
            for s in range(4):
                if s < 3:
                    reads((s + 1) & 1, half * 32768, s + 1)
                    k("s_waitcnt lgkmcnt(6)")
                else:
                    k("s_waitcnt lgkmcnt(0)")
                    k("s_barrier")
                    if half == 1:
                        for r in list(range(XA, XA + 4)) + [WA, WA + 1]: k(f"v_xor_b32 v{r}, 0x10000, v{r}")
                    reads(0, (1 - half) * 32768, 0)
                mfmas(s & 1, isv)
        k(f"""
        s_sub_u32 s34, s34, 1
        s_cmp_lg_u32 s34, 0
        s_cbranch_scc1 {L}
        """)
        k(f"""
        s_waitcnt lgkmcnt(0)
        v_cvt_pk_bf16_f32 v{T0}, v{CS}, v{CS}
        v_and_b32 v{T0+2}, 0xffff0000, v{T0}
        v_sub_f32 v{T0+2}, v{CS}, v{T0+2}
        v_cvt_pk_bf16_f32 v{T0+1}, v{T0+2}, v{T0+2}
        s_lshl_b32 s35, s30, 8
        v_lshl_add_u32 v1, v3, 3, s35
        ds_write_b64 v1, v[{T0}:{T0+1}] offset:0
        """.replace("ds_write_b64 v1,", f"v_add_u32 v1, {STAT+1024}, v1\nds_write_b64 v1,"))
        k(f"""
        v_xor_b32 v6, 256, v1
        s_lshl_b32 s35, s27, 8
        v_lshl_add_u32 v7, v3, 2, s35
        v_add_u32 v7, {STAT}, v7
        v_add_u32 v4, -1, v4          ; hf==0 ? ~0 : 0
        s_waitcnt lgkmcnt(0)
        s_barrier
        ds_read_b64 v[{T0+2}:{T0+3}], v6
        ds_read_b32 v{T0+4}, v7
        ds_read_b32 v{T0+6}, v7 offset:128
        """)
    def ext_mfma(isv, nwait):
        k(f"""
        v_and_b32 v{T0}, v{T0}, v4
        v_and_b32 v{T0+1}, v{T0+1}, v4
        s_waitcnt lgkmcnt({nwait})
        v_and_b32 v{T0+2}, v{T0+2}, v4
        v_and_b32 v{T0+3}, v{T0+3}, v4
        v_mov_b32 v{T0+5}, v{T0+4}
        v_mov_b32 v{T0+7}, v{T0+6}
        """)
        for ns in range(2):
            for ts in range(2):
                x = vr(T0 + 4 + 2 * ts, 2); w = vr(T0 + 2 * ns, 2); c = vr(acc(ts, ns), 16)
                k(f"v_mfma_f32_32x32x8_bf16 {c}, {x if isv else w}, {w if isv else x}, {c}")
    k(f"""
    s_cmp_ge_u32 s25, 5
    s_cselect_b32 s33, 5, 0
    s_cselect_b32 s36, 0, {Q_OFF}
    s_cselect_b32 s37, 1.0, {f32(LOG2E * 20 ** -0.5)}
    s_sub_u32 s33, s25, s33
    s_add_u32 s32, s32, s36
    s_lshl_b32 s33, s33, 5       ; (ct%5)*32
    """)
    for ns in range(2):
        k(f"s_lshl_b32 s35, s{30+ns}, 3")
        k(f"s_add_u32 s35, s35, s33")
        for rq in range(4):
            o = OFF + ns * 4 + rq
            k(f"""
            v_add3_u32 v1, v4, s35, {2*rq}     ; g4
            v_mul_u32_u24 v6, 205, v1
            v_lshrrev_b32 v6, 10, v6           ; head
            v_mul_u32_u24 v7, 5, v6
            v_sub_u32 v1, v1, v7               ; p
            v_mul_u32_u24 v6, {HS}, v6
            v_and_b32 v7, 1, v1
            v_lshl_add_u32 v6, v7, 9, v6
            v_bfe_u32 v7, v1, 1, 1
            v_lshl_add_u32 v6, v7, 3, v6
            v_lshrrev_b32 v1, 2, v1            ; p==4
            v_lshl_add_u32 v6, v1, 10, v6
            v_sub_u32 v1, 4, v1
            v_lshlrev_b32 v1, v1, v3
            v_add_u32 v{o}, v6, v1
            """)
    mainloop(False)
    RS = T0 + 8
    k(f"ds_read_b32 v{RS}, v7 offset:512")
    k(f"ds_read_b32 v{RS+2}, v7 offset:640")
    ext_mfma(False, 2)
    k("s_waitcnt lgkmcnt(0)")
    k(f"v_mul_f32 v{RS}, s37, v{RS}")
    k(f"v_mul_f32 v{RS+2}, s37, v{RS+2}")
    for ns in range(2):
        for ts in range(2):
            c = acc(ts, ns)
            for i in range(0, 16, 2):
                k(f"v_pk_mul_f32 v[{c+i}:{c+i+1}], v[{c+i}:{c+i+1}], v[{RS+2*ts}:{RS+2*ts+1}] op_sel_hi:[1,0]")
            for i in range(8):
                k(f"v_cvt_pk_bf16_f32 v{c+i}, v{c+2*i}, v{c+2*i+1}")
            for rq in range(4):
                k(f"buffer_store_dwordx2 v[{c+2*rq}:{c+2*rq+1}], v{OFF+ns*4+rq}, s[{SWS}:{SWS+3}], s32 offen offset:{ts*TS}")
    k("s_endpgm")
    k(f"{L_V}:")
    k(f"""
    s_sub_u32 s33, s25, 10
    s_lshl_b32 s33, s33, 7
    s_add_u32 s32, s32, 1280
    """)
    for ns in range(2):
        k(f"""
        s_lshl_b32 s35, s{30+ns}, 5
        s_add_u32 s35, s35, s33
        v_add_u32 v1, s35, v3
        v_mul_u32_u24 v6, 3277, v1
        v_lshrrev_b32 v6, 16, v6           ; head
        v_mul_u32_u24 v7, 20, v6
        v_sub_u32 v1, v1, v7               ; d
        v_cmp_eq_u32 s[{38+2*ns}:{39+2*ns}], 19, v1
        v_mul_u32_u24 v6, {HS}, v6
        v_lshl_add_u32 v6, v1, 4, v6
        v_mul_u32_u24 v1, 336, v4
        v_add_u32 v{OFF+ns}, v6, v1
        """)
    for i in range(4): k(f"v_mov_b32 v{OFF+4+i}, 0x3f803f80")
    k(f"v_lshlrev_b32 v{OFF+2}, 4, v4   ; hf*16")
    mainloop(True)
    RV = FB[1]
    RV2 = a(16, 4)
    k(f"s_lshl_b32 s35, s27, 8")
    k(f"s_add_u32 s35, s35, {STAT+512}")
    k(f"v_add_u32 v7, s35, v{OFF+2}")
    for ts in range(2):
        for rq in range(4):
            r = (RV, RV2)[ts] + 4 * rq
            k(f"ds_read_b128 v[{r}:{r+3}], v7 offset:{ts*128 + rq*32}")
    ext_mfma(True, 8)
    k("s_waitcnt lgkmcnt(0)")
    k(f"s_add_u32 s33, s32, {TS}")
    for ns in range(2):
        for ts in range(2):
            c = acc(ts, ns); r = (RV, RV2)[ts]
            for i in range(0, 16, 2):
                k(f"v_pk_mul_f32 v[{c+i}:{c+i+1}], v[{c+i}:{c+i+1}], v[{r+i}:{r+i+1}]")
            for i in range(8):
                k(f"v_cvt_pk_bf16_f32 v{c+i}, v{c+2*i}, v{c+2*i+1}")
            for s in range(2):
                k(f"buffer_store_dwordx4 v[{c+4*s}:{c+4*s+3}], v{OFF+ns}, s[{SWS}:{SWS+3}], s{32+ts} offen offset:{s*672}")
    for ns in range(2):
        k(f"s_mov_b64 exec, s[{38+2*ns}:{39+2*ns}]")
        for ts in range(2):
            for s in range(2):
                k(f"buffer_store_dwordx4 v[{OFF+4}:{OFF+7}], v{OFF+ns}, s[{SWS}:{SWS+3}], s{32+ts} offen offset:{s*672+16}")
    k("s_endpgm")
    k(f"{L_help}:")
    a = Alloc(8)
    XA = a(4); GA = a(4); GB = a(4); S = a(4); FR = a(16, 4); TT = a(4)
    k(f"""
    s_sub_u32 s26, s26, 4        ; w
    s_lshl_b32 s29, s26, 12
    v_add_u32 v{XA}, s29, v5
    v_xor_b32 v{XA+1}, 32, v{XA}
    v_xor_b32 v{XA+2}, 64, v{XA}
    v_xor_b32 v{XA+3}, 0x60, v{XA}
    v_lshrrev_b32 v1, 3, v2
    v_mul_u32_u24 v1, 1280, v1
    v_and_b32 v6, 7, v2
    v_lshrrev_b32 v7, 4, v2
    v_xor_b32 v6, v6, v7
    v_lshl_add_u32 v{GA}, v6, 4, v1
    v_xor_b32 v6, 4, v6
    v_lshl_add_u32 v{GA+1}, v6, 4, v1
    v_add_u32 v{GA+1}, {10240-1024}, v{GA+1}
    v_add_u32 v{GA+2}, {2*(10240-1024)}, v{GA}
    v_add_u32 v{GA+3}, {2*(10240-1024)}, v{GA+1}
    s_lshl_b32 s30, s24, 2
    s_add_u32 s30, s30, s26
    s_mul_i32 s30, s30, {32*1280}     ; A soffset
    v_mul_u32_u24 v1, 3840, v7
    v_lshlrev_b32 v7, 2, v7
    v_and_b32 v6, 15, v2
    v_xor_b32 v6, v6, v7
    v_lshl_add_u32 v{GB}, v6, 4, v1
    v_add_u32 v{GB+1}, {15360-1024}, v{GB}
    v_add_u32 v{GB+2}, {2*(15360-1024)}, v{GB}
    v_add_u32 v{GB+3}, {3*(15360-1024)}, v{GB}
    s_mul_i32 s31, s26, {16*3840}
    s_lshl_b32 s27, s25, 8
    s_add_u32 s31, s31, s27           ; B soffset
    s_mov_b32 s32, s29
    s_waitcnt lgkmcnt(0)
    """)
    def dma():
        k("s_mov_b32 m0, s32")
        for i in range(4): k(f"buffer_load_dwordx4 v{GA+i}, s[{SX}:{SX+3}], s30 offen offset:{i*1024} lds")
        k("s_add_u32 s33, s32, 16384")
        k("s_mov_b32 m0, s33")
        k("s_add_u32 s30, s30, 128")
        for i in range(4): k(f"buffer_load_dwordx4 v{GB+i}, s[{SW}:{SW+3}], s31 offen offset:{i*1024} lds")
        k(f"s_add_u32 s31, s31, {64*3840}")
        k("s_add_u32 s32, s32, 32768")
        k("s_and_b32 s32, s32, 0x1ffff")
    Lp = k.lab("pre")
    k("s_mov_b32 s34, 3")
    k(f"{Lp}:")
    dma()
    k(f"""
    s_sub_u32 s34, s34, 1
    s_cmp_lg_u32 s34, 0
    s_cbranch_scc1 {Lp}
    """)
    for i in range(4): k(f"v_mov_b32 v{S+i}, 0")
    Lh = k.lab("hloop"); Ln = k.lab("nodma"); Lw1 = k.lab("w1"); Lw2 = k.lab("w2")
    k("s_waitcnt vmcnt(16)")
    k(f"{Lh}:")
    k("s_barrier")
    for s in range(4): k(f"ds_read_b128 v[{FR+4*s}:{FR+4*s+3}], v{XA+s}")
    k(f"s_cmp_ge_u32 s34, 7")
    k(f"s_cbranch_scc1 {Ln}")
    dma()
    k(f"{Ln}:")
    for s in range(4):
        k(f"v_add_u32 v{XA+s}, 0x8000, v{XA+s}")
        k(f"v_and_b32 v{XA+s}, 0x1ffff, v{XA+s}")
    for i in range(16):
        if i % 4 == 0: k(f"s_waitcnt lgkmcnt({3 - i//4})")
        t = TT + 2 * (i & 1)
        k(f"""
        v_lshlrev_b32 v{t}, 16, v{FR+i}
        v_and_b32 v{t+1}, 0xffff0000, v{FR+i}
        v_add_f32 v{S}, v{S}, v{t}
        v_add_f32 v{S+1}, v{S+1}, v{t+1}
        v_fmac_f32 v{S+2}, v{t}, v{t}
        v_fmac_f32 v{S+3}, v{t+1}, v{t+1}
        """)
    k(f"""
    s_add_u32 s34, s34, 1
    s_waitcnt vmcnt(16)
    s_cmp_lt_u32 s34, 8
    s_cbranch_scc1 {Lh}
    s_waitcnt vmcnt(8)
    s_cmp_lt_u32 s34, 9
    s_cbranch_scc1 {Lh}
    s_waitcnt vmcnt(0)
    s_cmp_lt_u32 s34, 10
    s_cbranch_scc1 {Lh}
    s_barrier
    v_add_f32 v{S}, v{S}, v{S+1}
    v_add_f32 v{S+2}, v{S+2}, v{S+3}
    v_mov_b32 v{S+1}, v{S}
    v_mov_b32 v{S+3}, v{S+2}
    v_permlane32_swap_b32 v{S}, v{S+1}
    v_permlane32_swap_b32 v{S+2}, v{S+3}
    v_add_f32 v{S}, v{S}, v{S+1}
    v_add_f32 v{S+2}, v{S+2}, v{S+3}
    v_mul_f32 v{S}, {f32(-1.0/640)}, v{S}          ; -mean
    v_mul_f32 v{S+2}, {f32(1.0/640)}, v{S+2}
    v_fma_f32 v{S+2}, -v{S}, v{S}, v{S+2}          ; var
    v_max_f32 v{S+2}, 0, v{S+2}
    v_add_f32 v{S+2}, {f32(1e-5)}, v{S+2}
    v_rsq_f32 v{S+2}, v{S+2}
    v_cvt_pk_bf16_f32 v{S+1}, v{S}, v{S}
    v_and_b32 v{S+3}, 0xffff0000, v{S+1}
    v_sub_f32 v{S+3}, v{S}, v{S+3}
    v_cvt_pk_bf16_f32 v{S}, v{S}, v{S+3}
    s_lshl_b32 s27, s26, 7
    s_add_u32 s27, s27, {STAT}
    v_lshl_add_u32 v1, v3, 2, s27
    ds_write_b32 v1, v{S}
    ds_write_b32 v1, v{S+2} offset:512
    s_waitcnt lgkmcnt(0)
    s_barrier
    {L_end}:
    s_endpgm
    """)
    return k
```

```python
import sys
from common import *
from k1 import build_k1
kerns = [build_k1()]
for mod, fn in (("k2", "build_k2"), ("k345", "build_k345")):
    try:
        m = __import__(mod)
    except ImportError:
        continue
    r = getattr(m, fn)()
    kerns += r if isinstance(r, list) else [r]
out = sys.argv[1] if len(sys.argv) > 1 else "sequential_preLN__mha_block__glu_gated_swiglu__prompt.s"
write_file(out, kerns)
```

```python
from common import *

def build_k2():
    SCR = 147456
    k = Kern("attn_kernel", 256, 512, SCR + 1024)
    SWS, SRC = 12, 16
    L_end = k.lab("end")
    a = Alloc(8)
    QL = a(4); QH = a(2); AK = a(); AH = a(); AV = a(); GL = a()
    NM = a(16, 4); S = [a(16, 4), a(16, 4)]; P = a(8); O = a(16, 4)
    KL = [a(4), a(4)]; KH = [a(2), a(2)]; V = [a(8), a(8)]
    RP = a(40, 4); RO = a(4); SEL = a(4); CS = a(4)
    k(f"""
    s_cmp_ge_u32 s2, 256
    s_cbranch_scc1 {L_end}
    """)
    load_srds(k, [("ws", SWS)])
    k(f"""
    s_load_dwordx2 s[20:21], s[0:1], {ARG['wo']}
    s_load_dwordx4 s[24:27], s[0:1], {ARG['w1']}
    s_load_dwordx2 s[22:23], s[0:1], {ARG['w2']}
    s_and_b32 s28, s2, 7
    s_lshl_b32 s28, s28, 2
    s_lshr_b32 s29, s2, 6
    s_add_u32 s28, s28, s29        ; head
    s_bfe_u32 s29, s2, 0x30003     ; qb
    v_lshrrev_b32 v1, 6, v0
    v_and_b32 v2, 63, v0           ; lane
    v_readfirstlane_b32 s30, v1    ; wave
    v_and_b32 v3, 31, v2           ; m
    v_lshrrev_b32 v4, 5, v2        ; hf
    v_lshlrev_b32 v{GL}, 4, v2
    v_lshlrev_b32 v{AH}, 3, v3
    v_add_u32 v{AH}, 1024, v{AH}
    s_mul_i32 s31, s28, {HS}
    s_lshl_b32 s32, s29, 3
    s_add_u32 s32, s32, s30        ; tt
    s_mul_i32 s33, s32, {TS}
    s_add_u32 s33, s33, s31
    s_add_u32 s33, s33, {Q_OFF}
    s_mul_i32 s34, s30, 3072
    s_add_u32 s35, s31, s34
    s_mov_b32 m0, s34
    s_waitcnt lgkmcnt(0)
    buffer_load_dwordx4 v[{QL}:{QL+3}], v{GL}, s[{SWS}:{SWS+3}], s33 offen
    buffer_load_dwordx2 v[{QH}:{QH+1}], v{AH}, s[{SWS}:{SWS+3}], s33 offen
    """)
    def dma3():
        for i in range(3): k(f"buffer_load_dwordx4 v{GL}, s[{SWS}:{SWS+3}], s35 offen offset:{i*1024} lds")
    for g in range(6):
        if g:
            k("s_add_u32 s34, s34, 24576"); k("s_mov_b32 m0, s34"); k("s_add_u32 s35, s35, 24576")
        dma3()
    k(f"""
    v_mov_b32 v{AK}, v{GL}
    v_mul_u32_u24 v{AV}, 336, v4
    v_lshl_add_u32 v{AV}, v3, 4, v{AV}
    v_add_u32 v{AV}, 1280, v{AV}
    v_add_u32 v5, -1, v4
    """)
    for i in range(16): k(f"v_mov_b32 v{O+i}, 0")
    def rdK(b, off):
        k(f"ds_read_b128 v[{KL[b]}:{KL[b]+3}], v{AK} offset:{off}")
        k(f"ds_read_b64 v[{KH[b]}:{KH[b]+1}], v{AH} offset:{off}")
    def rdV(b, off):
        k(f"ds_read_b128 v[{V[b]}:{V[b]+3}], v{AV} offset:{off}")
        k(f"ds_read_b128 v[{V[b]+4}:{V[b]+7}], v{AV} offset:{off+672}")
    def qk_a(b, c): k(f"v_mfma_f32_32x32x16_bf16 {vr(S[b],16)}, {vr(KL[b],4)}, {vr(QL,4)}, {c}")
    def qk_b(b): k(f"v_mfma_f32_32x32x8_bf16 {vr(S[b],16)}, {vr(KH[b],2)}, {vr(QH,2)}, {vr(S[b],16)}")
    def pv(b, h): k(f"v_mfma_f32_32x32x16_bf16 {vr(O,16)}, {vr(V[b]+4*h,4)}, {vr(P+4*h,4)}, {vr(O,16)}")
    def exps(b, lo, hi):
        for i in range(lo, hi): k(f"v_exp_f32 v{S[b]+i}, v{S[b]+i}")
    def cvts(b, lo, hi):
        for i in range(lo, hi): k(f"v_cvt_pk_bf16_f32 v{P+i}, v{S[b]+2*i}, v{S[b]+2*i+1}")
    def maxred(b, dst, init):
        s = S[b]
        if init: k(f"v_max3_f32 v{dst}, v{s}, v{s+1}, v{s+2}"); k(f"v_max_f32 v{dst}, v{dst}, v{s+3}"); st = 4
        else: st = 0
        for i in range(st, 16, 2): k(f"v_max3_f32 v{dst}, v{dst}, v{s+i}, v{s+i+1}")
    def setnm(src):
        k(f"v_mov_b32 v1, v{src}")
        k(f"v_permlane32_swap_b32 v{src}, v1")
        k(f"v_max_f32 v1, v1, v{src}")
        for i in range(16): k(f"v_sub_f32 v{NM+i}, 0, v1")
    k(f"""
    s_waitcnt vmcnt(15)
    s_barrier
    """)
    rdK(0, 0); rdK(1, TS); rdV(0, 0)
    k(f"v_and_b32 v{QH}, v{QH}, v5")
    k(f"v_and_b32 v{QH+1}, v{QH+1}, v5")
    k("s_waitcnt lgkmcnt(4)")
    qk_a(0, 0); qk_b(0)
    maxred(0, 6, True)
    setnm(6)
    for i in range(16): k(f"v_add_f32 v{S[0]+i}, v{S[0]+i}, v{NM}")
    L_loop = k.lab("loop"); L_blk = k.lab("blk"); L_ret = k.lab("ret"); L_epi = k.lab("epi"); L_slow = k.lab("slow")
    k("s_mov_b32 s36, 0            ; chunk")
    k("s_mov_b32 s38, 0")
    k(f"{L_loop}:")
    for j in range(8):
        b = j & 1
        if j == 6:
            k(f"""
            s_cmp_eq_u32 s36, 6
            s_mov_b32 s37, {8*TS}
            s_cmov_b32 s37, {-48*TS}
            s_bitcmp1_b32 0x15, s36
            s_cbranch_scc1 {L_blk}
            {L_ret}:
            v_add_u32 v{AK}, s37, v{AK}
            v_add_u32 v{AH}, s37, v{AH}
            """)
        if j == 7: k(f"v_add_u32 v{AV}, s37, v{AV}")
        rdK(b, ((j + 2) & 7) * TS)
        rdV(1 - b, ((j + 1) & 7) * TS)
        k("s_waitcnt lgkmcnt(4)")
        qk_a(1 - b, vr(NM, 16))
        exps(b, 0, 4)
        qk_b(1 - b)
        exps(b, 4, 8)
        cvts(b, 0, 4)
        exps(b, 8, 10)
        pv(b, 0)
        exps(b, 10, 16)
        cvts(b, 4, 8)
        if j == 7:
            k("s_add_u32 s36, s36, 1"); k("s_cmp_lt_u32 s36, 8")
        pv(b, 1)
    k(f"s_cbranch_scc1 {L_loop}")
    k(f"{L_epi}:")
    k(f"""
    s_waitcnt lgkmcnt(0)
    s_mul_i32 s33, s32, {2*80*256}
    s_add_u32 s33, s33, {OF_OFF}
    s_lshl_b32 s34, s28, 9
    s_add_u32 s34, s34, s33            ; chunk 2h
    s_lshr_b32 s35, s28, 1
    s_lshl_b32 s35, s35, 8
    s_add_u32 s35, s35, s33
    s_and_b32 s39, s28, 1
    s_lshl_b32 s39, s39, 3
    s_add_u32 s35, s35, s39
    s_add_u32 s35, s35, {64*256}
    v_lshrrev_b32 v1, 4, v3
    v_mul_u32_u24 v1, {80*256}, v1
    v_and_b32 v6, 15, v3
    v_lshl_add_u32 v1, v6, 4, v1
    v_lshl_add_u32 v1, v4, 8, v1
    v_mov_b32 v6, v{O+8}
    v_mov_b32 v7, v{O+8}
    v_mul_f32 v{P}, 0, v{O}
    v_mul_f32 v{P+1}, 0, v{O+8}
    v_permlane32_swap_b32 v6, v7       ; v7 = l
    """)
    for i in range(1, 8): k(f"v_fma_f32 v{P}, v{O+i}, 0, v{P}")
    for i in range(9, 12): k(f"v_fma_f32 v{P+1}, v{O+i}, 0, v{P+1}")
    k(f"""
    v_rcp_f32 v6, v7
    v_cmp_nlt_f32 s[40:41], v7, {2.0**60:.1f}
    v_cmp_u_f32 s[42:43], v{P}, v{P}
    v_cmp_u_f32 s[44:45], v{P+1}, v{P+1}
    """.replace(f"v_cmp_nlt_f32 s[40:41], v7, {2.0**60:.1f}", f"v_mov_b32 v{P+2}, {f32(2.0**60)}\nv_cmp_nlt_f32 s[40:41], v7, v{P+2}"))
    for i in range(0, 12, 2): k(f"v_pk_mul_f32 v[{O+i}:{O+i+1}], v[{O+i}:{O+i+1}], v[6:7] op_sel_hi:[1,0]")
    k(f"""
    s_or_b64 s[40:41], s[40:41], s[42:43]
    s_or_b32 s40, s40, s44
    s_or_b32 s40, s40, s41
    s_andn2_b32 s40, s40, s38
    s_cbranch_scc1 {L_slow}
    """)
    for i in range(6): k(f"v_cvt_pk_bf16_f32 v{P+i}, v{O+2*i}, v{O+2*i+1}")
    k(f"""
    buffer_store_dwordx4 v[{P}:{P+3}], v1, s[{SWS}:{SWS+3}], s34 offen
    s_mov_b64 exec, 0xffffffff
    buffer_store_dwordx2 v[{P+4}:{P+5}], v1, s[{SWS}:{SWS+3}], s35 offen
    {L_end}:
    s_endpgm
    """)
    L_b2 = k.lab("b2"); L_b4 = k.lab("b4"); L_j2 = k.lab("j2"); L_st = k.lab("st"); L_bar = k.lab("bar"); L_wo = k.lab("wo"); L_go = k.lab("go")
    k(f"""
    {L_blk}:
    s_waitcnt vmcnt(0)
    s_cmp_eq_u32 s36, 2
    s_cbranch_scc1 {L_b2}
    s_barrier
    s_cmp_lg_u32 s36, 0
    s_cbranch_scc1 {L_ret}
    s_cmp_ge_u32 s2, 164
    s_cbranch_scc1 {L_ret}
    s_mov_b32 s{SRC+3}, 0x00020000
    s_cmp_ge_u32 s2, 96
    s_cbranch_scc1 {L_j2}
    ; ---- W1/W3 strip: ct = J/6, j = J%6
    s_mul_i32 s40, s2, 171
    s_lshr_b32 s40, s40, 10            ; ct
    s_mul_i32 s41, s40, 6
    s_sub_u32 s41, s2, s41             ; j
    s_bitcmp1_b32 s41, 0
    s_cselect_b32 s{SRC}, s26, s24
    s_cselect_b32 s{SRC+1}, s27, s25
    s_mov_b32 s{SRC+2}, {SIZE['w1']}
    s_lshr_b32 s42, s41, 1
    s_lshl_b32 s42, s42, 6
    s_mul_i32 s43, s40, 192
    s_add_u32 s42, s42, s43
    s_mul_i32 s43, s30, {80*3072}
    s_add_u32 s42, s42, s43
    v_mul_u32_u24 v{RO}, {8*3072}, v4
    v_lshl_add_u32 v{RO}, v3, 1, v{RO}
    ; dest
    s_mul_i32 s44, s40, 41
    s_mul_i32 s44, s44, 6
    s_add_u32 s44, s44, s41
    s_lshl_b32 s44, s44, 10
    s_add_u32 s44, s44, {W13F_OFF}
    s_mul_i32 s45, s30, {5*6144}
    s_add_u32 s45, s45, s44
    s_add_u32 s45, s45, 6144
    s_mov_b32 s46, 6144
    """)
    for f in range(5):
        for i in range(0, 8, 2):
            k(f"buffer_load_ushort v{RP+8*f+i}, v{RO}, s[{SRC}:{SRC+3}], s42 offen")
            k(f"buffer_load_ushort v{RP+8*f+i+1}, v{RO}, s[{SRC}:{SRC+3}], s42 offen offset:3072")
            k(f"s_add_u32 s42, s42, {6144 if i < 6 else 6144 + 8*3072}")
    k(f"""
    s_branch {L_ret}
    {L_j2}:
    s_sub_u32 s40, s2, 96
    s_lshl_b32 s40, s40, 3
    s_add_u32 s40, s40, s30            ; u
    v_lshrrev_b32 v1, 4, v2            ; g
    s_mov_b32 s46, 1024
    s_cmp_lt_u32 s2, 116
    s_cbranch_scc1 {L_wo}
    s_sub_u32 s40, s40, 160
    s_mul_i32 s41, s40, 1366
    s_lshr_b32 s41, s41, 16            ; ct
    s_mul_i32 s42, s41, 48
    s_sub_u32 s42, s40, s42            ; ks
    s_mov_b32 s{SRC}, s22
    s_mov_b32 s{SRC+1}, s23
    s_mov_b32 s{SRC+2}, {SIZE['w2']}
    s_mul_i32 s45, s40, 5120
    s_add_u32 s45, s45, {W2F_OFF}
    s_lshl_b32 s42, s42, 5
    s_mov_b32 s43, 16
    s_mov_b32 s44, 4
    s_mov_b32 s47, 8
    s_branch {L_go}
    {L_wo}:
    s_mul_i32 s41, s40, 3277
    s_lshr_b32 s41, s41, 16            ; ct
    s_mul_i32 s42, s41, 20
    s_sub_u32 s42, s40, s42            ; ks
    s_mov_b32 s{SRC}, s20
    s_mov_b32 s{SRC+1}, s21
    s_mov_b32 s{SRC+2}, {SIZE['wo']}
    s_mul_i32 s45, s40, 5120
    s_add_u32 s45, s45, {WOF_OFF}
    s_mul_i32 s48, s42, 40
    s_mul_i32 s49, s42, 160
    s_sub_u32 s49, s49, {16*160-16}
    s_cmp_ge_u32 s42, 16
    s_cselect_b32 s42, s49, s48
    s_cselect_b32 s43, 80, 20
    s_cselect_b32 s44, 40, 4
    s_cselect_b32 s47, 20, 8
    {L_go}:
    v_lshrrev_b32 v6, 1, v1
    v_mul_u32_u24 v6, s43, v6
    v_and_b32 v1, 1, v1
    v_mul_u32_u24 v1, s44, v1
    v_add3_u32 v1, v1, v6, s42         ; rowA
    v_mul_u32_u24 v1, 1280, v1
    v_and_b32 v6, 15, v2               ; i
    v_lshl_add_u32 v{RO+2}, v6, 1, v1
    v_and_b32 v6, 12, v6
    v_lshl_add_u32 v{RO}, v6, 1, v{RO+2}
    s_mul_i32 s47, s47, 1280
    s_mul_i32 s42, s41, 160
    v_add_u32 v{RO+1}, s47, v{RO}
    v_add_u32 v{RO+3}, s47, v{RO+2}
    """)
    for f in range(5):
        co = (32 * (f // 2) + 4 * (f & 1)) * 2
        for i in range(8):
            k(f"buffer_load_ushort v{RP+8*f+i}, v{RO + (2 if f == 4 else 0) + (i >> 2)}, s[{SRC}:{SRC+3}], s42 offen offset:{co + (i & 3)*1280}")
    k(f"""
    s_branch {L_ret}
    {L_b2}:
    s_cmp_ge_u32 s2, 164
    s_cbranch_scc1 {L_bar}
    """)
    for f in range(5):
        for i in range(4): k(f"v_lshl_or_b32 v{RP+4*f+i}, v{RP+8*f+2*i+1}, 16, v{RP+8*f+2*i}")
        k(f"buffer_store_dwordx4 v[{RP+4*f}:{RP+4*f+3}], v{GL}, s[{SWS}:{SWS+3}], s45 offen")
        k(f"s_add_u32 s45, s45, s46")
    k(f"""
    s_cmp_ge_u32 s2, 96
    s_cbranch_scc1 {L_bar}
    v_lshrrev_b32 v1, 2, v2
    v_lshrrev_b32 v6, 4, v2
    v_xor_b32 v1, v1, v6
    v_and_b32 v1, 1, v1
    v_add_u32 v1, -1, v1
    v_and_b32 v{SEL}, 0x3f803f80, v1
    v_mov_b32 v{SEL+1}, v{SEL}
    v_mov_b32 v{SEL+2}, v{SEL}
    v_mov_b32 v{SEL+3}, v{SEL}
    s_lshl_b32 s40, s30, 7
    s_add_u32 s40, s40, {SCR}
    v_lshl_add_u32 v1, v3, 2, s40
    """)
    for f in range(5):
        k(f"v_mfma_f32_16x16x32_bf16 {vr(CS,4)}, {vr(SEL,4)}, {vr(RP+4*f,4)}, {vr(CS,4) if f else 0}")
    k(f"""
    ds_write_b32 v1, v{CS}
    s_waitcnt lgkmcnt(0)
    {L_bar}:
    s_barrier
    s_mul_i32 s34, s30, 3072
    s_mov_b32 m0, s34
    s_add_u32 s35, s31, s34
    s_add_u32 s35, s35, {56*TS}
    """)
    dma3()
    k(f"""
    s_cmp_ge_u32 s2, 96
    s_cbranch_scc1 {L_ret}
    s_cmp_lg_u32 s30, 0
    s_cbranch_scc1 {L_ret}
    """)
    for w in range(8): k(f"ds_read_b32 v{RP+20+w}, v1 offset:{w*128}")
    k("s_waitcnt lgkmcnt(0)")
    for w in range(1, 8): k(f"v_add_f32 v{RP+20}, v{RP+20}, v{RP+20+w}")
    k(f"""
    v_cvt_pk_bf16_f32 v{CS}, v{RP+20}, v{RP+20}
    v_and_b32 v{CS+2}, 0xffff0000, v{CS}
    v_sub_f32 v{CS+2}, v{RP+20}, v{CS+2}
    v_cvt_pk_bf16_f32 v{CS+1}, v{CS+2}, v{CS+2}
    v_and_b32 v{CS}, v{CS}, v5
    v_and_b32 v{CS+1}, v{CS+1}, v5
    v_mov_b32 v{CS+2}, 0
    v_mov_b32 v{CS+3}, 0
    buffer_store_dwordx4 {vr(CS,4)}, v{GL}, s[{SWS}:{SWS+3}], s44 offen
    s_branch {L_ret}
    """)
    L1 = k.lab("s1"); L2 = k.lab("s2")
    k(f"""
    {L_slow}:
    s_mov_b32 s38, -1
    v_lshlrev_b32 v{AH}, 3, v3
    v_mul_u32_u24 v{AV}, 336, v4
    v_lshl_add_u32 v{AV}, v3, 4, v{AV}
    v_mov_b32 v6, 0xff800000
    s_mov_b32 s35, s31
    s_mov_b32 s36, 0
    {L1}:
    buffer_load_dwordx4 {vr(KL[0],4)}, v{GL}, s[{SWS}:{SWS+3}], s35 offen
    buffer_load_dwordx2 {vr(KH[0],2)}, v{AH}, s[{SWS}:{SWS+3}], s35 offen offset:1024
    s_waitcnt vmcnt(0)
    """)
    qk_a(0, 0); qk_b(0)
    maxred(0, 6, False)
    k(f"""
    s_add_u32 s35, s35, {TS}
    s_add_u32 s36, s36, 1
    s_cmp_lt_u32 s36, 64
    s_cbranch_scc1 {L1}
    """)
    setnm(6)
    for i in range(16): k(f"v_mov_b32 v{O+i}, 0")
    k(f"""
    s_mov_b32 s35, s31
    s_mov_b32 s36, 0
    {L2}:
    buffer_load_dwordx4 {vr(KL[0],4)}, v{GL}, s[{SWS}:{SWS+3}], s35 offen
    buffer_load_dwordx2 {vr(KH[0],2)}, v{AH}, s[{SWS}:{SWS+3}], s35 offen offset:1024
    buffer_load_dwordx4 {vr(V[0],4)}, v{AV}, s[{SWS}:{SWS+3}], s35 offen offset:1280
    buffer_load_dwordx4 {vr(V[0]+4,4)}, v{AV}, s[{SWS}:{SWS+3}], s35 offen offset:{1280+672}
    s_waitcnt vmcnt(0)
    """)
    qk_a(0, vr(NM, 16)); qk_b(0)
    exps(0, 0, 16); cvts(0, 0, 8); pv(0, 0); pv(0, 1)
    k(f"""
    s_add_u32 s35, s35, {TS}
    s_add_u32 s36, s36, 1
    s_cmp_lt_u32 s36, 64
    s_cbranch_scc1 {L2}
    s_branch {L_epi}
    """)
    return k
```

```python
from common import *

def gemm16(name, nks, woff, aoff, first):
    nch = nks // 4
    ring = 5 if nch == 5 else 6
    k = Kern(name, 256, 256, ring * 20480)
    SWS, SRM = 12, 16
    L_end = k.lab("end")
    a = Alloc(8)
    GL = a(); GL2 = a(); LA = a(); RM = a(); RM2 = a(); FM = a(); FM2 = a()
    RES = a(10, 2); ACC = a(20, 4); A = a(80, 4); B = a(16 * ring, 4)
    k(f"""
    s_cmp_ge_u32 s2, 256
    s_cbranch_scc1 {L_end}
    """)
    load_srds(k, [("ws", SWS), ("x" if first else "out", SRM)])
    k(f"""
    v_lshrrev_b32 v1, 6, v0
    v_and_b32 v2, 63, v0
    v_readfirstlane_b32 s22, v1        ; wave
    s_bfe_u32 s20, s2, 0x20001         ; x>>1
    s_lshl_b32 s20, s20, 3
    s_bfe_u32 s21, s2, 0x30003
    s_add_u32 s20, s20, s21            ; rt
    s_and_b32 s21, s2, 1
    s_lshl_b32 s21, s21, 2
    s_lshr_b32 s23, s2, 6
    s_add_u32 s21, s21, s23            ; ct
    v_lshlrev_b32 v{GL}, 4, v2
    v_add_u32 v{GL2}, 4096, v{GL}
    s_lshl_b32 s23, s20, 2
    s_add_u32 s23, s23, s22            ; tile16
    s_mul_i32 s24, s21, {nks}
    s_add_u32 s24, s24, s22
    s_mul_i32 s24, s24, 5120
    s_add_u32 s24, s24, {woff}         ; W ptr
    s_mul_i32 s25, s23, {nks*1024}
    s_add_u32 s25, s25, {aoff}
    s_mul_i32 s26, s22, 5120
    v_and_b32 v3, 15, v2               ; n
    v_lshrrev_b32 v4, 4, v2            ; g
    v_mul_u32_u24 v{RM2}, 1280, v3
    v_lshl_add_u32 v{RM}, v4, 4, v{RM2}
    v_lshl_add_u32 v{RM2}, v4, 3, v{RM2}
    v_lshlrev_b32 v{FM2}, 4, v3
    v_lshl_add_u32 v{FM}, v4, 9, v{FM2}
    v_lshrrev_b32 v1, 1, v4
    v_lshl_add_u32 v{FM2}, v1, 9, v{FM2}
    v_and_b32 v1, 1, v4
    v_lshl_add_u32 v{FM2}, v1, 3, v{FM2}
    v_add_u32 v{FM2}, 4096, v{FM2}
    s_mul_i32 s27, s23, {16*1280}
    s_mul_i32 s28, s21, 160
    s_add_u32 s27, s27, s28
    s_lshr_b32 s28, s23, 1
    s_mul_i32 s28, s28, 40960
    s_and_b32 s29, s23, 1
    s_lshl_b32 s29, s29, 8
    s_add_u32 s28, s28, s29
    s_mul_i32 s29, s21, 5120
    s_add_u32 s28, s28, s29
    s_add_u32 s28, s28, {HF_OFF}
    s_waitcnt lgkmcnt(0)
    """)
    def rw(op, rm):
        if rm:
            k(f"buffer_{op}_dwordx4 v[{RES}:{RES+3}], v{RM}, s[{SRM}:{SRM+3}], s27 offen")
            k(f"buffer_{op}_dwordx4 v[{RES+4}:{RES+7}], v{RM}, s[{SRM}:{SRM+3}], s27 offen offset:64")
            k(f"buffer_{op}_dwordx2 v[{RES+8}:{RES+9}], v{RM2}, s[{SRM}:{SRM+3}], s27 offen offset:128")
        else:
            k(f"buffer_{op}_dwordx4 v[{RES}:{RES+3}], v{FM}, s[{SWS}:{SWS+3}], s28 offen")
            k(f"buffer_{op}_dwordx4 v[{RES+4}:{RES+7}], v{FM}, s[{SWS}:{SWS+3}], s28 offen offset:2048")
            k(f"buffer_{op}_dwordx2 v[{RES+8}:{RES+9}], v{FM2}, s[{SWS}:{SWS+3}], s28 offen")
    def issue(slot):
        k(f"s_add_u32 m0, s26, {slot*20480}")
        for i in range(4):
            k(f"buffer_load_dwordx4 v[{B+16*slot+4*i}:{B+16*slot+4*i+3}], v{GL}, s[{SWS}:{SWS+3}], s25 offen offset:{i*1024}")
            k(f"buffer_load_dwordx4 v{GL}, s[{SWS}:{SWS+3}], s24 offen offset:{i*1024} lds")
        k(f"s_add_u32 m0, s26, {slot*20480+4096}")
        k(f"s_add_u32 s25, s25, 4096")
        k(f"buffer_load_dwordx4 v{GL2}, s[{SWS}:{SWS+3}], s24 offen lds")
        k(f"s_add_u32 s24, s24, 20480")
    issue(0)
    rw("load", first)
    for c in range(1, 5): issue(c)
    k(f"v_add_u32 v{LA}, 61440, v{GL}")
    for i in range(20): k(f"v_mov_b32 v{ACC+i}, 0")
    def rd(slot, f):
        base, off = (GL, slot * 20480) if slot < 3 else (LA, (slot - 3) * 20480)
        k(f"ds_read_b128 v[{A+4*f}:{A+4*f+3}], v{base} offset:{off + f*1024}")
    def mm(slot, ks):
        for j in range(5):
            k(f"v_mfma_f32_16x16x32_bf16 {vr(ACC+4*j,4)}, {vr(A+20*ks+4*j,4)}, {vr(B+16*slot+4*ks,4)}, {vr(ACC+4*j,4)}")
    def step(slot, mid):
        k("s_barrier")
        for f in range(15): rd(slot, f)
        mid()
        k("s_waitcnt lgkmcnt(10)")
        mm(slot, 0)
        for f in range(15, 20): rd(slot, f)
        k("s_waitcnt lgkmcnt(10)")
        mm(slot, 1)
        k("s_waitcnt lgkmcnt(5)")
        mm(slot, 2)
        k("s_waitcnt lgkmcnt(0)")
        mm(slot, 3)
    if nch == 5:
        for c in range(5):
            k(f"s_waitcnt vmcnt({39 if c == 0 else 9*(4-c)})")
            step(c, lambda: None)
    else:
        L = k.lab("loop")
        k("s_mov_b32 s30, 0")
        k(f"{L}:")
        for c in range(6):
            k("s_cmp_lg_u32 s30, 0")
            k("s_waitcnt vmcnt(36)")
            if c >= 2:
                Lw = k.lab("w")
                k(f"s_cbranch_scc0 {Lw} ; @seq=TN")
                k(f"s_waitcnt vmcnt({9*(5-c)})")
                k(f"{Lw}:")
            def mid():
                if c == 0: issue(5); return
                Ls = k.lab("s")
                k(f"s_cbranch_scc1 {Ls} ; @seq=NT")
                issue(c - 1)
                k(f"{Ls}:")
            step(c, mid)
        k(f"""
        s_cmp_eq_u32 s30, 0
        s_mov_b32 s30, 1
        s_cbranch_scc1 {L}
        """)
    T = A
    for p in range(5):
        for i in range(2):
            r = RES + 2 * p + i
            k(f"v_lshlrev_b32 v{T+4*p+2*i}, 16, v{r}")
            k(f"v_and_b32 v{T+4*p+2*i+1}, 0xffff0000, v{r}")
    for i in range(0, 20, 2):
        k(f"v_pk_add_f32 v[{ACC+i}:{ACC+i+1}], v[{ACC+i}:{ACC+i+1}], v[{T+i}:{T+i+1}]")
    for i in range(10):
        k(f"v_cvt_pk_bf16_f32 v{RES+i}, v{ACC+2*i}, v{ACC+2*i+1}")
    rw("store", not first)
    if first:
        k(f"""
        v_mov_b32 v5, 0x3f803f80
        v_mov_b32 v6, 0
        v_mov_b32 v7, 0
        """)
        for i in range(10):
            k(f"v_dot2_f32_bf16 v6, v{RES+i}, v5, v6")
            k(f"v_dot2_f32_bf16 v7, v{RES+i}, v{RES+i}, v7")
        k(f"""
        s_lshl_b32 s29, s21, 14
        s_lshl_b32 s23, s23, 7
        s_add_u32 s29, s29, s23
        s_add_u32 s29, s29, {ST_OFF}
        v_lshrrev_b32 v1, 5, v2
        v_lshlrev_b32 v1, 2, v1
        v_lshl_add_u32 v1, v3, 3, v1
        v_permlane32_swap_b32 v6, v7
        v_add_f32 v6, v6, v7
        v_mov_b32 v7, v6
        v_permlane16_swap_b32 v6, v7
        v_add_f32 v6, v6, v7
        buffer_store_dword v6, v1, s[{SWS}:{SWS+3}], s29 offen
        """)
    k(f"{L_end}:")
    k("s_endpgm")
    return k

def build_k4():
    k = Kern("ffn1_kernel", 256, 512, 163840)
    SWS = 12
    L_end = k.lab("end"); L_ld = k.lab("ld")
    a = Alloc(8)
    GL = a(); LA = a(); LB = a()
    ST = a(8, 2); CSF = a(12, 2); A = a(24, 4); B = [a(4, 4), a(4, 4)]; ACC = a(96, 4)
    k(f"""
    s_cmp_ge_u32 s2, 256
    s_cbranch_scc1 {L_end}
    """)
    load_srds(k, [("ws", SWS)])
    k(f"""
    v_lshrrev_b32 v1, 6, v0
    v_and_b32 v2, 63, v0
    v_readfirstlane_b32 s22, v1        ; wave
    s_and_b32 s20, s2, 1
    s_lshl_b32 s20, s20, 3
    s_bfe_u32 s21, s2, 0x30003
    s_add_u32 s20, s20, s21
    s_bfe_u32 s21, s2, 0x20001
    s_lshl_b32 s21, s21, 2
    s_lshr_b32 s23, s2, 6
    s_add_u32 s21, s21, s23            ; ct
    v_lshlrev_b32 v{GL}, 4, v2
    s_and_b32 s23, s22, 3
    s_lshl_b32 s20, s20, 2
    s_add_u32 s20, s20, s23            ; tile32
    s_mul_i32 s24, s21, {41*6144}
    s_add_u32 s24, s24, {W13F_OFF}
    s_cmp_ge_u32 s22, 4
    s_cbranch_scc1 {L_ld}
    v_and_b32 v3, 31, v2               ; m
    v_lshrrev_b32 v4, 5, v2            ; hf
    v_lshlrev_b32 v1, 16, v4
    v_lshl_add_u32 v1, v3, 3, v1
    s_lshl_b32 s25, s20, 8
    s_add_u32 s25, s25, {ST_OFF}
    s_add_u32 s26, s25, 16384
    s_add_u32 s27, s25, 32768
    s_add_u32 s28, s25, 49152
    s_add_u32 s29, s24, 3072
    s_waitcnt lgkmcnt(0)
    """)
    for i in range(4): k(f"buffer_load_dwordx2 v[{ST+2*i}:{ST+2*i+1}], v1, s[{SWS}:{SWS+3}], s{25+i} offen")
    for j in range(6): k(f"buffer_load_dwordx2 v[{CSF+2*j}:{CSF+2*j+1}], v{GL}, s[{SWS}:{SWS+3}], s{24 if j < 3 else 29} offen offset:{(j%3)*1024}")
    k(f"""
    v_mov_b32 v{LA}, v{GL}
    s_lshl_b32 s25, s23, 11
    s_add_u32 s25, s25, 12288
    v_add_u32 v{LB}, s25, v{GL}
    v_lshrrev_b32 v1, 4, v3
    v_mul_u32_u24 v1, {192*256}, v1
    v_and_b32 v5, 15, v3
    v_lshl_add_u32 v1, v5, 4, v1
    v_lshl_add_u32 v3, v4, 8, v1
    s_mul_i32 s26, s20, {2*192*256}
    s_mul_i32 s27, s21, {12*256}
    s_add_u32 s26, s26, s27
    s_add_u32 s26, s26, {HH_OFF}
    s_waitcnt vmcnt(6)
    v_pk_add_f32 v[{ST}:{ST+1}], v[{ST}:{ST+1}], v[{ST+2}:{ST+3}]
    v_pk_add_f32 v[{ST+4}:{ST+5}], v[{ST+4}:{ST+5}], v[{ST+6}:{ST+7}]
    v_pk_add_f32 v[{ST}:{ST+1}], v[{ST}:{ST+1}], v[{ST+4}:{ST+5}]
    v_mov_b32 v{ST+2}, v{ST}
    v_mov_b32 v{ST+3}, v{ST+1}
    v_permlane32_swap_b32 v{ST}, v{ST+2}
    v_permlane32_swap_b32 v{ST+1}, v{ST+3}
    v_pk_add_f32 v[{ST}:{ST+1}], v[{ST}:{ST+1}], v[{ST+2}:{ST+3}]
    v_mul_f32 v{ST}, {f32(-1.0/640)}, v{ST}          ; -mean
    v_mul_f32 v{ST+1}, {f32(1.0/640)}, v{ST+1}
    v_fma_f32 v{ST+1}, -v{ST}, v{ST}, v{ST+1}
    v_max_f32 v{ST+1}, 0, v{ST+1}
    v_add_f32 v{ST+1}, {f32(1e-5)}, v{ST+1}
    v_rsq_f32 v{ST+4}, v{ST+1}
    v_cvt_pk_bf16_f32 v{ST+2}, v{ST}, v{ST}
    v_and_b32 v{ST+3}, 0xffff0000, v{ST+2}
    v_sub_f32 v{ST+3}, v{ST}, v{ST+3}
    v_cvt_pk_bf16_f32 v{ST+2}, v{ST}, v{ST+3}
    v_mov_b32 v{ST+3}, v{ST+2}
    v_mul_f32 v{ST+6}, v{ST+4}, v{ST+4}              ; rstd^2
    v_mul_f32 v{ST+4}, {f32(-LOG2E)}, v{ST+4}        ; -log2e*rstd
    s_waitcnt vmcnt(0)
    """)
    for j in range(6): k(f"v_mfma_f32_32x32x8_bf16 {vr(ACC+16*j,16)}, {vr(CSF+2*j,2)}, {vr(ST+2,2)}, 0")
    L = k.lab("loop")
    k("s_mov_b32 s27, 0")
    k("s_barrier")
    k(f"ds_read_b128 {vr(B[0],4)}, v{LB}")
    for j in range(6): k(f"ds_read_b128 {vr(A+4*j,4)}, v{LA} offset:{j*1024}")
    k(f"{L}:")
    for s in range(2):
        if s == 1:
            k(f"""
            s_add_u32 s27, s27, 1
            s_and_b32 s25, s27, 7
            s_cselect_b32 s25, 20480, {-7*20480}
            """.replace(f"s_cselect_b32 s25, 20480, {-7*20480}", f"s_mov_b32 s25, {-7*20480}\ns_cmov_b32 s25, 20480"))
            k(f"v_add_u32 v{LA}, s25, v{LA}")
            k(f"v_add_u32 v{LB}, s25, v{LB}")
            k("s_cmp_lt_u32 s27, 20")
            k("s_barrier")
        k(f"ds_read_b128 {vr(B[1-s],4)}, v{LB} offset:{(1-s)*1024}")
        for j in range(6):
            k("s_waitcnt lgkmcnt(6)")
            k(f"v_mfma_f32_32x32x16_bf16 {vr(ACC+16*j,16)}, {vr(A+4*j,4)}, {vr(B[s],4)}, {vr(ACC+16*j,16)}")
            k(f"ds_read_b128 {vr(A+4*j,4)}, v{LA} offset:{(1-s)*6144 + j*1024}")
    k(f"s_cbranch_scc1 {L}")
    k("s_waitcnt lgkmcnt(0)")
    T = A
    for p in range(3):
        G = ACC + 32 * p; U = G + 16
        for h in range(2):
            t = T + 8 * h; g = G + 8 * h; u = U + 8 * h
            for i in range(0, 8, 2): k(f"v_pk_mul_f32 v[{t+i}:{t+i+1}], v[{g+i}:{g+i+1}], v[{ST+4}:{ST+5}] op_sel_hi:[1,0]")
            for i in range(8): k(f"v_exp_f32 v{t+i}, v{t+i}")
            for i in range(0, 8, 2): k(f"v_pk_mul_f32 v[{g+i}:{g+i+1}], v[{g+i}:{g+i+1}], v[{u+i}:{u+i+1}]")
            for i in range(0, 8, 2): k(f"v_pk_add_f32 v[{t+i}:{t+i+1}], v[{t+i}:{t+i+1}], 1.0 op_sel_hi:[1,0]")
            for i in range(8): k(f"v_rcp_f32 v{t+i}, v{t+i}")
            for i in range(0, 8, 2): k(f"v_pk_mul_f32 v[{g+i}:{g+i+1}], v[{g+i}:{g+i+1}], v[{ST+6}:{ST+7}] op_sel_hi:[1,0]")
            for i in range(0, 8, 2): k(f"v_pk_mul_f32 v[{g+i}:{g+i+1}], v[{g+i}:{g+i+1}], v[{t+i}:{t+i+1}]")
            for i in range(4): k(f"v_cvt_pk_bf16_f32 v{u+i}, v{g+2*i}, v{g+2*i+1}")
            k(f"buffer_store_dwordx4 {vr(u,4)}, v3, s[{SWS}:{SWS+3}], s26 offen offset:{(4*p+2*h)*256}")
    k("s_endpgm")
    Lp = k.lab("pre"); Ll = k.lab("ll")
    k(f"""
    {L_ld}:
    s_mul_i32 s26, s23, 3072
    s_add_u32 s24, s24, s26
    s_add_u32 s24, s24, 6144           ; W ptr
    s_mul_i32 s25, s20, 40960
    s_add_u32 s25, s25, {HF_OFF}
    s_lshl_b32 s27, s23, 11
    s_add_u32 s27, s27, 12288
    s_mov_b32 s28, 0
    s_mov_b32 s29, 0
    s_waitcnt lgkmcnt(0)
    s_branch {Lp}
    {Ll}:
    s_waitcnt vmcnt(25)
    s_barrier
    {Lp}:
    s_add_u32 m0, s28, s27
    s_add_u32 s29, s29, 1
    buffer_load_dwordx4 v{GL}, s[{SWS}:{SWS+3}], s25 offen lds
    buffer_load_dwordx4 v{GL}, s[{SWS}:{SWS+3}], s25 offen offset:1024 lds
    s_add_u32 m0, s28, s26
    s_add_u32 s25, s25, 2048
    buffer_load_dwordx4 v{GL}, s[{SWS}:{SWS+3}], s24 offen lds
    buffer_load_dwordx4 v{GL}, s[{SWS}:{SWS+3}], s24 offen offset:1024 lds
    buffer_load_dwordx4 v{GL}, s[{SWS}:{SWS+3}], s24 offen offset:2048 lds
    s_add_u32 s24, s24, 12288
    s_add_u32 s28, s28, 20480
    s_cmp_eq_u32 s28, 163840
    s_cmov_b32 s28, 0
    s_cmp_lt_u32 s29, 6
    s_cbranch_scc1 {Lp} ; @seq=TTTTTN
    s_cmp_lt_u32 s29, 20
    s_cbranch_scc1 {Ll} ; @seq=TTN
    """)
    for i in range(6):
        k(f"s_waitcnt vmcnt({25-5*i})")
        k("s_barrier")
    k(f"""
    s_barrier
    {L_end}:
    s_endpgm
    """)
    return k

def build_k345():
    return [gemm16("oproj_kernel", 20, WOF_OFF, OF_OFF, True), build_k4(), gemm16("ffn2_kernel", 48, W2F_OFF, HH_OFF, False)]
```

```python
import sys, os
from common import *
from k1 import build_k1
from k2 import build_k2
from k345 import build_k345
kerns = [build_k1(), build_k2()] + build_k345()
order = list(kerns)
if os.environ.get("DUP"):
    order = []
    for i, kk in enumerate(kerns): order += [kk, kk] if str(i) in os.environ["DUP"] else [kk]
ne = int(os.environ.get("EMPTY", "0"))
if ne:
    e = Kern("empty_kernel", 256, 256, 0); e("s_endpgm"); kerns.append(e)
    order = order + [e] * ne
nd = int(os.environ.get("EMPTYD", "0"))
for i in range(nd):
    e = Kern(f"empty{i}_kernel", 256, 256, 0); e("s_endpgm"); kerns.append(e); order.append(e)
out = sys.argv[1] if len(sys.argv) > 1 else "sequential_preLN__mha_block__glu_gated_swiglu__prompt.s"
write_file(out, kerns, order)
```

```python
import re, sys, os
PROF = int(os.environ.get('PROF', '0'))

TRANS = re.compile(r"^v_(exp|log|rcp|rsq|sqrt|sin|cos)_")
REG = re.compile(r"^(-|\|)?([vas])(\d+)\|?$")
REGR = re.compile(r"^(-|\|)?([vas])\[(\d+):(\d+)\]\|?$")

def regs_of(tok):
    tok = tok.strip()
    if tok.startswith("neg(") or tok.startswith("abs("):
        tok = tok[4:-1]
    if tok.startswith("-|"):
        tok = tok[1:]
    m = REG.match(tok)
    if m: return [(m.group(2), int(m.group(3)))]
    m = REGR.match(tok)
    if m: return [(m.group(2), i) for i in range(int(m.group(3)), int(m.group(4)) + 1)]
    if tok == "vcc": return [("s", 106), ("s", 107)]
    if tok == "vcc_lo": return [("s", 106)]
    if tok == "vcc_hi": return [("s", 107)]
    if tok == "exec": return [("s", 126), ("s", 127)]
    if tok == "exec_lo": return [("s", 126)]
    if tok == "exec_hi": return [("s", 127)]
    if tok == "m0": return [("s", 124)]
    return []

def mfma_passes(op):
    if "_16b" in op: return 2
    if "_4b" in op: return 8
    if "_2b" in op: return 16
    if "32x32" in op: return 8
    if "16x16" in op: return 4
    raise ValueError(op)

class Ins:
    __slots__ = ("text", "op", "kind", "wr", "rd", "passes", "A", "B", "C", "D", "wide", "lds", "dpp", "sdwa", "target", "nop", "data", "label", "sread")
    def __init__(self, text):
        self.text = text
        t = text.split(";")[0].strip()
        self.label = None; self.op = None; self.kind = None
        self.wr = []; self.rd = []; self.target = None; self.nop = 0; self.data = []
        self.wide = False; self.lds = False; self.dpp = False; self.sdwa = False
        if not t or t.startswith("."):
            self.kind = "none"; return
        if t.endswith(":"):
            self.kind = "label"; self.label = t[:-1]; return
        parts = t.split(None, 1)
        op = parts[0]; self.op = op
        rest = parts[1] if len(parts) > 1 else ""
        ops = []; cur = ""; depth = 0
        for ch in rest:
            if ch in "[(": depth += 1
            if ch in "])": depth -= 1
            if ch == "," and depth == 0:
                ops.append(cur.strip()); cur = ""
            else: cur += ch
        if cur.strip(): ops.append(cur.strip())
        mods = []
        if ops:
            last = ops[-1].split()
            ops[-1] = last[0]; mods = last[1:]
        R = [regs_of(o) for o in ops]
        allr = lambda L: [r for x in L for r in x]
        if op.startswith("v_mfma"):
            self.kind = "mfma"; self.passes = mfma_passes(op)
            self.D, self.A, self.B, self.C = R[0], R[1], R[2], R[3]
            self.wr = R[0]; self.rd = R[1] + R[2] + R[3]
        elif op.startswith("v_"):
            self.kind = "valu"
            self.dpp = op.endswith("_dpp") or any(m.startswith(("row_", "quad_perm", "wave_")) for m in mods)
            self.sdwa = op.endswith("_sdwa") or any(m.startswith("op_sel:") for m in mods)
            if op == "v_nop": pass
            elif "permlane" in op and "swap" in op:
                self.wr = R[0] + R[1]; self.rd = R[0] + R[1]
            elif op.startswith("v_cmp"):
                self.wr = R[0]; self.rd = allr(R[1:])
                assert not op.startswith("v_cmpx")
            elif "_co_" in op:
                self.wr = R[0] + R[1]; self.rd = allr(R[2:])
            else:
                self.wr = R[0]; self.rd = allr(R[1:])
                if op.startswith(("v_fmac", "v_dot2c", "v_mac")) or self.sdwa or self.dpp or op.startswith("v_writelane"):
                    self.rd = self.rd + R[0]
                if op.startswith("v_cndmask") and len(ops) == 3: self.rd += regs_of("vcc")
        elif op.startswith("ds_"):
            self.kind = "ds"
            if op.startswith(("ds_read", "ds_bpermute", "ds_permute", "ds_swizzle")) or "_rtn" in op:
                self.wr = R[0]; self.rd = allr(R[1:])
            else:
                self.rd = allr(R)
        elif op.startswith(("buffer_", "global_")):
            self.kind = "vmem"
            self.lds = "lds" in mods or "_lds_" in op
            if op in ("buffer_wbl2", "buffer_inv"): pass
            elif "_load" in op:
                if self.lds: self.rd = allr(R) + regs_of("m0")
                else:
                    self.wr = R[0]; self.rd = allr(R[1:])
                    if "d16" in op: self.data = R[0]
            elif "_store" in op:
                self.rd = allr(R)
                self.data = R[0] if op.startswith("buffer") else R[1]
                self.wide = op.endswith(("x3", "x4"))
            elif "atomic" in op:
                self.rd = allr(R)
                if "sc0" in mods: self.wr = R[0]
            else: raise ValueError(op)
        elif op.startswith("s_"):
            self.kind = "salu"
            if op == "s_nop": self.nop = int(ops[0], 0)
            elif op.startswith(("s_cbranch", "s_branch")):
                self.kind = "branch"; self.target = ops[0]
            elif op == "s_endpgm": self.kind = "end"
            elif op == "s_waitcnt": self.kind = "wait"; self.data = t
            elif op.startswith(("s_memtime", "s_memrealtime")): pass
            elif op.startswith(("s_load", "s_buffer_load")):
                self.kind = "smem"; self.wr = R[0]; self.rd = allr(R[1:])
            elif op.startswith(("s_cmp", "s_bitcmp", "s_barrier", "s_setprio", "s_sleep", "s_setreg")):
                self.rd = allr(R)
            else:
                self.wr = R[0]; self.rd = allr(R[1:])
                if "saveexec" in op: self.wr = self.wr + regs_of("exec")
        else:
            raise ValueError("unknown instruction: " + text)

MD_C = {2: 4, 4: 6, 8: 10, 16: 18}
MD_AB = {2: 5, 4: 8, 8: 12, 16: 20}
MC_W = {2: 1, 4: 3, 8: 7, 16: 15}

def need_states(hist, ins):
    need = 0
    rd = set(ins.rd); wr = set(ins.wr)
    for age, p in hist:
        n = 0
        pw = set(p.wr)
        if p.kind == "valu":
            vw = {r for r in pw if r[0] != "s"}; sw = pw - vw
            isdot = p.op.startswith("v_dot")
            if ins.kind == "mfma" and vw & rd: n = max(n, 3 if isdot else 2)
            if ins.kind == "valu":
                if TRANS.match(p.op) and not TRANS.match(ins.op) and vw & rd: n = max(n, 1)
                if ins.op.startswith(("v_readlane", "v_readfirstlane")) and vw & rd: n = max(n, 1)
                if ("permlane" in ins.op or ins.dpp) and vw & rd: n = max(n, 2)
                if sw & rd: n = max(n, 4 if ins.op.startswith(("v_readlane", "v_writelane")) else 2)
                if p.sdwa and vw & (rd | wr): n = max(n, 1)
                if isdot and vw & (rd | wr) and not (ins.op == p.op and ins.wr == p.wr): n = max(n, 3)
            if ins.kind in ("vmem", "ds"):
                if sw & rd: n = max(n, 5)
                if isdot and vw & rd: n = max(n, 3)
            if ins.kind in ("salu", "branch", "smem") and sw & rd: n = max(n, 1)
        elif p.kind == "mfma":
            D = set(p.D)
            if ins.kind == "mfma":
                if D & set(ins.C):
                    if ins.C == p.D and ins.passes == p.passes: n = max(n, 2 if p.passes == 2 else 0)
                    else: n = max(n, MD_C[p.passes])
                if D & (set(ins.A) | set(ins.B)): n = max(n, MD_AB[p.passes])
                if D & set(ins.D) and not (ins.D == p.D and ins.passes == p.passes): n = max(n, MD_AB[p.passes])
            elif ins.kind in ("valu", "vmem", "ds"):
                if D & (rd | wr): n = max(n, MD_AB[p.passes])
                if ins.kind == "valu" and set(p.C) & wr: n = max(n, MC_W[p.passes])
        elif p.kind == "salu":
            if ("s", 124) in pw and ins.kind == "vmem" and ins.lds: n = max(n, 1)
        elif p.kind == "vmem":
            if p.wide and set(p.data) & wr: n = max(n, 2)
        if n - age > need: need = n - age
    return need

def paths(ins, maxback=1):
    lab = {x.label: i for i, x in enumerate(ins) if x.kind == "label"}
    out = []
    stack = [(0, [], {})]
    while stack:
        pc, tr, taken = stack.pop()
        tr = list(tr)
        while True:
            assert pc < len(ins), "fell off the end"
            x = ins[pc]; tr.append(pc)
            if x.kind == "end": break
            if x.kind == "branch":
                t = lab[x.target]
                ms = re.search(r"@seq=([NT]+)", x.text)
                if ms:
                    n = taken.get(pc, 0); taken = dict(taken); taken[pc] = n + 1
                    if ms.group(1)[min(n, len(ms.group(1)) - 1)] == "T": pc = t
                    else: pc += 1
                    continue
                if "@both" in x.text:
                    stack.append((t, list(tr), taken)); pc += 1; continue
                if x.op == "s_branch":
                    if t <= pc:
                        if taken.get(pc, 0) >= maxback: break
                        taken = dict(taken); taken[pc] = taken.get(pc, 0) + 1
                    pc = t; continue
                if t <= pc:
                    if taken.get(pc, 0) < maxback:
                        taken = dict(taken); taken[pc] = taken.get(pc, 0) + 1
                        pc = t; continue
                else:
                    stack.append((t, list(tr), taken))
            pc += 1
        out.append(tr)
        assert len(out) < 3000, "too many paths"
    return out

def pad_and_check(lines, name="", verbose=True):
    ins = [Ins(l) for l in lines]
    ps = paths(ins)
    pad = [0] * len(ins)
    changed = True
    while changed:
        changed = False
        for tr in ps:
            hist = []
            for pc in tr:
                x = ins[pc]
                if x.kind in ("none", "label"): continue
                if pad[pc]: hist = [(a + pad[pc], p) for a, p in hist]
                n = need_states(hist, x)
                if n > 0:
                    pad[pc] += n; changed = True
                    hist = [(a + n, p) for a, p in hist]
                st = x.nop + 1
                hist = [(a + st, p) for a, p in hist if a + st < 21]
                if x.kind in ("valu", "mfma", "salu", "vmem"): hist.insert(0, (0, x))
    errs = set()
    for tr in ps:
        vm = []; lg = []
        for pc in tr:
            x = ins[pc]
            if x.kind in ("none", "label"): continue
            if x.kind == "wait":
                m = re.search(r"vmcnt\((\d+)\)", x.data)
                if m:
                    n = int(m.group(1)); vm = vm[max(0, len(vm) - n):] if n else []
                m = re.search(r"lgkmcnt\((\d+)\)", x.data)
                if m:
                    n = int(m.group(1))
                    if n == 0: lg = []
                    elif not any(k == "smem" for k, _ in lg): lg = lg[len(lg) - n:] if n < len(lg) else lg
                continue
            use = set(x.rd) | set(x.wr)
            for q, same in ((vm, "vmem"), (lg, "ds")):
                for k, d in q:
                    u = use
                    if x.kind == same and k == same: u = set(x.rd)
                    if d & u: errs.add((pc, "outstanding %s dest used: %s" % (k, x.text.strip())))
            if x.kind == "vmem":
                vm.append(("vmem", set(x.wr)))
                if len(vm) > 63: errs.add((pc, "vmcnt overflow"))
            elif x.kind == "ds":
                lg.append(("ds", set(x.wr)))
                if len(lg) > 15: lg = lg
            elif x.kind == "smem": lg.append(("smem", set(x.wr)))
    for pc, e in sorted(errs)[:8]: print(f"[{name}] WAITCNT ERROR line {pc}: {e}", file=sys.stderr)
    if errs: raise SystemExit(1)
    out = []
    npad = 0
    for i, x in enumerate(ins):
        n = pad[i]
        npad += n
        while n > 0:
            k = min(n, 16); out.append(f"    s_nop {k-1}"); n -= k
        out.append(x.text)
    mv = max([r[1] for x in ins for r in x.rd + x.wr if r[0] == "v"] + [0])
    ma = max([r[1] for x in ins for r in x.rd + x.wr if r[0] == "a"] + [-1])
    if verbose: print(f"[{name}] {sum(1 for x in ins if x.op)} instrs, {len(ps)} paths, {npad} pad states, max v{mv} a{ma}", file=sys.stderr)
    return out, mv + 1, ma + 1

class Kern:
    def __init__(self, name, grid, block, lds):
        self.name = name; self.grid = grid; self.block = block; self.lds = lds
        self.lines = []; self.nl = 0
    def __call__(self, text):
        for l in text.split("\n"):
            l = l.strip()
            if not l: continue
            self.lines.append(l if l.endswith(":") or l.startswith(".") else "    " + l)
    def lab(self, base):
        self.nl += 1
        return f"L_{self.name}_{base}_{self.nl}"
    def stamp(self, slot):
        if PROF: self(f"s_memrealtime s[{86+2*slot}:{87+2*slot}]")
        if PROF and slot == 0: self("s_memtime s[84:85]")
    def end(self, sws, idx):
        if PROF:
            self("s_waitcnt vmcnt(0)") if PROF > 1 else None
            self("s_memrealtime s[100:101]")
            self("s_memtime s[82:83]")
            self("s_mov_b64 exec, 1")
            self("v_lshrrev_b32 v0, 6, v0")
            self("v_lshlrev_b32 v0, 6, v0")
            self("s_lshl_b32 s2, s2, 9")
            self(f"s_add_u32 s2, s2, {0x2700000 + idx * 131072}")
            self("s_waitcnt lgkmcnt(0)")
            for i in range(8): self(f"v_mov_b32 v{8+i}, s{86+2*i}")
            self(f"buffer_store_dwordx4 v[8:11], v0, s[{sws}:{sws+3}], s2 offen")
            self(f"buffer_store_dwordx4 v[12:15], v0, s[{sws}:{sws+3}], s2 offen offset:16")
            self("s_sub_u32 s82, s82, s84")
            self("v_mov_b32 v16, s82")
            self(f"buffer_store_dword v16, v0, s[{sws}:{sws+3}], s2 offen offset:32")
        self("s_endpgm")
    def finish(self):
        body, nv, na = pad_and_check(self.lines, self.name)
        acc = (nv + 3) // 4 * 4
        nfv = acc + na if na else nv
        txt = f".text\n.globl {self.name}\n.p2align 8\n.type {self.name},@function\n{self.name}:\n" + "\n".join(body) + "\n"
        txt += f""".section .rodata,"a"
.p2align 6
.amdhsa_kernel {self.name}
  .amdhsa_next_free_vgpr {nfv}
  .amdhsa_next_free_sgpr 102
  .amdhsa_accum_offset {acc}
  .amdhsa_group_segment_fixed_size 0
  .amdhsa_kernarg_size 80
  .amdhsa_user_sgpr_count 2
  .amdhsa_user_sgpr_kernarg_segment_ptr 1
  .amdhsa_system_sgpr_workgroup_id_x 1
.end_amdhsa_kernel
"""
        return txt

def vr(a, n=1, k="v"):
    return f"{k}{a}" if n == 1 else f"{k}[{a}:{a+n-1}]"

class Alloc:
    def __init__(self, start=0): self.n = start
    def __call__(self, cnt=1, align=1):
        if cnt > 1 and align == 1: align = 2
        self.n = (self.n + align - 1) // align * align
        r = self.n; self.n += cnt
        return r

def write_file(path, kerns, order=None):
    order = order or kerns
    head = "; generated by gen/gen.py (hand-written generator)\n"
    for k in order:
        head += f"; @launch kernel={k.name} grid=({k.grid},1,1) block=({k.block},1,1) lds={k.lds}\n"
    head += '.amdgcn_target "amdgcn-amd-amdhsa--gfx950"\n'
    seen = set(); body = ""
    for k in kerns:
        if k.name in seen: continue
        seen.add(k.name); body += k.finish()
    body += ".text\ncode_end:\n    s_endpgm\n"
    open(path, "w").write(head + body)
```

```python
from common import *

def build_k1():
    k = Kern("qkv_kernel", 240, 512, 4 * 32768 + 2048)
    SX, SW, SWS = 12, 16, 20
    STAT = 4 * 32768
    L_end = k.lab("end"); L_help = k.lab("help")
    k(f"""
    s_cmp_ge_u32 s2, 240
    s_cbranch_scc1 {L_end}
    """)
    k.stamp(0)
    load_srds(k, [("x", SX), ("wqkv", SW), ("ws", SWS)])
    k(f"""
    s_and_b32 s27, s2, 7
    s_lshr_b32 s25, s2, 3        ; j = 0..29
    s_lshl_b32 s24, s27, 1
    s_cmp_ge_u32 s25, 15
    s_cselect_b32 s27, 15, 0
    s_cselect_b32 s28, 1, 0
    s_sub_u32 s25, s25, s27      ; ct
    s_add_u32 s24, s24, s28      ; rt
    v_lshrrev_b32 v1, 6, v0
    v_and_b32 v2, 63, v0         ; lane
    v_readfirstlane_b32 s26, v1  ; wave
    v_and_b32 v3, 31, v2         ; m
    v_lshrrev_b32 v4, 5, v2      ; hf
    v_bfe_u32 v5, v3, 1, 3
    v_xor_b32 v5, v5, v4
    v_lshlrev_b32 v5, 4, v5
    v_lshl_add_u32 v5, v3, 7, v5
    s_cmp_ge_u32 s26, 4
    s_cbranch_scc1 {L_help}
    """)
    code_prefetch(k, 26, 144)
    a = Alloc(8)
    XA = a(4); WA = a(2); SEL = a(4); CS = a(4); OFF = a(8)
    FB = [a(16, 4), a(16, 4)]
    ACC = a(64, 4)
    T0 = FB[0]
    k(f"""
    s_lshr_b32 s27, s26, 1       ; wr
    s_and_b32 s28, s26, 1        ; wc
    s_lshl_b32 s29, s27, 13
    v_add_u32 v{XA}, s29, v5
    v_xor_b32 v{XA+1}, 32, v{XA}
    v_xor_b32 v{XA+2}, 64, v{XA}
    v_xor_b32 v{XA+3}, 0x60, v{XA}
    v_bfe_u32 v6, v2, 2, 2       ; r
    v_lshl_add_u32 v7, v4, 3, v6 ; row
    v_lshlrev_b32 v7, 8, v7
    v_bfe_u32 v1, v2, 4, 1
    v_lshl_add_u32 v7, v1, 5, v7
    v_and_b32 v1, 3, v2
    v_lshl_add_u32 v7, v1, 3, v7
    v_add_u32 v7, 16384, v7
    s_lshl_b32 s30, s28, 1
    s_add_u32 s30, s30, s27      ; n0
    s_xor_b32 s31, s30, 1        ; n1
    v_xor_b32 v1, s30, v6
    v_lshl_add_u32 v{WA}, v1, 6, v7
    v_xor_b32 v{WA+1}, 64, v{WA}
    ; selector
    v_lshrrev_b32 v1, 2, v2
    v_lshrrev_b32 v6, 4, v2
    v_xor_b32 v1, v1, v6
    v_and_b32 v1, 1, v1
    v_add_u32 v1, -1, v1
    v_and_b32 v{SEL}, 0x3f803f80, v1
    v_mov_b32 v{SEL+1}, v{SEL}
    v_mov_b32 v{SEL+2}, v{SEL}
    v_mov_b32 v{SEL+3}, v{SEL}
    """)
    for i in range(4): k(f"v_mov_b32 v{CS+i}, 0")
    for i in range(64): k(f"v_mov_b32 v{ACC+i}, 0")
    L_V = k.lab("v")
    k(f"""
    s_lshl_b32 s32, s24, 2
    s_lshl_b32 s33, s27, 1
    s_add_u32 s32, s32, s33
    s_mul_i32 s32, s32, {TS}
    s_cmp_ge_u32 s25, 10
    s_cbranch_scc1 {L_V}
    """)
    def reads(buf, off, s):
        b = FB[buf]
        k(f"ds_read_b64_tr_b16 v[{b+8}:{b+9}], v{WA} offset:{off + s*4096}")
        k(f"ds_read_b64_tr_b16 v[{b+10}:{b+11}], v{WA} offset:{off + s*4096 + 1024}")
        k(f"ds_read_b128 v[{b}:{b+3}], v{XA+s} offset:{off}")
        k(f"ds_read_b128 v[{b+4}:{b+7}], v{XA+s} offset:{off + 4096}")
        k(f"ds_read_b64_tr_b16 v[{b+12}:{b+13}], v{WA+1} offset:{off + s*4096}")
        k(f"ds_read_b64_tr_b16 v[{b+14}:{b+15}], v{WA+1} offset:{off + s*4096 + 1024}")
    def acc(ts, ns): return ACC + (ts * 2 + ns) * 16
    def mfmas(buf, isv):
        b = FB[buf]
        k(f"v_mfma_f32_16x16x32_bf16 v[{CS}:{CS+3}], v[{SEL}:{SEL+3}], v[{b+8}:{b+11}], v[{CS}:{CS+3}]")
        for ns in range(2):
            for ts in range(2):
                x = vr(b + 4 * ts, 4); w = vr(b + 8 + 4 * ns, 4); c = vr(acc(ts, ns), 16)
                k(f"v_mfma_f32_32x32x16_bf16 {c}, {x if isv else w}, {w if isv else x}, {c}")
    def mainloop(isv):
        L = k.lab("loop")
        k("s_mov_b32 s34, 5")
        k("s_waitcnt lgkmcnt(0)")
        k.stamp(1)
        k("s_barrier")
        k.stamp(2)
        reads(0, 0, 0)
        k(f"{L}:")
        for half in range(2):
            for s in range(4):
                if s < 3:
                    reads((s + 1) & 1, half * 32768, s + 1)
                    k("s_waitcnt lgkmcnt(6)")
                else:
                    k("s_waitcnt lgkmcnt(0)")
                    k("s_barrier")
                    if half == 1:
                        for r in list(range(XA, XA + 4)) + [WA, WA + 1]: k(f"v_xor_b32 v{r}, 0x10000, v{r}")
                    reads(0, (1 - half) * 32768, 0)
                mfmas(s & 1, isv)
        k(f"""
        s_sub_u32 s34, s34, 1
        s_cmp_lg_u32 s34, 0
        s_cbranch_scc1 {L}
        """)
        k.stamp(3)
        k(f"""
        s_waitcnt lgkmcnt(0)
        v_cvt_pk_bf16_f32 v{T0}, v{CS}, v{CS}
        v_and_b32 v{T0+2}, 0xffff0000, v{T0}
        v_sub_f32 v{T0+2}, v{CS}, v{T0+2}
        v_cvt_pk_bf16_f32 v{T0+1}, v{T0+2}, v{T0+2}
        s_lshl_b32 s35, s30, 8
        v_lshl_add_u32 v1, v3, 3, s35
        ds_write_b64 v1, v[{T0}:{T0+1}] offset:0
        """.replace("ds_write_b64 v1,", f"v_add_u32 v1, {STAT+1024}, v1\nds_write_b64 v1,"))
        k(f"""
        v_xor_b32 v6, 256, v1
        s_lshl_b32 s35, s27, 8
        v_lshl_add_u32 v7, v3, 2, s35
        v_add_u32 v7, {STAT}, v7
        v_add_u32 v4, -1, v4          ; hf==0 ? ~0 : 0
        s_waitcnt lgkmcnt(0)
        s_barrier
        ds_read_b64 v[{T0+2}:{T0+3}], v6
        ds_read_b32 v{T0+4}, v7
        ds_read_b32 v{T0+6}, v7 offset:128
        """)
    def ext_mfma(isv, nwait):
        k(f"""
        v_and_b32 v{T0}, v{T0}, v4
        v_and_b32 v{T0+1}, v{T0+1}, v4
        s_waitcnt lgkmcnt({nwait})
        v_and_b32 v{T0+2}, v{T0+2}, v4
        v_and_b32 v{T0+3}, v{T0+3}, v4
        v_mov_b32 v{T0+5}, v{T0+4}
        v_mov_b32 v{T0+7}, v{T0+6}
        """)
        for ns in range(2):
            for ts in range(2):
                x = vr(T0 + 4 + 2 * ts, 2); w = vr(T0 + 2 * ns, 2); c = vr(acc(ts, ns), 16)
                k(f"v_mfma_f32_32x32x8_bf16 {c}, {x if isv else w}, {w if isv else x}, {c}")
    k(f"""
    s_cmp_ge_u32 s25, 5
    s_cselect_b32 s33, 5, 0
    s_cselect_b32 s36, 0, {Q_OFF}
    s_cselect_b32 s37, 1.0, {f32(LOG2E * 20 ** -0.5)}
    s_sub_u32 s33, s25, s33
    s_add_u32 s32, s32, s36
    s_lshl_b32 s33, s33, 5       ; (ct%5)*32
    """)
    for ns in range(2):
        k(f"s_lshl_b32 s35, s{30+ns}, 3")
        k(f"s_add_u32 s35, s35, s33")
        for rq in range(4):
            o = OFF + ns * 4 + rq
            k(f"""
            v_add3_u32 v1, v4, s35, {2*rq}     ; g4
            v_mul_u32_u24 v6, 205, v1
            v_lshrrev_b32 v6, 10, v6           ; head
            v_mul_u32_u24 v7, 5, v6
            v_sub_u32 v1, v1, v7               ; p
            v_mul_u32_u24 v6, {HS}, v6
            v_and_b32 v7, 1, v1
            v_lshl_add_u32 v6, v7, 9, v6
            v_bfe_u32 v7, v1, 1, 1
            v_lshl_add_u32 v6, v7, 3, v6
            v_lshrrev_b32 v1, 2, v1            ; p==4
            v_lshl_add_u32 v6, v1, 10, v6
            v_sub_u32 v1, 4, v1
            v_lshlrev_b32 v1, v1, v3
            v_add_u32 v{o}, v6, v1
            """)
    mainloop(False)
    RS = T0 + 8
    k(f"ds_read_b32 v{RS}, v7 offset:512")
    k(f"ds_read_b32 v{RS+2}, v7 offset:640")
    ext_mfma(False, 2)
    k("s_waitcnt lgkmcnt(0)")
    k(f"v_mul_f32 v{RS}, s37, v{RS}")
    k(f"v_mul_f32 v{RS+2}, s37, v{RS+2}")
    for ns in range(2):
        for ts in range(2):
            c = acc(ts, ns)
            for i in range(0, 16, 2):
                k(f"v_pk_mul_f32 v[{c+i}:{c+i+1}], v[{c+i}:{c+i+1}], v[{RS+2*ts}:{RS+2*ts+1}] op_sel_hi:[1,0]")
            for i in range(8):
                k(f"v_cvt_pk_bf16_f32 v{c+i}, v{c+2*i}, v{c+2*i+1}")
            for rq in range(4):
                k(f"buffer_store_dwordx2 v[{c+2*rq}:{c+2*rq+1}], v{OFF+ns*4+rq}, s[{SWS}:{SWS+3}], s32 offen offset:{ts*TS}")
    k.end(SWS, 0)
    k(f"{L_V}:")
    k(f"""
    s_sub_u32 s33, s25, 10
    s_lshl_b32 s33, s33, 7
    s_add_u32 s32, s32, 1280
    """)
    for ns in range(2):
        k(f"""
        s_lshl_b32 s35, s{30+ns}, 5
        s_add_u32 s35, s35, s33
        v_add_u32 v1, s35, v3
        v_mul_u32_u24 v6, 3277, v1
        v_lshrrev_b32 v6, 16, v6           ; head
        v_mul_u32_u24 v7, 20, v6
        v_sub_u32 v1, v1, v7               ; d
        v_cmp_eq_u32 s[{38+2*ns}:{39+2*ns}], 19, v1
        v_mul_u32_u24 v6, {HS}, v6
        v_lshl_add_u32 v6, v1, 4, v6
        v_mul_u32_u24 v1, 336, v4
        v_add_u32 v{OFF+ns}, v6, v1
        """)
    for i in range(4): k(f"v_mov_b32 v{OFF+4+i}, 0x3f803f80")
    k(f"v_lshlrev_b32 v{OFF+2}, 4, v4   ; hf*16")
    mainloop(True)
    RV = FB[1]
    RV2 = a(16, 4)
    k(f"s_lshl_b32 s35, s27, 8")
    k(f"s_add_u32 s35, s35, {STAT+512}")
    k(f"v_add_u32 v7, s35, v{OFF+2}")
    for ts in range(2):
        for rq in range(4):
            r = (RV, RV2)[ts] + 4 * rq
            k(f"ds_read_b128 v[{r}:{r+3}], v7 offset:{ts*128 + rq*32}")
    ext_mfma(True, 8)
    k("s_waitcnt lgkmcnt(0)")
    k(f"s_add_u32 s33, s32, {TS}")
    for ns in range(2):
        for ts in range(2):
            c = acc(ts, ns); r = (RV, RV2)[ts]
            for i in range(0, 16, 2):
                k(f"v_pk_mul_f32 v[{c+i}:{c+i+1}], v[{c+i}:{c+i+1}], v[{r+i}:{r+i+1}]")
            for i in range(8):
                k(f"v_cvt_pk_bf16_f32 v{c+i}, v{c+2*i}, v{c+2*i+1}")
            for s in range(2):
                k(f"buffer_store_dwordx4 v[{c+4*s}:{c+4*s+3}], v{OFF+ns}, s[{SWS}:{SWS+3}], s{32+ts} offen offset:{s*672}")
    for ns in range(2):
        k(f"s_mov_b64 exec, s[{38+2*ns}:{39+2*ns}]")
        for ts in range(2):
            for s in range(2):
                k(f"buffer_store_dwordx4 v[{OFF+4}:{OFF+7}], v{OFF+ns}, s[{SWS}:{SWS+3}], s{32+ts} offen offset:{s*672+16}")
    k.end(SWS, 0)
    k(f"{L_help}:")
    a = Alloc(8)
    XA = a(4); GA = a(4); GB = a(4); S = a(4); FR = a(16, 4); TT = a(4)
    k(f"""
    s_sub_u32 s26, s26, 4        ; w
    s_lshl_b32 s29, s26, 12
    v_add_u32 v{XA}, s29, v5
    v_xor_b32 v{XA+1}, 32, v{XA}
    v_xor_b32 v{XA+2}, 64, v{XA}
    v_xor_b32 v{XA+3}, 0x60, v{XA}
    v_lshrrev_b32 v1, 3, v2
    v_mul_u32_u24 v1, 1280, v1
    v_and_b32 v6, 7, v2
    v_lshrrev_b32 v7, 4, v2
    v_xor_b32 v6, v6, v7
    v_lshl_add_u32 v{GA}, v6, 4, v1
    v_xor_b32 v6, 4, v6
    v_lshl_add_u32 v{GA+1}, v6, 4, v1
    v_add_u32 v{GA+1}, {10240-1024}, v{GA+1}
    v_add_u32 v{GA+2}, {2*(10240-1024)}, v{GA}
    v_add_u32 v{GA+3}, {2*(10240-1024)}, v{GA+1}
    s_lshl_b32 s30, s24, 2
    s_add_u32 s30, s30, s26
    s_mul_i32 s30, s30, {32*1280}     ; A soffset
    v_mul_u32_u24 v1, 3840, v7
    v_lshlrev_b32 v7, 2, v7
    v_and_b32 v6, 15, v2
    v_xor_b32 v6, v6, v7
    v_lshl_add_u32 v{GB}, v6, 4, v1
    v_add_u32 v{GB+1}, {15360-1024}, v{GB}
    v_add_u32 v{GB+2}, {2*(15360-1024)}, v{GB}
    v_add_u32 v{GB+3}, {3*(15360-1024)}, v{GB}
    s_mul_i32 s31, s26, {16*3840}
    s_lshl_b32 s27, s25, 8
    s_add_u32 s31, s31, s27           ; B soffset
    s_mov_b32 s32, s29
    s_waitcnt lgkmcnt(0)
    """)
    def dma(fill=None):
        fill = fill or (lambda i: None)
        k("s_mov_b32 m0, s32")
        for i in range(4):
            k(f"buffer_load_dwordx4 v{GA+i}, s[{SX}:{SX+3}], s30 offen offset:{i*1024} lds"); fill(i)
        k("s_add_u32 s33, s32, 16384")
        k("s_mov_b32 m0, s33")
        k("s_add_u32 s30, s30, 128")
        for i in range(4):
            k(f"buffer_load_dwordx4 v{GB+i}, s[{SW}:{SW+3}], s31 offen offset:{i*1024} lds"); fill(4 + i)
        k(f"s_add_u32 s31, s31, {64*3840}")
        k("s_add_u32 s32, s32, 32768")
        k("s_and_b32 s32, s32, 0x1ffff")
    Lp = k.lab("pre")
    k("s_mov_b32 s34, 3")
    k(f"{Lp}:")
    dma()
    k(f"""
    s_sub_u32 s34, s34, 1
    s_cmp_lg_u32 s34, 0
    s_cbranch_scc1 {Lp}
    """)
    for i in range(4): k(f"v_mov_b32 v{S+i}, 0")
    Lh = k.lab("hloop")
    k("s_waitcnt vmcnt(16)")
    k(f"{Lh}:")
    k("s_barrier")
    for s in range(4): k(f"ds_read_b128 v[{FR+4*s}:{FR+4*s+3}], v{XA+s}")
    k(f"s_cmp_ge_u32 s34, 7")
    k(f"s_cmov_b32 s{SX+2}, 0")
    k(f"s_cmov_b32 s{SW+2}, 0")
    for s in range(4):
        k(f"v_add_u32 v{XA+s}, 0x8000, v{XA+s}")
        k(f"v_and_b32 v{XA+s}, 0x1ffff, v{XA+s}")
    def fill(p):
        for i in (2 * p, 2 * p + 1):
            if i % 4 == 0: k(f"s_waitcnt lgkmcnt({3 - i//4})")
            t = TT + 2 * (i & 1)
            k(f"""
            v_lshlrev_b32 v{t}, 16, v{FR+i}
            v_and_b32 v{t+1}, 0xffff0000, v{FR+i}
            v_add_f32 v{S}, v{S}, v{t}
            v_add_f32 v{S+1}, v{S+1}, v{t+1}
            v_fmac_f32 v{S+2}, v{t}, v{t}
            v_fmac_f32 v{S+3}, v{t+1}, v{t+1}
            """)
    dma(fill)
    k(f"""
    s_add_u32 s34, s34, 1
    s_waitcnt vmcnt(16)
    s_cmp_lt_u32 s34, 10
    s_cbranch_scc1 {Lh}
    s_barrier
    v_add_f32 v{S}, v{S}, v{S+1}
    v_add_f32 v{S+2}, v{S+2}, v{S+3}
    v_mov_b32 v{S+1}, v{S}
    v_mov_b32 v{S+3}, v{S+2}
    v_permlane32_swap_b32 v{S}, v{S+1}
    v_permlane32_swap_b32 v{S+2}, v{S+3}
    v_add_f32 v{S}, v{S}, v{S+1}
    v_add_f32 v{S+2}, v{S+2}, v{S+3}
    v_mul_f32 v{S}, {f32(-1.0/640)}, v{S}          ; -mean
    v_mul_f32 v{S+2}, {f32(1.0/640)}, v{S+2}
    v_fma_f32 v{S+2}, -v{S}, v{S}, v{S+2}          ; var
    v_max_f32 v{S+2}, 0, v{S+2}
    v_add_f32 v{S+2}, {f32(1e-5)}, v{S+2}
    v_rsq_f32 v{S+2}, v{S+2}
    v_cvt_pk_bf16_f32 v{S+1}, v{S}, v{S}
    v_and_b32 v{S+3}, 0xffff0000, v{S+1}
    v_sub_f32 v{S+3}, v{S}, v{S+3}
    v_cvt_pk_bf16_f32 v{S}, v{S}, v{S+3}
    s_lshl_b32 s27, s26, 7
    s_add_u32 s27, s27, {STAT}
    v_lshl_add_u32 v1, v3, 2, s27
    ds_write_b32 v1, v{S}
    ds_write_b32 v1, v{S+2} offset:512
    s_waitcnt lgkmcnt(0)
    s_barrier
    s_waitcnt vmcnt(0)
    """)
    k.end(SWS, 0)
    k(f"{L_end}:")
    k("s_endpgm")
    return k
```

```python
from common import *

def build_k2():
    SCR = 147456
    k = Kern("attn_kernel", 256, 512, SCR + 1024)
    SWS, SRC = 12, 16
    L_end = k.lab("end")
    a = Alloc(8)
    QL = a(4); QH = a(2); AK = a(); AH = a(); AV = a(); GL = a()
    NM = a(16, 4); S = [a(16, 4), a(16, 4)]; P = a(8); O = a(16, 4)
    KL = [a(4), a(4)]; KH = [a(2), a(2)]; V = [a(8), a(8)]
    RP = a(40, 4); RO = a(4); SEL = a(4); CS = a(4)
    k(f"""
    s_cmp_ge_u32 s2, 256
    s_cbranch_scc1 {L_end}
    """)
    k.stamp(0)
    load_srds(k, [("ws", SWS)])
    k(f"""
    s_load_dwordx2 s[20:21], s[0:1], {ARG['wo']}
    s_load_dwordx4 s[24:27], s[0:1], {ARG['w1']}
    s_load_dwordx2 s[22:23], s[0:1], {ARG['w2']}
    s_and_b32 s28, s2, 7
    s_lshl_b32 s28, s28, 2
    s_lshr_b32 s29, s2, 6
    s_add_u32 s28, s28, s29        ; head
    s_bfe_u32 s29, s2, 0x30003     ; qb
    v_lshrrev_b32 v1, 6, v0
    v_and_b32 v2, 63, v0           ; lane
    v_readfirstlane_b32 s30, v1    ; wave
    v_and_b32 v3, 31, v2           ; m
    v_lshrrev_b32 v4, 5, v2        ; hf
    v_lshlrev_b32 v{GL}, 4, v2
    v_lshlrev_b32 v{AH}, 3, v3
    v_add_u32 v{AH}, 1024, v{AH}
    s_mul_i32 s31, s28, {HS}
    s_lshl_b32 s32, s29, 3
    s_add_u32 s32, s32, s30        ; tt
    s_mul_i32 s33, s32, {TS}
    s_add_u32 s33, s33, s31
    s_add_u32 s33, s33, {Q_OFF}
    s_mul_i32 s34, s30, 3072
    s_add_u32 s35, s31, s34
    s_mov_b32 m0, s34
    s_waitcnt lgkmcnt(0)
    buffer_load_dwordx4 v[{QL}:{QL+3}], v{GL}, s[{SWS}:{SWS+3}], s33 offen
    buffer_load_dwordx2 v[{QH}:{QH+1}], v{AH}, s[{SWS}:{SWS+3}], s33 offen
    """)
    def dma3():
        for i in range(3): k(f"buffer_load_dwordx4 v{GL}, s[{SWS}:{SWS+3}], s35 offen offset:{i*1024} lds")
    for g in range(6):
        if g:
            k("s_add_u32 s34, s34, 24576"); k("s_mov_b32 m0, s34"); k("s_add_u32 s35, s35, 24576")
        dma3()
    k(f"""
    v_mov_b32 v{AK}, v{GL}
    v_mul_u32_u24 v{AV}, 336, v4
    v_lshl_add_u32 v{AV}, v3, 4, v{AV}
    v_add_u32 v{AV}, 1280, v{AV}
    v_add_u32 v5, -1, v4
    """)
    for i in range(16): k(f"v_mov_b32 v{O+i}, 0")
    def rdK(b, off):
        k(f"ds_read_b128 v[{KL[b]}:{KL[b]+3}], v{AK} offset:{off}")
        k(f"ds_read_b64 v[{KH[b]}:{KH[b]+1}], v{AH} offset:{off}")
    def rdV(b, off):
        k(f"ds_read_b128 v[{V[b]}:{V[b]+3}], v{AV} offset:{off}")
        k(f"ds_read_b128 v[{V[b]+4}:{V[b]+7}], v{AV} offset:{off+672}")
    def qk_a(b, c): k(f"v_mfma_f32_32x32x16_bf16 {vr(S[b],16)}, {vr(KL[b],4)}, {vr(QL,4)}, {c}")
    def qk_b(b): k(f"v_mfma_f32_32x32x8_bf16 {vr(S[b],16)}, {vr(KH[b],2)}, {vr(QH,2)}, {vr(S[b],16)}")
    def pv(b, h): k(f"v_mfma_f32_32x32x16_bf16 {vr(O,16)}, {vr(V[b]+4*h,4)}, {vr(P+4*h,4)}, {vr(O,16)}")
    def exps(b, lo, hi):
        for i in range(lo, hi): k(f"v_exp_f32 v{S[b]+i}, v{S[b]+i}")
    def cvts(b, lo, hi):
        for i in range(lo, hi): k(f"v_cvt_pk_bf16_f32 v{P+i}, v{S[b]+2*i}, v{S[b]+2*i+1}")
    def maxred(b, dst, init):
        s = S[b]
        if init: k(f"v_max3_f32 v{dst}, v{s}, v{s+1}, v{s+2}"); k(f"v_max_f32 v{dst}, v{dst}, v{s+3}"); st = 4
        else: st = 0
        for i in range(st, 16, 2): k(f"v_max3_f32 v{dst}, v{dst}, v{s+i}, v{s+i+1}")
    def setnm(src):
        k(f"v_mov_b32 v1, v{src}")
        k(f"v_permlane32_swap_b32 v{src}, v1")
        k(f"v_max_f32 v1, v1, v{src}")
        for i in range(16): k(f"v_sub_f32 v{NM+i}, 0, v1")
    k.stamp(1)
    k(f"""
    s_waitcnt vmcnt(15)
    s_barrier
    """)
    k.stamp(2)
    rdK(0, 0); rdK(1, TS); rdV(0, 0)
    k(f"v_and_b32 v{QH}, v{QH}, v5")
    k(f"v_and_b32 v{QH+1}, v{QH+1}, v5")
    k("s_waitcnt lgkmcnt(4)")
    qk_a(0, 0); qk_b(0)
    maxred(0, 6, True)
    setnm(6)
    for i in range(16): k(f"v_add_f32 v{S[0]+i}, v{S[0]+i}, v{NM}")
    L_loop = k.lab("loop"); L_blk = k.lab("blk"); L_ret = k.lab("ret"); L_epi = k.lab("epi"); L_slow = k.lab("slow")
    k("s_mov_b32 s36, 0            ; chunk")
    k("s_mov_b32 s38, 0")
    k(f"{L_loop}:")
    for j in range(8):
        b = j & 1
        if j == 6:
            k(f"""
            s_cmp_eq_u32 s36, 6
            s_mov_b32 s37, {8*TS}
            s_cmov_b32 s37, {-48*TS}
            s_bitcmp1_b32 0x15, s36
            s_cbranch_scc1 {L_blk}
            {L_ret}:
            v_add_u32 v{AK}, s37, v{AK}
            v_add_u32 v{AH}, s37, v{AH}
            """)
        if j == 7: k(f"v_add_u32 v{AV}, s37, v{AV}")
        rdK(b, ((j + 2) & 7) * TS)
        rdV(1 - b, ((j + 1) & 7) * TS)
        k("s_waitcnt lgkmcnt(4)")
        qk_a(1 - b, vr(NM, 16))
        exps(b, 0, 4)
        qk_b(1 - b)
        exps(b, 4, 8)
        cvts(b, 0, 4)
        exps(b, 8, 10)
        pv(b, 0)
        exps(b, 10, 16)
        cvts(b, 4, 8)
        if j == 7:
            k("s_add_u32 s36, s36, 1"); k("s_cmp_lt_u32 s36, 8")
        pv(b, 1)
    k(f"s_cbranch_scc1 {L_loop}")
    k(f"{L_epi}:")
    k.stamp(6)
    k(f"""
    s_waitcnt lgkmcnt(0)
    s_mul_i32 s33, s32, {2*80*256}
    s_add_u32 s33, s33, {OF_OFF}
    s_lshl_b32 s34, s28, 9
    s_add_u32 s34, s34, s33            ; chunk 2h
    s_lshr_b32 s35, s28, 1
    s_lshl_b32 s35, s35, 8
    s_add_u32 s35, s35, s33
    s_and_b32 s39, s28, 1
    s_lshl_b32 s39, s39, 3
    s_add_u32 s35, s35, s39
    s_add_u32 s35, s35, {64*256}
    v_lshrrev_b32 v1, 4, v3
    v_mul_u32_u24 v1, {80*256}, v1
    v_and_b32 v6, 15, v3
    v_lshl_add_u32 v1, v6, 4, v1
    v_lshl_add_u32 v1, v4, 8, v1
    v_mov_b32 v6, v{O+8}
    v_mov_b32 v7, v{O+8}
    v_mul_f32 v{P}, 0, v{O}
    v_mul_f32 v{P+1}, 0, v{O+8}
    v_permlane32_swap_b32 v6, v7       ; v7 = l
    """)
    for i in range(1, 8): k(f"v_fma_f32 v{P}, v{O+i}, 0, v{P}")
    for i in range(9, 12): k(f"v_fma_f32 v{P+1}, v{O+i}, 0, v{P+1}")
    k(f"""
    v_rcp_f32 v6, v7
    v_cmp_nlt_f32 s[40:41], v7, {2.0**60:.1f}
    v_cmp_u_f32 s[42:43], v{P}, v{P}
    v_cmp_u_f32 s[44:45], v{P+1}, v{P+1}
    """.replace(f"v_cmp_nlt_f32 s[40:41], v7, {2.0**60:.1f}", f"v_mov_b32 v{P+2}, {f32(2.0**60)}\nv_cmp_nlt_f32 s[40:41], v7, v{P+2}"))
    for i in range(0, 12, 2): k(f"v_pk_mul_f32 v[{O+i}:{O+i+1}], v[{O+i}:{O+i+1}], v[6:7] op_sel_hi:[1,0]")
    k(f"""
    s_or_b64 s[40:41], s[40:41], s[42:43]
    s_or_b32 s40, s40, s44
    s_or_b32 s40, s40, s41
    s_andn2_b32 s40, s40, s38
    s_cbranch_scc1 {L_slow}
    """)
    for i in range(6): k(f"v_cvt_pk_bf16_f32 v{P+i}, v{O+2*i}, v{O+2*i+1}")
    k(f"""
    buffer_store_dwordx4 v[{P}:{P+3}], v1, s[{SWS}:{SWS+3}], s34 offen
    s_mov_b64 exec, 0xffffffff
    buffer_store_dwordx2 v[{P+4}:{P+5}], v1, s[{SWS}:{SWS+3}], s35 offen
    """)
    k.end(SWS, 1)
    k(f"{L_end}:")
    k("s_endpgm")
    L_b2 = k.lab("b2"); L_b4 = k.lab("b4"); L_j2 = k.lab("j2"); L_st = k.lab("st"); L_bar = k.lab("bar"); L_wo = k.lab("wo"); L_go = k.lab("go")
    k(f"""
    {L_blk}:
    s_waitcnt vmcnt(0)
    s_cmp_eq_u32 s36, 2
    s_cbranch_scc1 {L_b2}
    s_barrier
    s_cmp_lg_u32 s36, 0
    s_cbranch_scc1 {L_ret}
    """)
    k.stamp(3)
    k(f"""
    s_cmp_ge_u32 s2, 164
    s_cbranch_scc1 {L_ret}
    s_mov_b32 s{SRC+3}, 0x00020000
    s_cmp_ge_u32 s2, 96
    s_cbranch_scc1 {L_j2}
    ; ---- W1/W3 strip: ct = J/6, j = J%6
    s_mul_i32 s40, s2, 171
    s_lshr_b32 s40, s40, 10            ; ct
    s_mul_i32 s41, s40, 6
    s_sub_u32 s41, s2, s41             ; j
    s_bitcmp1_b32 s41, 0
    s_cselect_b32 s{SRC}, s26, s24
    s_cselect_b32 s{SRC+1}, s27, s25
    s_mov_b32 s{SRC+2}, {SIZE['w1']}
    s_lshr_b32 s42, s41, 1
    s_lshl_b32 s42, s42, 6
    s_mul_i32 s43, s40, 192
    s_add_u32 s42, s42, s43
    s_mul_i32 s43, s30, {80*3072}
    s_add_u32 s42, s42, s43
    v_mul_u32_u24 v{RO}, {8*3072}, v4
    v_lshl_add_u32 v{RO}, v3, 1, v{RO}
    ; dest
    s_mul_i32 s44, s40, 41
    s_mul_i32 s44, s44, 6
    s_add_u32 s44, s44, s41
    s_lshl_b32 s44, s44, 10
    s_add_u32 s44, s44, {W13F_OFF}
    s_mul_i32 s45, s30, {5*6144}
    s_add_u32 s45, s45, s44
    s_add_u32 s45, s45, 6144
    s_mov_b32 s46, 6144
    """)
    for f in range(5):
        for i in range(0, 8, 2):
            k(f"buffer_load_ushort v{RP+8*f+i}, v{RO}, s[{SRC}:{SRC+3}], s42 offen")
            k(f"buffer_load_ushort v{RP+8*f+i+1}, v{RO}, s[{SRC}:{SRC+3}], s42 offen offset:3072")
            k(f"s_add_u32 s42, s42, {6144 if i < 6 else 6144 + 8*3072}")
    k(f"""
    s_branch {L_ret}
    {L_j2}:
    s_sub_u32 s40, s2, 96
    s_lshl_b32 s40, s40, 3
    s_add_u32 s40, s40, s30            ; u
    v_lshrrev_b32 v1, 4, v2            ; g
    s_mov_b32 s46, 1024
    s_cmp_lt_u32 s2, 116
    s_cbranch_scc1 {L_wo}
    s_sub_u32 s40, s40, 160
    s_mul_i32 s41, s40, 1366
    s_lshr_b32 s41, s41, 16            ; ct
    s_mul_i32 s42, s41, 48
    s_sub_u32 s42, s40, s42            ; ks
    s_mov_b32 s{SRC}, s22
    s_mov_b32 s{SRC+1}, s23
    s_mov_b32 s{SRC+2}, {SIZE['w2']}
    s_mul_i32 s45, s40, 5120
    s_add_u32 s45, s45, {W2F_OFF}
    s_lshl_b32 s42, s42, 5
    s_mov_b32 s43, 16
    s_mov_b32 s44, 4
    s_mov_b32 s47, 8
    s_branch {L_go}
    {L_wo}:
    s_mul_i32 s41, s40, 3277
    s_lshr_b32 s41, s41, 16            ; ct
    s_mul_i32 s42, s41, 20
    s_sub_u32 s42, s40, s42            ; ks
    s_mov_b32 s{SRC}, s20
    s_mov_b32 s{SRC+1}, s21
    s_mov_b32 s{SRC+2}, {SIZE['wo']}
    s_mul_i32 s45, s40, 5120
    s_add_u32 s45, s45, {WOF_OFF}
    s_mul_i32 s48, s42, 40
    s_mul_i32 s49, s42, 160
    s_sub_u32 s49, s49, {16*160-16}
    s_cmp_ge_u32 s42, 16
    s_cselect_b32 s42, s49, s48
    s_cselect_b32 s43, 80, 20
    s_cselect_b32 s44, 40, 4
    s_cselect_b32 s47, 20, 8
    {L_go}:
    v_lshrrev_b32 v6, 1, v1
    v_mul_u32_u24 v6, s43, v6
    v_and_b32 v1, 1, v1
    v_mul_u32_u24 v1, s44, v1
    v_add3_u32 v1, v1, v6, s42         ; rowA
    v_mul_u32_u24 v1, 1280, v1
    v_and_b32 v6, 15, v2               ; i
    v_lshl_add_u32 v{RO+2}, v6, 1, v1
    v_and_b32 v6, 12, v6
    v_lshl_add_u32 v{RO}, v6, 1, v{RO+2}
    s_mul_i32 s47, s47, 1280
    s_mul_i32 s42, s41, 160
    v_add_u32 v{RO+1}, s47, v{RO}
    v_add_u32 v{RO+3}, s47, v{RO+2}
    """)
    for f in range(5):
        co = (32 * (f // 2) + 4 * (f & 1)) * 2
        for i in range(8):
            k(f"buffer_load_ushort v{RP+8*f+i}, v{RO + (2 if f == 4 else 0) + (i >> 2)}, s[{SRC}:{SRC+3}], s42 offen offset:{co + (i & 3)*1280}")
    k(f"""
    s_branch {L_ret}
    {L_b2}:
    """)
    k.stamp(4)
    k(f"""
    s_cmp_ge_u32 s2, 164
    s_cbranch_scc1 {L_bar}
    """)
    for f in range(5):
        for i in range(4): k(f"v_lshl_or_b32 v{RP+4*f+i}, v{RP+8*f+2*i+1}, 16, v{RP+8*f+2*i}")
        k(f"buffer_store_dwordx4 v[{RP+4*f}:{RP+4*f+3}], v{GL}, s[{SWS}:{SWS+3}], s45 offen")
        k(f"s_add_u32 s45, s45, s46")
    k(f"""
    s_cmp_ge_u32 s2, 96
    s_cbranch_scc1 {L_bar}
    v_lshrrev_b32 v1, 2, v2
    v_lshrrev_b32 v6, 4, v2
    v_xor_b32 v1, v1, v6
    v_and_b32 v1, 1, v1
    v_add_u32 v1, -1, v1
    v_and_b32 v{SEL}, 0x3f803f80, v1
    v_mov_b32 v{SEL+1}, v{SEL}
    v_mov_b32 v{SEL+2}, v{SEL}
    v_mov_b32 v{SEL+3}, v{SEL}
    s_lshl_b32 s40, s30, 7
    s_add_u32 s40, s40, {SCR}
    v_lshl_add_u32 v1, v3, 2, s40
    """)
    for f in range(5):
        k(f"v_mfma_f32_16x16x32_bf16 {vr(CS,4)}, {vr(SEL,4)}, {vr(RP+4*f,4)}, {vr(CS,4) if f else 0}")
    k(f"""
    ds_write_b32 v1, v{CS}
    s_waitcnt lgkmcnt(0)
    {L_bar}:
    s_barrier
    """)
    k.stamp(5)
    k(f"""
    s_mul_i32 s34, s30, 3072
    s_mov_b32 m0, s34
    s_add_u32 s35, s31, s34
    s_add_u32 s35, s35, {56*TS}
    """)
    dma3()
    k(f"""
    s_cmp_ge_u32 s2, 96
    s_cbranch_scc1 {L_ret}
    s_cmp_lg_u32 s30, 0
    s_cbranch_scc1 {L_ret}
    """)
    for w in range(8): k(f"ds_read_b32 v{RP+20+w}, v1 offset:{w*128}")
    k("s_waitcnt lgkmcnt(0)")
    for w in range(1, 8): k(f"v_add_f32 v{RP+20}, v{RP+20}, v{RP+20+w}")
    k(f"""
    v_cvt_pk_bf16_f32 v{CS}, v{RP+20}, v{RP+20}
    v_and_b32 v{CS+2}, 0xffff0000, v{CS}
    v_sub_f32 v{CS+2}, v{RP+20}, v{CS+2}
    v_cvt_pk_bf16_f32 v{CS+1}, v{CS+2}, v{CS+2}
    v_and_b32 v{CS}, v{CS}, v5
    v_and_b32 v{CS+1}, v{CS+1}, v5
    v_mov_b32 v{CS+2}, 0
    v_mov_b32 v{CS+3}, 0
    buffer_store_dwordx4 {vr(CS,4)}, v{GL}, s[{SWS}:{SWS+3}], s44 offen
    s_branch {L_ret}
    """)
    L1 = k.lab("s1"); L2 = k.lab("s2")
    k(f"""
    {L_slow}:
    s_mov_b32 s38, -1
    v_lshlrev_b32 v{AH}, 3, v3
    v_mul_u32_u24 v{AV}, 336, v4
    v_lshl_add_u32 v{AV}, v3, 4, v{AV}
    v_mov_b32 v6, 0xff800000
    s_mov_b32 s35, s31
    s_mov_b32 s36, 0
    {L1}:
    buffer_load_dwordx4 {vr(KL[0],4)}, v{GL}, s[{SWS}:{SWS+3}], s35 offen
    buffer_load_dwordx2 {vr(KH[0],2)}, v{AH}, s[{SWS}:{SWS+3}], s35 offen offset:1024
    s_waitcnt vmcnt(0)
    """)
    qk_a(0, 0); qk_b(0)
    maxred(0, 6, False)
    k(f"""
    s_add_u32 s35, s35, {TS}
    s_add_u32 s36, s36, 1
    s_cmp_lt_u32 s36, 64
    s_cbranch_scc1 {L1}
    """)
    setnm(6)
    for i in range(16): k(f"v_mov_b32 v{O+i}, 0")
    k(f"""
    s_mov_b32 s35, s31
    s_mov_b32 s36, 0
    {L2}:
    buffer_load_dwordx4 {vr(KL[0],4)}, v{GL}, s[{SWS}:{SWS+3}], s35 offen
    buffer_load_dwordx2 {vr(KH[0],2)}, v{AH}, s[{SWS}:{SWS+3}], s35 offen offset:1024
    buffer_load_dwordx4 {vr(V[0],4)}, v{AV}, s[{SWS}:{SWS+3}], s35 offen offset:1280
    buffer_load_dwordx4 {vr(V[0]+4,4)}, v{AV}, s[{SWS}:{SWS+3}], s35 offen offset:{1280+672}
    s_waitcnt vmcnt(0)
    """)
    qk_a(0, vr(NM, 16)); qk_b(0)
    exps(0, 0, 16); cvts(0, 0, 8); pv(0, 0); pv(0, 1)
    k(f"""
    s_add_u32 s35, s35, {TS}
    s_add_u32 s36, s36, 1
    s_cmp_lt_u32 s36, 64
    s_cbranch_scc1 {L2}
    s_branch {L_epi}
    """)
    return k
```

```python
from common import *

import os
AHEAD = int(os.environ.get("AHEAD", "4"))
ROT = int(os.environ.get("ROT", "0"))
SC = os.environ.get("SC", " sc1")

def loader(k, SWS, GL, nch, wbytes, idx):
    wq = wbytes // 4; slot = wbytes + 8192
    Lp = k.lab("pre"); Ll = k.lab("ll")
    k(f"""
    s_mul_i32 s26, s23, {wq}
    s_add_u32 s24, s24, s26
    s_lshl_b32 s27, s23, 11
    s_add_u32 s27, s27, {wbytes}
    s_mul_i32 s31, s30, {wbytes}
    s_add_u32 s24, s24, s31
    s_lshl_b32 s31, s30, 11
    s_add_u32 s25, s25, s31
    s_mov_b32 s28, 0
    s_mov_b32 s29, 0
    s_waitcnt lgkmcnt(0)
    s_branch {Lp}
    {Ll}:
    s_waitcnt vmcnt({5*(AHEAD-1)})
    s_barrier
    {Lp}:
    s_add_u32 m0, s28, s27
    s_add_u32 s29, s29, 1
    buffer_load_dwordx4 v{GL}, s[{SWS}:{SWS+3}], s25 offen lds
    buffer_load_dwordx4 v{GL}, s[{SWS}:{SWS+3}], s25 offen offset:1024 lds
    s_add_u32 m0, s28, s26
    s_add_u32 s30, s30, 1
    buffer_load_dwordx4 v{GL}, s[{SWS}:{SWS+3}], s24 offen lds
    buffer_load_dwordx4 v{GL}, s[{SWS}:{SWS+3}], s24 offen offset:1024 lds
    """)
    if wq < 3072: k("s_mov_b32 exec_hi, 0")
    k(f"buffer_load_dwordx4 v{GL}, s[{SWS}:{SWS+3}], s24 offen offset:2048 lds")
    if wq < 3072: k("s_mov_b32 exec_hi, -1")
    k(f"""
    s_cmp_eq_u32 s30, {nch}
    s_cselect_b32 s31, {-(nch-1)}, 1
    s_cmov_b32 s30, 0
    s_mul_i32 s32, s31, {wbytes}
    s_lshl_b32 s31, s31, 11
    s_add_u32 s24, s24, s32
    s_add_u32 s25, s25, s31
    s_add_u32 s28, s28, {slot}
    s_cmp_eq_u32 s28, {8*slot}
    s_cmov_b32 s28, 0
    s_cmp_lt_u32 s29, {AHEAD}
    s_cbranch_scc1 {Lp} ; @seq={"T"*(AHEAD-1)}N
    s_cmp_lt_u32 s29, {nch}
    s_cbranch_scc1 {Ll} ; @seq=TTN
    """)
    for i in range(AHEAD):
        k(f"s_waitcnt vmcnt({5*(AHEAD-1-i)})")
        k("s_barrier")
    k("s_barrier")
    k.end(SWS, idx)

def ringloop(k, nch, nt, wbytes, LA, LB, A, B, mfma):
    slot = wbytes + 8192
    L = k.lab("loop")
    k("s_mov_b32 s27, 0")
    k.stamp(1)
    k("s_barrier")
    k.stamp(2)
    k(f"ds_read_b128 {vr(B[0],4)}, v{LB}")
    for j in range(nt): k(f"ds_read_b128 {vr(A+4*j,4)}, v{LA} offset:{j*1024}")
    k(f"{L}:")
    for s in range(2):
        if s == 1:
            k(f"""
            s_add_u32 s27, s27, 1
            s_and_b32 s25, s27, 7
            s_mov_b32 s25, {-7*slot}
            s_cmov_b32 s25, {slot}
            v_add_u32 v{LA}, s25, v{LA}
            v_add_u32 v{LB}, s25, v{LB}
            s_cmp_lt_u32 s27, {nch}
            s_barrier
            """)
        k(f"ds_read_b128 {vr(B[1-s],4)}, v{LB} offset:{(1-s)*1024}")
        for j in range(nt):
            k(f"s_waitcnt lgkmcnt({nt})")
            mfma(j, A + 4 * j, B[s])
            k(f"ds_read_b128 {vr(A+4*j,4)}, v{LA} offset:{(1-s)*nt*1024 + j*1024}")
    k(f"s_cbranch_scc1 {L}")
    k.stamp(6)
    k("s_waitcnt lgkmcnt(0)")

def gemm16(name, nks, woff, aoff, first):
    nch = nks // 2
    k = Kern(name, 256, 512, 8 * 18432)
    SWS, SRM = 12, 16
    idx = 2 if first else 4
    L_end = k.lab("end"); L_ld = k.lab("ld")
    a = Alloc(8)
    GL = a(); LA = a(); LB = a(); RM = a(); RM2 = a(); FM = a(); FM2 = a()
    RES = a(10, 2); ACC = a(20, 4); A = a(20, 4); B = [a(4, 4), a(4, 4)]
    k(f"""
    s_cmp_ge_u32 s2, 256
    s_cbranch_scc1 {L_end}
    """)
    k.stamp(0)
    load_srds(k, [("ws", SWS), ("x" if first else "out", SRM)])
    k(f"""
    v_lshrrev_b32 v1, 6, v0
    v_and_b32 v2, 63, v0
    v_readfirstlane_b32 s22, v1        ; wave
    s_bfe_u32 s20, s2, 0x20001         ; x>>1
    s_lshl_b32 s20, s20, 3
    s_bfe_u32 s30, s2, 0x30003
    s_add_u32 s20, s20, s30            ; rt
    s_and_b32 s21, s2, 1
    s_lshl_b32 s21, s21, 2
    s_lshr_b32 s31, s2, 6
    s_add_u32 s21, s21, s31            ; ct
    v_lshlrev_b32 v{GL}, 4, v2
    s_and_b32 s23, s22, 3
    s_lshl_b32 s20, s20, 2
    s_add_u32 s20, s20, s23            ; tile16
    s_cmp_ge_u32 s22, 4
    s_cbranch_scc1 {L_ld}
    v_and_b32 v3, 15, v2               ; n
    v_lshrrev_b32 v4, 4, v2            ; g
    v_mul_u32_u24 v{RM2}, 1280, v3
    v_lshl_add_u32 v{RM}, v4, 4, v{RM2}
    v_lshl_add_u32 v{RM2}, v4, 3, v{RM2}
    v_lshlrev_b32 v{FM2}, 4, v3
    v_lshl_add_u32 v{FM}, v4, 9, v{FM2}
    v_lshrrev_b32 v1, 1, v4
    v_lshl_add_u32 v{FM2}, v1, 9, v{FM2}
    v_and_b32 v1, 1, v4
    v_lshl_add_u32 v{FM2}, v1, 3, v{FM2}
    v_add_u32 v{FM2}, 4096, v{FM2}
    s_mul_i32 s26, s20, {16*1280}
    s_mul_i32 s28, s21, 160
    s_add_u32 s26, s26, s28
    s_lshr_b32 s28, s20, 1
    s_mul_i32 s28, s28, 40960
    s_and_b32 s29, s20, 1
    s_lshl_b32 s29, s29, 8
    s_add_u32 s28, s28, s29
    s_mul_i32 s29, s21, 5120
    s_add_u32 s28, s28, s29
    s_add_u32 s28, s28, {HF_OFF}
    s_waitcnt lgkmcnt(0)
    """)
    def rw(op, rm):
        sc = SC if op == "store" and first else ""
        if rm:
            k(f"buffer_{op}_dwordx4 v[{RES}:{RES+3}], v{RM}, s[{SRM}:{SRM+3}], s26 offen{sc}")
            k(f"buffer_{op}_dwordx4 v[{RES+4}:{RES+7}], v{RM}, s[{SRM}:{SRM+3}], s26 offen offset:64{sc}")
            k(f"buffer_{op}_dwordx2 v[{RES+8}:{RES+9}], v{RM2}, s[{SRM}:{SRM+3}], s26 offen offset:128{sc}")
        else:
            k(f"buffer_{op}_dwordx4 v[{RES}:{RES+3}], v{FM}, s[{SWS}:{SWS+3}], s28 offen{sc}")
            k(f"buffer_{op}_dwordx4 v[{RES+4}:{RES+7}], v{FM}, s[{SWS}:{SWS+3}], s28 offen offset:2048{sc}")
            k(f"buffer_{op}_dwordx2 v[{RES+8}:{RES+9}], v{FM2}, s[{SWS}:{SWS+3}], s28 offen{sc}")
    rw("load", first)
    k(f"""
    v_mov_b32 v{LA}, v{GL}
    s_lshl_b32 s25, s23, 11
    s_add_u32 s25, s25, 10240
    v_add_u32 v{LB}, s25, v{GL}
    s_waitcnt vmcnt(0)
    """)
    for i in range(10):
        k(f"v_lshlrev_b32 v{ACC+2*i}, 16, v{RES+i}")
        k(f"v_and_b32 v{ACC+2*i+1}, 0xffff0000, v{RES+i}")
    ringloop(k, nch, 5, 10240, LA, LB, A, B,
             lambda j, ra, rb: k(f"v_mfma_f32_16x16x32_bf16 {vr(ACC+4*j,4)}, {vr(ra,4)}, {vr(rb,4)}, {vr(ACC+4*j,4)}"))
    for i in range(10):
        k(f"v_cvt_pk_bf16_f32 v{RES+i}, v{ACC+2*i}, v{ACC+2*i+1}")
    rw("store", not first)
    if first:
        k(f"""
        v_mov_b32 v5, 0x3f803f80
        v_mov_b32 v6, 0
        v_mov_b32 v7, 0
        """)
        for i in range(10):
            k(f"v_dot2_f32_bf16 v6, v{RES+i}, v5, v6")
            k(f"v_dot2_f32_bf16 v7, v{RES+i}, v{RES+i}, v7")
        k(f"""
        s_lshl_b32 s29, s21, 14
        s_lshl_b32 s20, s20, 7
        s_add_u32 s29, s29, s20
        s_add_u32 s29, s29, {ST_OFF}
        v_lshrrev_b32 v1, 5, v2
        v_lshlrev_b32 v1, 2, v1
        v_lshl_add_u32 v1, v3, 3, v1
        v_permlane32_swap_b32 v6, v7
        v_add_f32 v6, v6, v7
        v_mov_b32 v7, v6
        v_permlane16_swap_b32 v6, v7
        v_add_f32 v6, v6, v7
        buffer_store_dword v6, v1, s[{SWS}:{SWS+3}], s29 offen
        """)
    k.end(SWS, idx)
    k(f"""
    {L_ld}:
    s_mul_i32 s24, s21, {nks*5120}
    s_add_u32 s24, s24, {woff}
    s_mul_i32 s25, s20, {nks*1024}
    s_add_u32 s25, s25, {aoff}
    """)
    rot(k, nch)
    loader(k, SWS, GL, nch, 10240, idx)
    k(f"{L_end}:")
    k("s_endpgm")
    return k

def rot(k, nch):
    if ROT: k(f"s_lshl_b32 s31, s31, 1\ns_add_u32 s30, s30, s31\ns_and_b32 s30, s30, 7\ns_mul_i32 s30, s30, {nch}\ns_lshr_b32 s30, s30, 3")
    else: k("s_mov_b32 s30, 0")

def build_k4():
    k = Kern("ffn1_kernel", 256, 512, 163840)
    SWS = 12
    L_end = k.lab("end"); L_ld = k.lab("ld")
    a = Alloc(8)
    GL = a(); LA = a(); LB = a()
    ST = a(8, 2); CSF = a(12, 2); A = a(24, 4); B = [a(4, 4), a(4, 4)]; ACC = a(96, 4)
    k(f"""
    s_cmp_ge_u32 s2, 256
    s_cbranch_scc1 {L_end}
    """)
    k.stamp(0)
    load_srds(k, [("ws", SWS)])
    k(f"""
    v_lshrrev_b32 v1, 6, v0
    v_and_b32 v2, 63, v0
    v_readfirstlane_b32 s22, v1        ; wave
    s_and_b32 s20, s2, 1
    s_lshl_b32 s20, s20, 3
    s_bfe_u32 s30, s2, 0x30003
    s_add_u32 s20, s20, s30
    s_bfe_u32 s21, s2, 0x20001
    s_lshl_b32 s21, s21, 2
    s_lshr_b32 s31, s2, 6
    s_add_u32 s21, s21, s31            ; ct
    v_lshlrev_b32 v{GL}, 4, v2
    s_and_b32 s23, s22, 3
    s_lshl_b32 s20, s20, 2
    s_add_u32 s20, s20, s23            ; tile32
    s_mul_i32 s24, s21, {41*6144}
    s_add_u32 s24, s24, {W13F_OFF}
    s_cmp_ge_u32 s22, 4
    s_cbranch_scc1 {L_ld}
    v_and_b32 v3, 31, v2               ; m
    v_lshrrev_b32 v4, 5, v2            ; hf
    v_lshlrev_b32 v1, 16, v4
    v_lshl_add_u32 v1, v3, 3, v1
    s_lshl_b32 s25, s20, 8
    s_add_u32 s25, s25, {ST_OFF}
    s_add_u32 s26, s25, 16384
    s_add_u32 s27, s25, 32768
    s_add_u32 s28, s25, 49152
    s_add_u32 s29, s24, 3072
    s_waitcnt lgkmcnt(0)
    """)
    for i in range(4): k(f"buffer_load_dwordx2 v[{ST+2*i}:{ST+2*i+1}], v1, s[{SWS}:{SWS+3}], s{25+i} offen")
    for j in range(6): k(f"buffer_load_dwordx2 v[{CSF+2*j}:{CSF+2*j+1}], v{GL}, s[{SWS}:{SWS+3}], s{24 if j < 3 else 29} offen offset:{(j%3)*1024}")
    k(f"""
    v_mov_b32 v{LA}, v{GL}
    s_lshl_b32 s25, s23, 11
    s_add_u32 s25, s25, 12288
    v_add_u32 v{LB}, s25, v{GL}
    v_lshrrev_b32 v1, 4, v3
    v_mul_u32_u24 v1, {192*256}, v1
    v_and_b32 v5, 15, v3
    v_lshl_add_u32 v1, v5, 4, v1
    v_lshl_add_u32 v3, v4, 8, v1
    s_mul_i32 s26, s20, {2*192*256}
    s_mul_i32 s27, s21, {12*256}
    s_add_u32 s26, s26, s27
    s_add_u32 s26, s26, {HH_OFF}
    s_waitcnt vmcnt(6)
    v_pk_add_f32 v[{ST}:{ST+1}], v[{ST}:{ST+1}], v[{ST+2}:{ST+3}]
    v_pk_add_f32 v[{ST+4}:{ST+5}], v[{ST+4}:{ST+5}], v[{ST+6}:{ST+7}]
    v_pk_add_f32 v[{ST}:{ST+1}], v[{ST}:{ST+1}], v[{ST+4}:{ST+5}]
    v_mov_b32 v{ST+2}, v{ST}
    v_mov_b32 v{ST+3}, v{ST+1}
    v_permlane32_swap_b32 v{ST}, v{ST+2}
    v_permlane32_swap_b32 v{ST+1}, v{ST+3}
    v_pk_add_f32 v[{ST}:{ST+1}], v[{ST}:{ST+1}], v[{ST+2}:{ST+3}]
    v_mul_f32 v{ST}, {f32(-1.0/640)}, v{ST}          ; -mean
    v_mul_f32 v{ST+1}, {f32(1.0/640)}, v{ST+1}
    v_fma_f32 v{ST+1}, -v{ST}, v{ST}, v{ST+1}
    v_max_f32 v{ST+1}, 0, v{ST+1}
    v_add_f32 v{ST+1}, {f32(1e-5)}, v{ST+1}
    v_rsq_f32 v{ST+4}, v{ST+1}
    v_cvt_pk_bf16_f32 v{ST+2}, v{ST}, v{ST}
    v_and_b32 v{ST+3}, 0xffff0000, v{ST+2}
    v_sub_f32 v{ST+3}, v{ST}, v{ST+3}
    v_cvt_pk_bf16_f32 v{ST+2}, v{ST}, v{ST+3}
    v_mov_b32 v{ST+3}, v{ST+2}
    v_mul_f32 v{ST+6}, v{ST+4}, v{ST+4}              ; rstd^2
    v_mul_f32 v{ST+4}, {f32(-LOG2E)}, v{ST+4}        ; -log2e*rstd
    s_waitcnt vmcnt(0)
    """)
    for j in range(6): k(f"v_mfma_f32_32x32x8_bf16 {vr(ACC+16*j,16)}, {vr(CSF+2*j,2)}, {vr(ST+2,2)}, 0")
    ringloop(k, 20, 6, 12288, LA, LB, A, B,
             lambda j, ra, rb: k(f"v_mfma_f32_32x32x16_bf16 {vr(ACC+16*j,16)}, {vr(ra,4)}, {vr(rb,4)}, {vr(ACC+16*j,16)}"))
    T = A
    for p in range(3):
        G = ACC + 32 * p; U = G + 16
        for h in range(2):
            t = T + 8 * h; g = G + 8 * h; u = U + 8 * h
            for i in range(0, 8, 2): k(f"v_pk_mul_f32 v[{t+i}:{t+i+1}], v[{g+i}:{g+i+1}], v[{ST+4}:{ST+5}] op_sel_hi:[1,0]")
            for i in range(8): k(f"v_exp_f32 v{t+i}, v{t+i}")
            for i in range(0, 8, 2): k(f"v_pk_mul_f32 v[{g+i}:{g+i+1}], v[{g+i}:{g+i+1}], v[{u+i}:{u+i+1}]")
            for i in range(0, 8, 2): k(f"v_pk_add_f32 v[{t+i}:{t+i+1}], v[{t+i}:{t+i+1}], 1.0 op_sel_hi:[1,0]")
            for i in range(8): k(f"v_rcp_f32 v{t+i}, v{t+i}")
            for i in range(0, 8, 2): k(f"v_pk_mul_f32 v[{g+i}:{g+i+1}], v[{g+i}:{g+i+1}], v[{ST+6}:{ST+7}] op_sel_hi:[1,0]")
            for i in range(0, 8, 2): k(f"v_pk_mul_f32 v[{g+i}:{g+i+1}], v[{g+i}:{g+i+1}], v[{t+i}:{t+i+1}]")
            for i in range(4): k(f"v_cvt_pk_bf16_f32 v{u+i}, v{g+2*i}, v{g+2*i+1}")
            k(f"buffer_store_dwordx4 {vr(u,4)}, v3, s[{SWS}:{SWS+3}], s26 offen offset:{(4*p+2*h)*256}{SC}")
    k.end(SWS, 3)
    k(f"""
    {L_ld}:
    s_add_u32 s24, s24, 6144
    s_mul_i32 s25, s20, 40960
    s_add_u32 s25, s25, {HF_OFF}
    """)
    rot(k, 20)
    loader(k, SWS, GL, 20, 12288, 3)
    k(f"{L_end}:")
    k("s_endpgm")
    return k

def build_k345():
    return [gemm16("oproj_kernel", 20, WOF_OFF, OF_OFF, True), build_k4(), gemm16("ffn2_kernel", 48, W2F_OFF, HH_OFF, False)]
```

```python
from asmlib import *
T, D, H, F = 2048, 640, 32, 1536
TS = 2560
HS = 64 * TS
KV_OFF = 0
Q_OFF = 0x600000
OF_OFF = 0xC00000
HF_OFF = 0x1000000
ST_OFF = 0x1300000
HH_OFF = 0x1400000
WOF_OFF = 0x1C00000
W2F_OFF = 0x1D00000
W13F_OFF = 0x2000000
WS_SIZE = 0x2800000
ARG = dict(x=0, wqkv=8, wo=16, w1=32, w3=40, w2=48, out=56, dbg=64, ws=72)
SIZE = dict(x=T*D*2, wqkv=D*3*D*2, wo=D*D*2, w1=D*F*2, w3=D*F*2, w2=F*D*2, out=T*D*2, dbg=256, ws=WS_SIZE)
LOG2E = 1.4426950408889634
import struct
def f32(x): return "0x%08x" % struct.unpack("<I", struct.pack("<f", x))[0]

def load_srds(k, spec):
    for name, s in spec:
        k(f"s_load_dwordx2 s[{s}:{s+1}], s[0:1], {ARG[name]}")
    for name, s in spec:
        k(f"s_mov_b32 s{s+2}, {SIZE[name]}")
        k(f"s_mov_b32 s{s+3}, 0x00020000")

def code_prefetch(k, swave, dst):
    if os.environ.get("NOCP"): return
    L = k.lab("pc")
    k(f"""
    s_getpc_b64 s[40:41]
    {L}:
    s_lshl_b32 s42, s{swave}, 13
    v_lshl_add_u32 v6, v2, 7, s42
    v_min_u32 v6, code_end - {L} - 4, v6
    global_load_dword v{dst}, v6, s[40:41]
    """)
```

```python
from common import *

def build_k1():
    k = Kern("qkv_kernel", 240, 512, 4 * 32768 + 2048)
    SX, SW, SWS = 12, 16, 20
    STAT = 4 * 32768
    L_end = k.lab("end"); L_help = k.lab("help")
    k(f"""
    s_cmp_ge_u32 s2, 240
    s_cbranch_scc1 {L_end}
    """)
    k.stamp(0)
    load_srds(k, [("x", SX), ("wqkv", SW), ("ws", SWS)])
    k(f"""
    s_and_b32 s27, s2, 7
    s_lshr_b32 s25, s2, 3        ; j = 0..29
    s_lshl_b32 s24, s27, 1
    s_cmp_ge_u32 s25, 15
    s_cselect_b32 s27, 15, 0
    s_cselect_b32 s28, 1, 0
    s_sub_u32 s25, s25, s27      ; ct
    s_add_u32 s24, s24, s28      ; rt
    v_lshrrev_b32 v1, 6, v0
    v_and_b32 v2, 63, v0         ; lane
    v_readfirstlane_b32 s26, v1  ; wave
    v_and_b32 v3, 31, v2         ; m
    v_lshrrev_b32 v4, 5, v2      ; hf
    v_bfe_u32 v5, v3, 1, 3
    v_xor_b32 v5, v5, v4
    v_lshlrev_b32 v5, 4, v5
    v_lshl_add_u32 v5, v3, 7, v5
    s_cmp_ge_u32 s26, 4
    s_cbranch_scc1 {L_help}
    """)
    code_prefetch(k, 26, 144)
    a = Alloc(8)
    XA = a(4); WA = a(2); SEL = a(4); CS = a(4); OFF = a(8)
    FB = [a(16, 4), a(16, 4)]
    ACC = a(64, 4)
    T0 = FB[0]
    k(f"""
    s_lshr_b32 s27, s26, 1       ; wr
    s_and_b32 s28, s26, 1        ; wc
    s_lshl_b32 s29, s27, 13
    v_add_u32 v{XA}, s29, v5
    v_xor_b32 v{XA+1}, 32, v{XA}
    v_xor_b32 v{XA+2}, 64, v{XA}
    v_xor_b32 v{XA+3}, 0x60, v{XA}
    v_bfe_u32 v6, v2, 2, 2       ; r
    v_lshl_add_u32 v7, v4, 3, v6 ; row
    v_lshlrev_b32 v7, 8, v7
    v_bfe_u32 v1, v2, 4, 1
    v_lshl_add_u32 v7, v1, 5, v7
    v_and_b32 v1, 3, v2
    v_lshl_add_u32 v7, v1, 3, v7
    v_add_u32 v7, 16384, v7
    s_lshl_b32 s30, s28, 1
    s_add_u32 s30, s30, s27      ; n0
    s_xor_b32 s31, s30, 1        ; n1
    v_xor_b32 v1, s30, v6
    v_lshl_add_u32 v{WA}, v1, 6, v7
    v_xor_b32 v{WA+1}, 64, v{WA}
    ; selector
    v_lshrrev_b32 v1, 2, v2
    v_lshrrev_b32 v6, 4, v2
    v_xor_b32 v1, v1, v6
    v_and_b32 v1, 1, v1
    v_add_u32 v1, -1, v1
    v_and_b32 v{SEL}, 0x3f803f80, v1
    v_mov_b32 v{SEL+1}, v{SEL}
    v_mov_b32 v{SEL+2}, v{SEL}
    v_mov_b32 v{SEL+3}, v{SEL}
    """)
    for i in range(4): k(f"v_mov_b32 v{CS+i}, 0")
    for i in range(64): k(f"v_mov_b32 v{ACC+i}, 0")
    L_V = k.lab("v")
    k(f"""
    s_lshl_b32 s32, s24, 2
    s_lshl_b32 s33, s27, 1
    s_add_u32 s32, s32, s33
    s_mul_i32 s32, s32, {TS}
    s_cmp_ge_u32 s25, 10
    s_cbranch_scc1 {L_V}
    """)
    def reads(buf, off, s):
        b = FB[buf]
        k(f"ds_read_b64_tr_b16 v[{b+8}:{b+9}], v{WA} offset:{off + s*4096}")
        k(f"ds_read_b64_tr_b16 v[{b+10}:{b+11}], v{WA} offset:{off + s*4096 + 1024}")
        k(f"ds_read_b128 v[{b}:{b+3}], v{XA+s} offset:{off}")
        k(f"ds_read_b128 v[{b+4}:{b+7}], v{XA+s} offset:{off + 4096}")
        k(f"ds_read_b64_tr_b16 v[{b+12}:{b+13}], v{WA+1} offset:{off + s*4096}")
        k(f"ds_read_b64_tr_b16 v[{b+14}:{b+15}], v{WA+1} offset:{off + s*4096 + 1024}")
    def acc(ts, ns): return ACC + (ts * 2 + ns) * 16
    def mfmas(buf, isv):
        b = FB[buf]
        k(f"v_mfma_f32_16x16x32_bf16 v[{CS}:{CS+3}], v[{SEL}:{SEL+3}], v[{b+8}:{b+11}], v[{CS}:{CS+3}]")
        for ns in range(2):
            for ts in range(2):
                x = vr(b + 4 * ts, 4); w = vr(b + 8 + 4 * ns, 4); c = vr(acc(ts, ns), 16)
                k(f"v_mfma_f32_32x32x16_bf16 {c}, {x if isv else w}, {w if isv else x}, {c}")
    def mainloop(isv):
        L = k.lab("loop")
        k("s_mov_b32 s34, 5")
        k("s_waitcnt lgkmcnt(0)")
        k.stamp(1)
        k("s_barrier")
        k.stamp(2)
        reads(0, 0, 0)
        k(f"{L}:")
        for half in range(2):
            for s in range(4):
                if s < 3:
                    reads((s + 1) & 1, half * 32768, s + 1)
                    k("s_waitcnt lgkmcnt(6)")
                else:
                    k("s_waitcnt lgkmcnt(0)")
                    k("s_barrier")
                    if half == 1:
                        for r in list(range(XA, XA + 4)) + [WA, WA + 1]: k(f"v_xor_b32 v{r}, 0x10000, v{r}")
                    reads(0, (1 - half) * 32768, 0)
                mfmas(s & 1, isv)
        k(f"""
        s_sub_u32 s34, s34, 1
        s_cmp_lg_u32 s34, 0
        s_cbranch_scc1 {L}
        """)
        k.stamp(3)
        k(f"""
        s_waitcnt lgkmcnt(0)
        v_cvt_pk_bf16_f32 v{T0}, v{CS}, v{CS}
        v_and_b32 v{T0+2}, 0xffff0000, v{T0}
        v_sub_f32 v{T0+2}, v{CS}, v{T0+2}
        v_cvt_pk_bf16_f32 v{T0+1}, v{T0+2}, v{T0+2}
        s_lshl_b32 s35, s30, 8
        v_lshl_add_u32 v1, v3, 3, s35
        ds_write_b64 v1, v[{T0}:{T0+1}] offset:0
        """.replace("ds_write_b64 v1,", f"v_add_u32 v1, {STAT+1024}, v1\nds_write_b64 v1,"))
        k(f"""
        v_xor_b32 v6, 256, v1
        s_lshl_b32 s35, s27, 8
        v_lshl_add_u32 v7, v3, 2, s35
        v_add_u32 v7, {STAT}, v7
        v_add_u32 v4, -1, v4          ; hf==0 ? ~0 : 0
        s_waitcnt lgkmcnt(0)
        s_barrier
        ds_read_b64 v[{T0+2}:{T0+3}], v6
        ds_read_b32 v{T0+4}, v7
        ds_read_b32 v{T0+6}, v7 offset:128
        """)
    def ext_mfma(isv, nwait):
        k(f"""
        v_and_b32 v{T0}, v{T0}, v4
        v_and_b32 v{T0+1}, v{T0+1}, v4
        s_waitcnt lgkmcnt({nwait})
        v_and_b32 v{T0+2}, v{T0+2}, v4
        v_and_b32 v{T0+3}, v{T0+3}, v4
        v_mov_b32 v{T0+5}, v{T0+4}
        v_mov_b32 v{T0+7}, v{T0+6}
        """)
        for ns in range(2):
            for ts in range(2):
                x = vr(T0 + 4 + 2 * ts, 2); w = vr(T0 + 2 * ns, 2); c = vr(acc(ts, ns), 16)
                k(f"v_mfma_f32_32x32x8_bf16 {c}, {x if isv else w}, {w if isv else x}, {c}")
    k(f"""
    s_cmp_ge_u32 s25, 5
    s_cselect_b32 s33, 5, 0
    s_cselect_b32 s36, 0, {Q_OFF}
    s_cselect_b32 s37, 1.0, {f32(LOG2E * 20 ** -0.5)}
    s_sub_u32 s33, s25, s33
    s_add_u32 s32, s32, s36
    s_lshl_b32 s33, s33, 5       ; (ct%5)*32
    """)
    for ns in range(2):
        k(f"s_lshl_b32 s35, s{30+ns}, 3")
        k(f"s_add_u32 s35, s35, s33")
        for rq in range(4):
            o = OFF + ns * 4 + rq
            k(f"""
            v_add3_u32 v1, v4, s35, {2*rq}     ; g4
            v_mul_u32_u24 v6, 205, v1
            v_lshrrev_b32 v6, 10, v6           ; head
            v_mul_u32_u24 v7, 5, v6
            v_sub_u32 v1, v1, v7               ; p
            v_mul_u32_u24 v6, {HS}, v6
            v_and_b32 v7, 1, v1
            v_lshl_add_u32 v6, v7, 9, v6
            v_bfe_u32 v7, v1, 1, 1
            v_lshl_add_u32 v6, v7, 3, v6
            v_lshrrev_b32 v1, 2, v1            ; p==4
            v_lshl_add_u32 v6, v1, 10, v6
            v_sub_u32 v1, 4, v1
            v_lshlrev_b32 v1, v1, v3
            v_add_u32 v{o}, v6, v1
            """)
    mainloop(False)
    RS = T0 + 8
    k(f"ds_read_b32 v{RS}, v7 offset:512")
    k(f"ds_read_b32 v{RS+2}, v7 offset:640")
    ext_mfma(False, 2)
    k("s_waitcnt lgkmcnt(0)")
    k(f"v_mul_f32 v{RS}, s37, v{RS}")
    k(f"v_mul_f32 v{RS+2}, s37, v{RS+2}")
    for ns in range(2):
        for ts in range(2):
            c = acc(ts, ns)
            for i in range(0, 16, 2):
                k(f"v_pk_mul_f32 v[{c+i}:{c+i+1}], v[{c+i}:{c+i+1}], v[{RS+2*ts}:{RS+2*ts+1}] op_sel_hi:[1,0]")
            for i in range(8):
                k(f"v_cvt_pk_bf16_f32 v{c+i}, v{c+2*i}, v{c+2*i+1}")
            for rq in range(4):
                k(f"buffer_store_dwordx2 v[{c+2*rq}:{c+2*rq+1}], v{OFF+ns*4+rq}, s[{SWS}:{SWS+3}], s32 offen offset:{ts*TS}")
    k.end(SWS, 0)
    k(f"{L_V}:")
    k(f"""
    s_sub_u32 s33, s25, 10
    s_lshl_b32 s33, s33, 7
    s_add_u32 s32, s32, 1280
    """)
    for ns in range(2):
        k(f"""
        s_lshl_b32 s35, s{30+ns}, 5
        s_add_u32 s35, s35, s33
        v_add_u32 v1, s35, v3
        v_mul_u32_u24 v6, 3277, v1
        v_lshrrev_b32 v6, 16, v6           ; head
        v_mul_u32_u24 v7, 20, v6
        v_sub_u32 v1, v1, v7               ; d
        v_mul_u32_u24 v6, {HS}, v6
        v_lshl_add_u32 v6, v1, 4, v6
        v_mul_u32_u24 v1, 320, v4
        v_add_u32 v{OFF+ns}, v6, v1
        """)
    k(f"v_lshlrev_b32 v{OFF+2}, 4, v4   ; hf*16")
    mainloop(True)
    RV = FB[1]
    RV2 = a(16, 4)
    k(f"s_lshl_b32 s35, s27, 8")
    k(f"s_add_u32 s35, s35, {STAT+512}")
    k(f"v_add_u32 v7, s35, v{OFF+2}")
    for ts in range(2):
        for rq in range(4):
            r = (RV, RV2)[ts] + 4 * rq
            k(f"ds_read_b128 v[{r}:{r+3}], v7 offset:{ts*128 + rq*32}")
    ext_mfma(True, 8)
    k("s_waitcnt lgkmcnt(0)")
    k(f"s_add_u32 s33, s32, {TS}")
    for ns in range(2):
        for ts in range(2):
            c = acc(ts, ns); r = (RV, RV2)[ts]
            for i in range(0, 16, 2):
                k(f"v_pk_mul_f32 v[{c+i}:{c+i+1}], v[{c+i}:{c+i+1}], v[{r+i}:{r+i+1}]")
            for i in range(8):
                k(f"v_cvt_pk_bf16_f32 v{c+i}, v{c+2*i}, v{c+2*i+1}")
            for s in range(2):
                k(f"buffer_store_dwordx4 v[{c+4*s}:{c+4*s+3}], v{OFF+ns}, s[{SWS}:{SWS+3}], s{32+ts} offen offset:{s*640}")
    k.end(SWS, 0)
    k(f"{L_help}:")
    a = Alloc(8)
    XA = a(4); GA = a(4); GB = a(4); S = a(4); FR = a(16, 4); TT = a(4)
    k(f"""
    s_sub_u32 s26, s26, 4        ; w
    s_lshl_b32 s29, s26, 12
    v_add_u32 v{XA}, s29, v5
    v_xor_b32 v{XA+1}, 32, v{XA}
    v_xor_b32 v{XA+2}, 64, v{XA}
    v_xor_b32 v{XA+3}, 0x60, v{XA}
    v_lshrrev_b32 v1, 3, v2
    v_mul_u32_u24 v1, 1280, v1
    v_and_b32 v6, 7, v2
    v_lshrrev_b32 v7, 4, v2
    v_xor_b32 v6, v6, v7
    v_lshl_add_u32 v{GA}, v6, 4, v1
    v_xor_b32 v6, 4, v6
    v_lshl_add_u32 v{GA+1}, v6, 4, v1
    v_add_u32 v{GA+1}, {10240-1024}, v{GA+1}
    v_add_u32 v{GA+2}, {2*(10240-1024)}, v{GA}
    v_add_u32 v{GA+3}, {2*(10240-1024)}, v{GA+1}
    s_lshl_b32 s30, s24, 2
    s_add_u32 s30, s30, s26
    s_mul_i32 s30, s30, {32*1280}     ; A soffset
    v_mul_u32_u24 v1, 3840, v7
    v_lshlrev_b32 v7, 2, v7
    v_and_b32 v6, 15, v2
    v_xor_b32 v6, v6, v7
    v_lshl_add_u32 v{GB}, v6, 4, v1
    v_add_u32 v{GB+1}, {15360-1024}, v{GB}
    v_add_u32 v{GB+2}, {2*(15360-1024)}, v{GB}
    v_add_u32 v{GB+3}, {3*(15360-1024)}, v{GB}
    s_mul_i32 s31, s26, {16*3840}
    s_lshl_b32 s27, s25, 8
    s_add_u32 s31, s31, s27           ; B soffset
    s_mov_b32 s32, s29
    s_waitcnt lgkmcnt(0)
    """)
    def dma(fill=None):
        fill = fill or (lambda i: None)
        k("s_mov_b32 m0, s32")
        for i in range(4):
            k(f"buffer_load_dwordx4 v{GA+i}, s[{SX}:{SX+3}], s30 offen offset:{i*1024} lds"); fill(i)
        k("s_add_u32 s33, s32, 16384")
        k("s_mov_b32 m0, s33")
        k("s_add_u32 s30, s30, 128")
        for i in range(4):
            k(f"buffer_load_dwordx4 v{GB+i}, s[{SW}:{SW+3}], s31 offen offset:{i*1024} lds"); fill(4 + i)
        k(f"s_add_u32 s31, s31, {64*3840}")
        k("s_add_u32 s32, s32, 32768")
        k("s_and_b32 s32, s32, 0x1ffff")
    Lp = k.lab("pre")
    k("s_mov_b32 s34, 3")
    k(f"{Lp}:")
    dma()
    k(f"""
    s_sub_u32 s34, s34, 1
    s_cmp_lg_u32 s34, 0
    s_cbranch_scc1 {Lp}
    """)
    for i in range(4): k(f"v_mov_b32 v{S+i}, 0")
    Lh = k.lab("hloop")
    k("s_waitcnt vmcnt(16)")
    k(f"{Lh}:")
    k("s_barrier")
    for s in range(4): k(f"ds_read_b128 v[{FR+4*s}:{FR+4*s+3}], v{XA+s}")
    k(f"s_cmp_ge_u32 s34, 7")
    k(f"s_cmov_b32 s{SX+2}, 0")
    k(f"s_cmov_b32 s{SW+2}, 0")
    for s in range(4):
        k(f"v_add_u32 v{XA+s}, 0x8000, v{XA+s}")
        k(f"v_and_b32 v{XA+s}, 0x1ffff, v{XA+s}")
    def fill(p):
        for i in (2 * p, 2 * p + 1):
            if i % 4 == 0: k(f"s_waitcnt lgkmcnt({3 - i//4})")
            t = TT + 2 * (i & 1)
            k(f"""
            v_lshlrev_b32 v{t}, 16, v{FR+i}
            v_and_b32 v{t+1}, 0xffff0000, v{FR+i}
            v_add_f32 v{S}, v{S}, v{t}
            v_add_f32 v{S+1}, v{S+1}, v{t+1}
            v_fmac_f32 v{S+2}, v{t}, v{t}
            v_fmac_f32 v{S+3}, v{t+1}, v{t+1}
            """)
    dma(fill)
    k(f"""
    s_add_u32 s34, s34, 1
    s_waitcnt vmcnt(16)
    s_cmp_lt_u32 s34, 10
    s_cbranch_scc1 {Lh}
    s_barrier
    v_add_f32 v{S}, v{S}, v{S+1}
    v_add_f32 v{S+2}, v{S+2}, v{S+3}
    v_mov_b32 v{S+1}, v{S}
    v_mov_b32 v{S+3}, v{S+2}
    v_permlane32_swap_b32 v{S}, v{S+1}
    v_permlane32_swap_b32 v{S+2}, v{S+3}
    v_add_f32 v{S}, v{S}, v{S+1}
    v_add_f32 v{S+2}, v{S+2}, v{S+3}
    v_mul_f32 v{S}, {f32(-1.0/640)}, v{S}          ; -mean
    v_mul_f32 v{S+2}, {f32(1.0/640)}, v{S+2}
    v_fma_f32 v{S+2}, -v{S}, v{S}, v{S+2}          ; var
    v_max_f32 v{S+2}, 0, v{S+2}
    v_add_f32 v{S+2}, {f32(1e-5)}, v{S+2}
    v_rsq_f32 v{S+2}, v{S+2}
    v_cvt_pk_bf16_f32 v{S+1}, v{S}, v{S}
    v_and_b32 v{S+3}, 0xffff0000, v{S+1}
    v_sub_f32 v{S+3}, v{S}, v{S+3}
    v_cvt_pk_bf16_f32 v{S}, v{S}, v{S+3}
    s_lshl_b32 s27, s26, 7
    s_add_u32 s27, s27, {STAT}
    v_lshl_add_u32 v1, v3, 2, s27
    ds_write_b32 v1, v{S}
    ds_write_b32 v1, v{S+2} offset:512
    s_waitcnt lgkmcnt(0)
    s_barrier
    s_waitcnt vmcnt(0)
    """)
    k.end(SWS, 0)
    k(f"{L_end}:")
    k("s_endpgm")
    return k
```

```python
from common import *
PRIO = int(os.environ.get("PRIO", "0"))
OSC = os.environ.get("OSC", "")
RSC = os.environ.get("RSC", " sc1")

def build_k2():
    k = Kern("attn_kernel", 256, 512, 163840)
    SWS, SRC = 12, 16
    L_end = k.lab("end")
    a = Alloc(8)
    QL = [a(4), a(4)]; QH = a(2); AK = a(); AH = a(); AV = a(); GL = a()
    NM = a(32, 4); S = [a(32, 4), a(32, 4)]; P = a(16, 4); O = a(32, 4)
    KL = [a(4), a(4)]; KH = [a(2), a(2)]; V = [a(8), a(8)]
    RP = a(20, 4); RA = a(2); SEL = a(4); CS = a(4)
    k(f"""
    s_cmp_ge_u32 s2, 256
    s_cbranch_scc1 {L_end}
    """)
    k.stamp(0)
    load_srds(k, [("ws", SWS)])
    k(f"""
    s_load_dwordx2 s[20:21], s[0:1], {ARG['wo']}
    s_load_dwordx4 s[24:27], s[0:1], {ARG['w1']}
    s_load_dwordx2 s[22:23], s[0:1], {ARG['w2']}
    v_lshrrev_b32 v1, 6, v0
    v_and_b32 v2, 63, v0           ; lane
    v_readfirstlane_b32 s30, v1    ; wave
    s_and_b32 s28, s2, 7
    s_lshl_b32 s28, s28, 2
    s_lshr_b32 s29, s2, 6
    s_add_u32 s28, s28, s29        ; head
    v_lshlrev_b32 v{GL}, 4, v2
    s_mul_i32 s31, s28, {HS}
    s_lshl_b32 s34, s30, 11
    s_add_u32 s35, s31, s34
    s_mov_b32 m0, s34
    v_and_b32 v3, 31, v2           ; m
    v_lshrrev_b32 v4, 5, v2        ; hf
    s_bfe_u32 s29, s2, 0x30003     ; qb
    s_lshr_b32 s39, s30, 2         ; par
    s_lshl_b32 s32, s29, 2
    s_and_b32 s33, s30, 3
    s_add_u32 s32, s32, s33
    s_lshl_b32 s32, s32, 1
    s_mul_i32 s33, s32, {TS}
    s_add_u32 s33, s33, s31
    s_add_u32 s33, s33, {Q_OFF}
    s_add_u32 s32, s32, s39
    s_mul_i32 s37, s39, {TS}
    s_add_u32 s36, s33, s37
    s_sub_u32 s38, s33, s37
    v_lshlrev_b32 v5, 3, v3
    v_xor_b32 v1, s39, v4
    v_mul_u32_u24 v1, {TS}, v1
    v_add_u32 v1, v1, v5
    s_waitcnt lgkmcnt(0)
    """)
    def dma(b):
        if b: k(f"s_add_u32 m0, s34, {b*16384}"); k("s_add_u32 s35, s35, 16384")
        for i in range(2): k(f"buffer_load_dwordx4 v{GL}, s[{SWS}:{SWS+3}], s35 offen offset:{i*1024} lds")
    dma(0)
    k(f"""
    buffer_load_dwordx4 {vr(QL[0],4)}, v{GL}, s[{SWS}:{SWS+3}], s36 offen
    buffer_load_dwordx4 {vr(QL[1],4)}, v{GL}, s[{SWS}:{SWS+3}], s38 offen offset:{TS}
    buffer_load_dwordx2 {vr(QH,2)}, v1, s[{SWS}:{SWS+3}], s33 offen offset:1024
    v_add_u32 v{AK}, s37, v{GL}
    v_add_u32 v5, 1024, v5
    v_add_u32 v{AH}, s37, v5
    v_mul_u32_u24 v{AV}, 320, v4
    v_lshl_add_u32 v{AV}, v3, 4, v{AV}
    s_add_u32 s37, s37, 1280
    v_add_u32 v{AV}, s37, v{AV}
    s_mov_b32 s50, 0x000fffff
    s_mov_b32 s51, 0x000fffff
    """)
    for i in range(32): k(f"v_mov_b32 v{O+i}, 0")
    dma(1)
    k("v_cmp_eq_u32 vcc, 20, v3"); k("v_mov_b32 v6, 0x3f803f80")
    for i in range(16): k(f"v_cndmask_b32 v{V[0]+i}, 0, v6, vcc")
    dma(2)
    def rdK(b, off):
        k(f"ds_read_b128 {vr(KL[b],4)}, v{AK} offset:{off}")
        k(f"ds_read_b64 {vr(KH[b],2)}, v{AH} offset:{off}")
    def rdV(b, off):
        k("s_mov_b64 exec, s[50:51]")
        k(f"ds_read_b128 {vr(V[b],4)}, v{AV} offset:{off}")
        k(f"ds_read_b128 {vr(V[b]+4,4)}, v{AV} offset:{off+640}")
        k("s_mov_b64 exec, -1")
    def qkh(b, kh, c): k(f"v_mfma_f32_32x32x4_2b_bf16 {vr(S[b],32)}, {vr(kh,2)}, {vr(QH,2)}, {c}")
    def qkl(b, kl, q): k(f"v_mfma_f32_32x32x16_bf16 {vr(S[b]+16*q,16)}, {vr(kl,4)}, {vr(QL[q],4)}, {vr(S[b]+16*q,16)}")
    def pv(b, q, h): k(f"v_mfma_f32_32x32x16_bf16 {vr(O+16*q,16)}, {vr(V[b]+4*h,4)}, {vr(P+8*q+4*h,4)}, {vr(O+16*q,16)}")
    def exps(b, lo, hi):
        for i in range(lo, hi): k(f"v_exp_f32 v{S[b]+i}, v{S[b]+i}")
    def cvts(b, lo, hi):
        for i in range(lo, hi): k(f"v_cvt_pk_bf16_f32 v{P+i}, v{S[b]+2*i}, v{S[b]+2*i+1}")
    def maxred(s, dst, init):
        if init: k(f"v_max3_f32 v{dst}, v{s}, v{s+1}, v{s+2}"); k(f"v_max_f32 v{dst}, v{dst}, v{s+3}"); st = 4
        else: st = 0
        for i in range(st, 16, 2): k(f"v_max3_f32 v{dst}, v{dst}, v{s+i}, v{s+i+1}")
    k("s_waitcnt vmcnt(4)")
    k("s_barrier")
    k.stamp(2)
    k(f"ds_read_b64 {vr(P+4,2)}, v5")
    k(f"ds_read_b128 {vr(P,4)}, v{GL}")
    rdK(0, 0); rdK(1, 2*TS); rdV(0, 0)
    k("s_waitcnt lgkmcnt(6)")
    k(f"v_mfma_f32_32x32x16_bf16 {vr(S[1],16)}, {vr(P,4)}, {vr(QL[0],4)}, 0")
    k(f"v_mfma_f32_32x32x16_bf16 {vr(S[1]+16,16)}, {vr(P,4)}, {vr(QL[1],4)}, 0")
    qkh(1, P + 4, vr(S[1], 32))
    maxred(S[1], 6, True); maxred(S[1] + 16, 7, True)
    k(f"""
    v_permlane32_swap_b32 v6, v7
    v_max_f32 v6, v6, v7
    v_mov_b32 v7, v6
    v_permlane32_swap_b32 v6, v7
    """)
    for i in range(32): k(f"v_sub_f32 v{NM+i}, 0, v{6 + i//16}")
    k("s_waitcnt lgkmcnt(4)")
    k(f"v_mfma_f32_32x32x16_bf16 {vr(S[0],16)}, {vr(KL[0],4)}, {vr(QL[0],4)}, {vr(NM,16)}")
    k(f"v_mfma_f32_32x32x16_bf16 {vr(S[0]+16,16)}, {vr(KL[0],4)}, {vr(QL[1],4)}, {vr(NM+16,16)}")
    qkh(0, KH[0], vr(S[0], 32))
    L_loop = k.lab("loop"); L_epi = k.lab("epi"); L_slow = k.lab("slow")
    L_r1 = k.lab("r1"); L_r1r = k.lab("r1r"); L_hk = k.lab("hk"); L_hkr = k.lab("hkr")
    k("s_mov_b32 s36, 0            ; round")
    k("s_mov_b32 s38, 0")
    def iteration(j, first=False, top=None, mid=None, late=None):
        c = j & 1; n = 1 - c
        exps(c, 0, 2)
        if not first: pv(n, 1, 1)
        if top: top()
        k("s_waitcnt lgkmcnt(0)")
        if j == 6:
            k(f"v_add_u32 v{AK}, {16*TS}, v{AK}"); k(f"v_add_u32 v{AH}, {16*TS}, v{AH}")
        if j == 7: k(f"v_add_u32 v{AV}, {16*TS}, v{AV}")
        rdV(n, ((j + 1) & 7) * 2 * TS)
        rdK(c, ((j + 2) & 7) * 2 * TS)
        qkh(n, KH[n], vr(NM, 32))
        exps(c, 2, 8); cvts(c, 0, 4); exps(c, 8, 10)
        pv(c, 0, 0)
        exps(c, 10, 16); cvts(c, 4, 5)
        qkl(n, KL[n], 0)
        cvts(c, 5, 8); exps(c, 16, 19)
        pv(c, 0, 1)
        if mid: mid()
        exps(c, 19, 23)
        qkl(n, KL[n], 1)
        exps(c, 23, 24); cvts(c, 8, 12); exps(c, 24, 26)
        pv(c, 1, 0)
        if late: late()
        exps(c, 26, 32); cvts(c, 12, 16)
    def sync(n):
        def f():
            k(f"s_waitcnt vmcnt({n})"); k("s_barrier")
            if PRIO: k("s_setprio 1")
        return f
    lo = (lambda: k("s_setprio 0")) if PRIO else None
    if PRIO: k("s_setprio 1")
    iteration(0, first=True, mid=lambda: dma(3), late=lo)
    iteration(1, top=sync(4), mid=lambda: dma(4))
    iteration(2, mid=lambda: dma(5))
    iteration(3, mid=lambda: dma(6), late=lo)
    iteration(4, top=sync(4), mid=lambda: dma(7))
    iteration(5, mid=lambda: dma(8))
    iteration(6, mid=lambda: dma(9))
    iteration(7, late=lo)
    k(f"{L_loop}:")
    def hook():
        k("s_cmp_lg_u32 s36, 1"); k(f"s_cbranch_scc1 {L_hk} ; @seq=TNT"); k(f"{L_hkr}:")
    def lastlo():
        if PRIO:
            Ls = k.lab("np")
            k("s_cmp_lg_u32 s36, 2"); k(f"s_cbranch_scc1 {Ls} ; @seq=TTN"); k("s_setprio 0"); k(f"{Ls}:")
    def cnt(): k("s_add_u32 s36, s36, 1"); k("s_cmp_lt_u32 s36, 3")
    for j in range(8):
        iteration(j, top=hook if j == 0 else None, mid=lastlo if j == 6 else None, late=cnt if j == 7 else None)
    k(f"s_cbranch_scc1 {L_loop} ; @seq=TTN")
    k(f"""
    s_mul_i32 s33, s30, 5120
    v_add_u32 v1, s33, v{GL}
    """)
    pv(1, 1, 1)
    k.stamp(5)
    k(f"""
    s_xor_b32 s33, s30, 4
    s_mul_i32 s33, s33, 5120
    v_add_u32 v6, s33, v{GL}
    """)
    for i in range(3): k(f"ds_write_b128 v1, {vr(O+16+4*i,4)} offset:{i*1024}")
    k(f"""
    s_mul_i32 s33, s32, {2*80*256}
    s_add_u32 s33, s33, {OF_OFF}
    s_lshl_b32 s34, s28, 9
    s_add_u32 s34, s34, s33            ; chunk 2h
    s_lshr_b32 s35, s28, 1
    s_lshl_b32 s35, s35, 8
    s_add_u32 s35, s35, s33
    s_and_b32 s39, s28, 1
    s_lshl_b32 s39, s39, 3
    s_add_u32 s35, s35, s39
    s_add_u32 s35, s35, {64*256}
    v_lshrrev_b32 v1, 4, v3
    v_mul_u32_u24 v1, {80*256}, v1
    v_and_b32 v7, 15, v3
    v_lshl_add_u32 v1, v7, 4, v1
    v_lshl_add_u32 v1, v4, 8, v1
    s_waitcnt lgkmcnt(0)
    s_barrier
    """)
    k.stamp(6)
    for i in range(3): k(f"ds_read_b128 {vr(O+16+4*i,4)}, v6 offset:{i*1024}")
    for i in range(12):
        if i % 4 == 0: k(f"s_waitcnt lgkmcnt({2 - i//4})")
        k(f"v_add_f32 v{O+i}, v{O+i}, v{O+16+i}")
    k(f"{L_epi}:")
    k(f"""
    v_mov_b32 v6, v{O+8}
    v_mov_b32 v7, v{O+8}
    v_mul_f32 v{P}, 0, v{O}
    v_mul_f32 v{P+1}, 0, v{O+8}
    v_permlane32_swap_b32 v6, v7       ; v7 = l
    """)
    for i in range(1, 8): k(f"v_fma_f32 v{P}, v{O+i}, 0, v{P}")
    for i in range(9, 12): k(f"v_fma_f32 v{P+1}, v{O+i}, 0, v{P+1}")
    k(f"""
    v_rcp_f32 v6, v7
    v_mov_b32 v{P+2}, {f32(2.0**60)}
    v_cmp_nlt_f32 s[40:41], v7, v{P+2}
    v_cmp_u_f32 s[42:43], v{P}, v{P+1}
    """)
    for i in range(0, 12, 2): k(f"v_pk_mul_f32 v[{O+i}:{O+i+1}], v[{O+i}:{O+i+1}], v[6:7] op_sel_hi:[1,0]")
    k(f"""
    s_or_b64 s[40:41], s[40:41], s[42:43]
    s_or_b32 s40, s40, s41
    s_andn2_b32 s40, s40, s38
    s_cbranch_scc1 {L_slow}
    """)
    for i in range(6): k(f"v_cvt_pk_bf16_f32 v{P+i}, v{O+2*i}, v{O+2*i+1}")
    k(f"""
    buffer_store_dwordx4 v[{P}:{P+3}], v1, s[{SWS}:{SWS+3}], s34 offen{OSC}
    s_mov_b64 exec, 0xffffffff
    buffer_store_dwordx2 v[{P+4}:{P+5}], v1, s[{SWS}:{SWS+3}], s35 offen{OSC}
    """)
    k.end(SWS, 1)
    k(f"{L_end}:")
    k("s_endpgm")
    L_j2 = k.lab("j2"); L_wo = k.lab("wo"); L_go = k.lab("go"); L_t2 = k.lab("t2"); L_st = k.lab("st"); L_d = k.lab("d"); L_bar = k.lab("bar")
    slot = lambda s: s * 1024
    k(f"""
    {L_hk}:
    s_waitcnt vmcnt(0)
    s_cmp_lg_u32 s36, 0
    s_cbranch_scc1 {L_r1} ; @seq=NT
    s_barrier
    {"s_setprio 1" if PRIO else ""}
    {"s_memrealtime s[88:89]" if PROF else ""}
    s_cmp_ge_u32 s2, 164
    s_cbranch_scc1 {L_hkr} ; @both
    s_mul_i32 s34, s30, 5120
    s_mov_b32 s{SRC+3}, 0x00020000
    v_and_b32 v6, 3, v2                ; c
    s_cmp_ge_u32 s2, 96
    s_cbranch_scc1 {L_j2}
    ; ---- W1/W3 strip: ct = J/6, j = J%6
    s_mul_i32 s40, s2, 171
    s_lshr_b32 s40, s40, 10            ; ct
    s_mul_i32 s41, s40, 6
    s_sub_u32 s41, s2, s41             ; j
    s_bitcmp1_b32 s41, 0
    s_cselect_b32 s{SRC}, s26, s24
    s_cselect_b32 s{SRC+1}, s27, s25
    s_mov_b32 s{SRC+2}, {SIZE['w1']}
    s_lshr_b32 s42, s41, 1
    s_lshl_b32 s42, s42, 6
    s_mul_i32 s43, s40, 192
    s_add_u32 s42, s42, s43
    s_mul_i32 s43, s30, {80*3072}
    s_add_u32 s42, s42, s43
    v_lshrrev_b32 v1, 2, v2
    v_mul_u32_u24 v1, 3072, v1
    v_lshl_add_u32 v1, v6, 4, v1
    """)
    for f in range(5):
        k(f"s_add_u32 m0, s34, {slot(f)}")
        if f: k(f"s_add_u32 s42, s42, {16*3072}")
        k(f"buffer_load_dwordx4 v1, s[{SRC}:{SRC+3}], s42 offen lds")
    k(f"""
    s_mul_i32 s44, s40, {41*6}
    s_add_u32 s44, s44, s41
    s_lshl_b32 s44, s44, 10
    s_add_u32 s44, s44, {W13F_OFF}
    s_mul_i32 s45, s30, {5*6144}
    s_add_u32 s45, s45, s44
    s_add_u32 s45, s45, 6144
    s_mov_b32 s46, 6144
    s_branch {L_hkr} ; @seq=T
    {L_j2}:
    s_sub_u32 s40, s2, 96
    s_lshl_b32 s40, s40, 3
    s_add_u32 s40, s40, s30            ; u
    s_mov_b32 s46, 1024
    s_cmp_lt_u32 s2, 116
    s_cbranch_scc1 {L_wo}
    s_sub_u32 s40, s40, 160
    s_mul_i32 s41, s40, 1366
    s_lshr_b32 s41, s41, 16            ; ct
    s_mul_i32 s42, s41, 48
    s_sub_u32 s42, s40, s42            ; ks
    s_mov_b32 s{SRC}, s22
    s_mov_b32 s{SRC+1}, s23
    s_mov_b32 s{SRC+2}, {SIZE['w2']}
    s_mul_i32 s45, s40, 5120
    s_add_u32 s45, s45, {W2F_OFF}
    s_lshl_b32 s42, s42, 5
    s_mov_b32 s43, 16
    s_mov_b32 s44, 4
    s_mov_b32 s47, 8
    s_branch {L_go}
    {L_wo}:
    s_mul_i32 s41, s40, 3277
    s_lshr_b32 s41, s41, 16            ; ct
    s_mul_i32 s42, s41, 20
    s_sub_u32 s42, s40, s42            ; ks
    s_mov_b32 s{SRC}, s20
    s_mov_b32 s{SRC+1}, s21
    s_mov_b32 s{SRC+2}, {SIZE['wo']}
    s_mul_i32 s45, s40, 5120
    s_add_u32 s45, s45, {WOF_OFF}
    s_mul_i32 s48, s42, 40
    s_mul_i32 s49, s42, 160
    s_sub_u32 s49, s49, {16*160-16}
    s_cmp_ge_u32 s42, 16
    s_cselect_b32 s42, s49, s48
    s_cselect_b32 s43, 80, 20
    s_cselect_b32 s44, 40, 4
    s_cselect_b32 s47, 20, 8
    {L_go}:
    s_mul_i32 s42, s42, 1280
    s_mul_i32 s41, s41, 160
    s_add_u32 s42, s42, s41
    s_mul_i32 s41, s43, 1280
    s_add_u32 s41, s41, s42
    v_mul_u32_u24 v1, s44, v4          ; B * bit5
    v_bfe_u32 v7, v2, 4, 1
    v_mad_u32_u24 v1, s47, v7, v1      ; + C * bit4
    v_mul_u32_u24 v7, s44, v7          ; B * bit4
    v_mad_u32_u24 v7, s43, v4, v7      ; + A * bit5
    v_bfe_u32 v{RA}, v2, 2, 2
    v_add_u32 v1, v1, v{RA}
    v_mul_u32_u24 v1, 1280, v1
    v_lshl_add_u32 v1, v6, 4, v1
    v_bfe_u32 v{RA}, v2, 3, 1
    v_mad_u32_u24 v7, s47, v{RA}, v7
    v_bfe_u32 v{RA}, v2, 1, 2
    v_add_u32 v7, v7, v{RA}
    v_mul_u32_u24 v7, 1280, v7
    v_and_b32 v6, 1, v2
    v_lshl_add_u32 v7, v6, 4, v7
    """)
    for f in range(5):
        k(f"s_add_u32 m0, s34, {slot(f) - 64*(f//2)}")
        k(f"buffer_load_dwordx4 v{7 if f == 4 else 1}, s[{SRC}:{SRC+3}], s{41 if f & 1 else 42} offen offset:{64*(f//2)} lds")
    k(f"s_branch {L_hkr} ; @seq=T")
    k(f"""
    {L_r1}:
    """)
    k.stamp(3)
    k(f"""
    s_cmp_ge_u32 s2, 164
    s_cbranch_scc1 {L_hkr} ; @both
    s_add_u32 s40, s34, {slot(0)}
    v_bfe_u32 v1, v2, 2, 2             ; r
    v_and_b32 v6, 3, v2                ; c
    s_cmp_ge_u32 s2, 96
    s_cbranch_scc1 {L_t2}
    v_lshl_add_u32 v1, v4, 3, v1
    v_lshl_add_u32 v1, v1, 6, s40
    v_bfe_u32 v7, v2, 4, 1
    v_lshl_add_u32 v1, v7, 5, v1
    v_lshl_add_u32 v1, v6, 3, v1
    """)
    for f in range(5):
        for h in range(2): k(f"ds_read_b64_tr_b16 {vr(RP+4*f+2*h,2)}, v1 offset:{slot(f) - slot(0) + 256*h}")
    k(f"""
    v_lshrrev_b32 v1, 2, v2
    v_xor_b32 v1, v1, v7
    v_and_b32 v1, 1, v1
    v_add_u32 v1, -1, v1
    v_and_b32 v{SEL}, 0x3f803f80, v1
    v_mov_b32 v{SEL+1}, v{SEL}
    v_mov_b32 v{SEL+2}, v{SEL}
    v_mov_b32 v{SEL+3}, v{SEL}
    s_lshr_b32 s40, s30, 2
    s_lshl_b32 s40, s40, 9
    s_and_b32 s41, s30, 3
    s_lshl_b32 s41, s41, 2
    s_add_u32 s40, s40, s41
    s_add_u32 s44, s44, s40
    v_lshlrev_b32 v1, 4, v3
    s_waitcnt lgkmcnt(0)
    """)
    for f in range(5):
        k(f"v_mfma_f32_16x16x32_bf16 {vr(CS,4)}, {vr(SEL,4)}, {vr(RP+4*f,4)}, {vr(CS,4) if f else 0}")
    k(f"""
    v_cvt_pk_bf16_f32 v{CS+1}, v{CS}, v{CS}
    v_and_b32 v{CS+2}, 0xffff0000, v{CS+1}
    v_sub_f32 v{CS+2}, v{CS}, v{CS+2}
    v_cvt_pk_bf16_f32 v{CS+1}, v{CS}, v{CS+2}
    buffer_store_dword v{CS+1}, v1, s[{SWS}:{SWS+3}], s44 offen
    s_branch {L_st}
    {L_t2}:
    v_lshrrev_b32 v7, 4, v2            ; g
    v_lshl_add_u32 v1, v7, 3, v1
    v_lshlrev_b32 v1, 5, v1
    v_lshl_add_u32 v7, v6, 3, v1
    v_lshl_add_u32 v1, v7, 1, s40
    v_add_u32 v7, s40, v7
    """)
    for f in range(4):
        for h in range(2): k(f"ds_read_b64_tr_b16 {vr(RP+4*f+2*h,2)}, v1 offset:{(f//2)*2048 + 8*(f&1) + 256*h}")
    for h in range(2): k(f"ds_read_b64_tr_b16 {vr(RP+16+2*h,2)}, v7 offset:{4096 + 128*h}")
    k("s_waitcnt lgkmcnt(0)")
    k(f"{L_st}:")
    for f in range(5):
        k(f"buffer_store_dwordx4 {vr(RP+4*f,4)}, v{GL}, s[{SWS}:{SWS+3}], s45 offen{RSC}")
        k(f"s_add_u32 s45, s45, s46")
    k.stamp(4)
    k(f"s_branch {L_hkr} ; @seq=T")
    L1 = k.lab("s1"); L2 = k.lab("s2")
    def qk1(c):
        k(f"v_mfma_f32_32x32x16_bf16 {vr(S[0],16)}, {vr(KL[0],4)}, {vr(QL[0],4)}, {c}")
        k(f"v_mfma_f32_32x32x8_bf16 {vr(S[0],16)}, {vr(KH[0],2)}, {vr(QH,2)}, {vr(S[0],16)}")
    k(f"""
    {L_slow}:
    s_mov_b32 s38, -1
    v_add_u32 v6, -1, v4
    v_and_b32 v{QH}, v{QH}, v6
    v_and_b32 v{QH+1}, v{QH+1}, v6
    v_mul_u32_u24 v{AV}, 320, v4
    v_lshl_add_u32 v{AV}, v3, 4, v{AV}
    v_mov_b32 v6, 0xff800000
    s_mov_b32 s37, s31
    s_mov_b32 s36, 0
    {L1}:
    buffer_load_dwordx4 {vr(KL[0],4)}, v{GL}, s[{SWS}:{SWS+3}], s37 offen
    buffer_load_dwordx2 {vr(KH[0],2)}, v5, s[{SWS}:{SWS+3}], s37 offen
    s_waitcnt vmcnt(0)
    """)
    qk1(0)
    maxred(S[0], 6, False)
    k(f"""
    s_add_u32 s37, s37, {TS}
    s_add_u32 s36, s36, 1
    s_cmp_lt_u32 s36, 64
    s_cbranch_scc1 {L1}
    v_mov_b32 v7, v6
    v_permlane32_swap_b32 v6, v7
    v_max_f32 v6, v6, v7
    """)
    for i in range(16): k(f"v_sub_f32 v{NM+i}, 0, v6")
    for i in range(16): k(f"v_mov_b32 v{O+i}, 0")
    k(f"""
    s_mov_b32 s37, s31
    s_mov_b32 s36, 0
    {L2}:
    buffer_load_dwordx4 {vr(KL[0],4)}, v{GL}, s[{SWS}:{SWS+3}], s37 offen
    buffer_load_dwordx2 {vr(KH[0],2)}, v5, s[{SWS}:{SWS+3}], s37 offen
    s_mov_b64 exec, s[50:51]
    buffer_load_dwordx4 {vr(V[0],4)}, v{AV}, s[{SWS}:{SWS+3}], s37 offen offset:1280
    buffer_load_dwordx4 {vr(V[0]+4,4)}, v{AV}, s[{SWS}:{SWS+3}], s37 offen offset:1920
    s_mov_b64 exec, -1
    s_waitcnt vmcnt(0)
    """)
    qk1(vr(NM, 16))
    exps(0, 0, 16); cvts(0, 0, 8); pv(0, 0, 0); pv(0, 0, 1)
    k(f"""
    s_add_u32 s37, s37, {TS}
    s_add_u32 s36, s36, 1
    s_cmp_lt_u32 s36, 64
    s_cbranch_scc1 {L2}
    s_branch {L_epi}
    """)
    return k
```

```python
from common import *

import os
AHEAD = int(os.environ.get("AHEAD", "4"))
ROT = int(os.environ.get("ROT", "0"))
SC = os.environ.get("SC", " sc1")

def loader(k, SWS, GL, nch, wbytes, idx):
    wq = wbytes // 4; slot = wbytes + 8192
    Lp = k.lab("pre"); Ll = k.lab("ll")
    k(f"""
    s_mul_i32 s26, s23, {wq}
    s_add_u32 s24, s24, s26
    s_lshl_b32 s27, s23, 11
    s_add_u32 s27, s27, {wbytes}
    s_mul_i32 s31, s30, {wbytes}
    s_add_u32 s24, s24, s31
    s_lshl_b32 s31, s30, 11
    s_add_u32 s25, s25, s31
    s_mov_b32 s28, 0
    s_mov_b32 s29, 0
    s_waitcnt lgkmcnt(0)
    s_branch {Lp}
    {Ll}:
    s_waitcnt vmcnt({5*(AHEAD-1)})
    s_barrier
    {Lp}:
    s_add_u32 m0, s28, s27
    s_add_u32 s29, s29, 1
    buffer_load_dwordx4 v{GL}, s[{SWS}:{SWS+3}], s25 offen lds
    buffer_load_dwordx4 v{GL}, s[{SWS}:{SWS+3}], s25 offen offset:1024 lds
    s_add_u32 m0, s28, s26
    s_add_u32 s30, s30, 1
    buffer_load_dwordx4 v{GL}, s[{SWS}:{SWS+3}], s24 offen lds
    buffer_load_dwordx4 v{GL}, s[{SWS}:{SWS+3}], s24 offen offset:1024 lds
    """)
    if wq < 3072: k("s_mov_b32 exec_hi, 0")
    k(f"buffer_load_dwordx4 v{GL}, s[{SWS}:{SWS+3}], s24 offen offset:2048 lds")
    if wq < 3072: k("s_mov_b32 exec_hi, -1")
    k(f"""
    s_cmp_eq_u32 s30, {nch}
    s_cselect_b32 s31, {-(nch-1)}, 1
    s_cmov_b32 s30, 0
    s_mul_i32 s32, s31, {wbytes}
    s_lshl_b32 s31, s31, 11
    s_add_u32 s24, s24, s32
    s_add_u32 s25, s25, s31
    s_add_u32 s28, s28, {slot}
    s_cmp_eq_u32 s28, {8*slot}
    s_cmov_b32 s28, 0
    s_cmp_lt_u32 s29, {AHEAD}
    s_cbranch_scc1 {Lp} ; @seq={"T"*(AHEAD-1)}N
    s_cmp_lt_u32 s29, {nch}
    s_cbranch_scc1 {Ll} ; @seq=TTN
    """)
    for i in range(AHEAD):
        k(f"s_waitcnt vmcnt({5*(AHEAD-1-i)})")
        k("s_barrier")
    k("s_barrier")
    k.end(SWS, idx)

def ringloop(k, nch, nt, wbytes, LA, LB, A, B, mfma):
    slot = wbytes + 8192
    L = k.lab("loop")
    k("s_mov_b32 s27, 0")
    k.stamp(1)
    k("s_barrier")
    k.stamp(2)
    k(f"ds_read_b128 {vr(B[0],4)}, v{LB}")
    for j in range(nt): k(f"ds_read_b128 {vr(A+4*j,4)}, v{LA} offset:{j*1024}")
    k(f"{L}:")
    for s in range(2):
        if s == 1:
            k(f"""
            s_add_u32 s27, s27, 1
            s_and_b32 s25, s27, 7
            s_mov_b32 s25, {-7*slot}
            s_cmov_b32 s25, {slot}
            v_add_u32 v{LA}, s25, v{LA}
            v_add_u32 v{LB}, s25, v{LB}
            s_cmp_lt_u32 s27, {nch}
            s_barrier
            """)
        k(f"ds_read_b128 {vr(B[1-s],4)}, v{LB} offset:{(1-s)*1024}")
        for j in range(nt):
            k(f"s_waitcnt lgkmcnt({nt})")
            mfma(j, A + 4 * j, B[s])
            k(f"ds_read_b128 {vr(A+4*j,4)}, v{LA} offset:{(1-s)*nt*1024 + j*1024}")
    k(f"s_cbranch_scc1 {L}")
    k.stamp(6)
    k("s_waitcnt lgkmcnt(0)")

def gemm16(name, nks, woff, aoff, first):
    nch = nks // 2
    k = Kern(name, 256, 512, 8 * 18432)
    SWS, SRM = 12, 16
    idx = 2 if first else 4
    L_end = k.lab("end"); L_ld = k.lab("ld")
    a = Alloc(8)
    GL = a(); LA = a(); LB = a(); RM = a(); RM2 = a(); FM = a(); FM2 = a()
    RES = a(10, 2); ACC = a(20, 4); A = a(20, 4); B = [a(4, 4), a(4, 4)]
    k(f"""
    s_cmp_ge_u32 s2, 256
    s_cbranch_scc1 {L_end}
    """)
    k.stamp(0)
    load_srds(k, [("ws", SWS), ("x" if first else "out", SRM)])
    k(f"""
    v_lshrrev_b32 v1, 6, v0
    v_and_b32 v2, 63, v0
    v_readfirstlane_b32 s22, v1        ; wave
    s_bfe_u32 s20, s2, 0x20001         ; x>>1
    s_lshl_b32 s20, s20, 3
    s_bfe_u32 s30, s2, 0x30003
    s_add_u32 s20, s20, s30            ; rt
    s_and_b32 s21, s2, 1
    s_lshl_b32 s21, s21, 2
    s_lshr_b32 s31, s2, 6
    s_add_u32 s21, s21, s31            ; ct
    v_lshlrev_b32 v{GL}, 4, v2
    s_and_b32 s23, s22, 3
    s_lshl_b32 s20, s20, 2
    s_add_u32 s20, s20, s23            ; tile16
    s_cmp_ge_u32 s22, 4
    s_cbranch_scc1 {L_ld}
    v_and_b32 v3, 15, v2               ; n
    v_lshrrev_b32 v4, 4, v2            ; g
    v_mul_u32_u24 v{RM2}, 1280, v3
    v_lshl_add_u32 v{RM}, v4, 4, v{RM2}
    v_lshl_add_u32 v{RM2}, v4, 3, v{RM2}
    v_lshlrev_b32 v{FM2}, 4, v3
    v_lshl_add_u32 v{FM}, v4, 9, v{FM2}
    v_lshrrev_b32 v1, 1, v4
    v_lshl_add_u32 v{FM2}, v1, 9, v{FM2}
    v_and_b32 v1, 1, v4
    v_lshl_add_u32 v{FM2}, v1, 3, v{FM2}
    v_add_u32 v{FM2}, 4096, v{FM2}
    s_mul_i32 s26, s20, {16*1280}
    s_mul_i32 s28, s21, 160
    s_add_u32 s26, s26, s28
    s_lshr_b32 s28, s20, 1
    s_mul_i32 s28, s28, 40960
    s_and_b32 s29, s20, 1
    s_lshl_b32 s29, s29, 8
    s_add_u32 s28, s28, s29
    s_mul_i32 s29, s21, 5120
    s_add_u32 s28, s28, s29
    s_add_u32 s28, s28, {HF_OFF}
    s_waitcnt lgkmcnt(0)
    """)
    def rw(op, rm):
        sc = SC if op == "store" and first else ""
        if rm:
            k(f"buffer_{op}_dwordx4 v[{RES}:{RES+3}], v{RM}, s[{SRM}:{SRM+3}], s26 offen{sc}")
            k(f"buffer_{op}_dwordx4 v[{RES+4}:{RES+7}], v{RM}, s[{SRM}:{SRM+3}], s26 offen offset:64{sc}")
            k(f"buffer_{op}_dwordx2 v[{RES+8}:{RES+9}], v{RM2}, s[{SRM}:{SRM+3}], s26 offen offset:128{sc}")
        else:
            k(f"buffer_{op}_dwordx4 v[{RES}:{RES+3}], v{FM}, s[{SWS}:{SWS+3}], s28 offen{sc}")
            k(f"buffer_{op}_dwordx4 v[{RES+4}:{RES+7}], v{FM}, s[{SWS}:{SWS+3}], s28 offen offset:2048{sc}")
            k(f"buffer_{op}_dwordx2 v[{RES+8}:{RES+9}], v{FM2}, s[{SWS}:{SWS+3}], s28 offen{sc}")
    rw("load", first)
    k(f"""
    v_mov_b32 v{LA}, v{GL}
    s_lshl_b32 s25, s23, 11
    s_add_u32 s25, s25, 10240
    v_add_u32 v{LB}, s25, v{GL}
    s_waitcnt vmcnt(0)
    """)
    for i in range(10):
        k(f"v_lshlrev_b32 v{ACC+2*i}, 16, v{RES+i}")
        k(f"v_and_b32 v{ACC+2*i+1}, 0xffff0000, v{RES+i}")
    ringloop(k, nch, 5, 10240, LA, LB, A, B,
             lambda j, ra, rb: k(f"v_mfma_f32_16x16x32_bf16 {vr(ACC+4*j,4)}, {vr(ra,4)}, {vr(rb,4)}, {vr(ACC+4*j,4)}"))
    for i in range(10):
        k(f"v_cvt_pk_bf16_f32 v{RES+i}, v{ACC+2*i}, v{ACC+2*i+1}")
    rw("store", not first)
    if first:
        k(f"""
        v_mov_b32 v5, 0x3f803f80
        v_mov_b32 v6, 0
        v_mov_b32 v7, 0
        """)
        for i in range(10):
            k(f"v_dot2_f32_bf16 v6, v{RES+i}, v5, v6")
            k(f"v_dot2_f32_bf16 v7, v{RES+i}, v{RES+i}, v7")
        k(f"""
        s_lshl_b32 s29, s21, 14
        s_lshl_b32 s20, s20, 7
        s_add_u32 s29, s29, s20
        s_add_u32 s29, s29, {ST_OFF}
        v_lshrrev_b32 v1, 5, v2
        v_lshlrev_b32 v1, 2, v1
        v_lshl_add_u32 v1, v3, 3, v1
        v_permlane32_swap_b32 v6, v7
        v_add_f32 v6, v6, v7
        v_mov_b32 v7, v6
        v_permlane16_swap_b32 v6, v7
        v_add_f32 v6, v6, v7
        buffer_store_dword v6, v1, s[{SWS}:{SWS+3}], s29 offen
        """)
    k.end(SWS, idx)
    k(f"""
    {L_ld}:
    s_mul_i32 s24, s21, {nks*5120}
    s_add_u32 s24, s24, {woff}
    s_mul_i32 s25, s20, {nks*1024}
    s_add_u32 s25, s25, {aoff}
    """)
    rot(k, nch)
    loader(k, SWS, GL, nch, 10240, idx)
    k(f"{L_end}:")
    k("s_endpgm")
    return k

def rot(k, nch):
    if ROT: k(f"s_lshl_b32 s31, s31, 1\ns_add_u32 s30, s30, s31\ns_and_b32 s30, s30, 7\ns_mul_i32 s30, s30, {nch}\ns_lshr_b32 s30, s30, 3")
    else: k("s_mov_b32 s30, 0")

def build_k4():
    k = Kern("ffn1_kernel", 256, 512, 163840)
    SWS = 12
    L_end = k.lab("end"); L_ld = k.lab("ld")
    a = Alloc(8)
    GL = a(); LA = a(); LB = a()
    ST = a(8, 4); MN = a(8, 4); A = a(24, 4); CSF = A; B = [a(4, 4), a(4, 4)]; ACC = a(96, 4)
    k(f"""
    s_cmp_ge_u32 s2, 256
    s_cbranch_scc1 {L_end}
    """)
    k.stamp(0)
    load_srds(k, [("ws", SWS)])
    k(f"""
    v_lshrrev_b32 v1, 6, v0
    v_and_b32 v2, 63, v0
    v_readfirstlane_b32 s22, v1        ; wave
    s_and_b32 s20, s2, 1
    s_lshl_b32 s20, s20, 3
    s_bfe_u32 s30, s2, 0x30003
    s_add_u32 s20, s20, s30
    s_bfe_u32 s21, s2, 0x20001
    s_lshl_b32 s21, s21, 2
    s_lshr_b32 s31, s2, 6
    s_add_u32 s21, s21, s31            ; ct
    v_lshlrev_b32 v{GL}, 4, v2
    s_and_b32 s23, s22, 3
    s_lshl_b32 s20, s20, 2
    s_add_u32 s20, s20, s23            ; tile32
    s_mul_i32 s24, s21, {41*6144}
    s_add_u32 s24, s24, {W13F_OFF}
    s_cmp_ge_u32 s22, 4
    s_cbranch_scc1 {L_ld}
    v_and_b32 v3, 31, v2               ; m
    v_lshrrev_b32 v4, 5, v2            ; hf
    v_lshlrev_b32 v1, 16, v4
    v_lshl_add_u32 v1, v3, 3, v1
    s_lshl_b32 s25, s20, 8
    s_add_u32 s25, s25, {ST_OFF}
    s_add_u32 s26, s25, 16384
    s_add_u32 s27, s25, 32768
    s_add_u32 s28, s25, 49152
    s_add_u32 s29, s24, 3072
    s_waitcnt lgkmcnt(0)
    """)
    for i in range(4): k(f"buffer_load_dwordx2 v[{ST+2*i}:{ST+2*i+1}], v1, s[{SWS}:{SWS+3}], s{25+i} offen")
    for j in range(6): k(f"buffer_load_dwordx4 v[{CSF+4*j}:{CSF+4*j+3}], v{GL}, s[{SWS}:{SWS+3}], s{24 if j < 3 else 29} offen offset:{(j%3)*1024}")
    k(f"""
    v_mov_b32 v{LA}, v{GL}
    s_lshl_b32 s25, s23, 11
    s_add_u32 s25, s25, 12288
    v_add_u32 v{LB}, s25, v{GL}
    v_lshrrev_b32 v1, 4, v3
    v_mul_u32_u24 v1, {192*256}, v1
    v_and_b32 v5, 15, v3
    v_lshl_add_u32 v1, v5, 4, v1
    v_lshl_add_u32 v3, v4, 8, v1
    s_mul_i32 s26, s20, {2*192*256}
    s_mul_i32 s27, s21, {12*256}
    s_add_u32 s26, s26, s27
    s_add_u32 s26, s26, {HH_OFF}
    s_waitcnt vmcnt(6)
    v_pk_add_f32 v[{ST}:{ST+1}], v[{ST}:{ST+1}], v[{ST+2}:{ST+3}]
    v_pk_add_f32 v[{ST+4}:{ST+5}], v[{ST+4}:{ST+5}], v[{ST+6}:{ST+7}]
    v_pk_add_f32 v[{ST}:{ST+1}], v[{ST}:{ST+1}], v[{ST+4}:{ST+5}]
    v_mov_b32 v{ST+2}, v{ST}
    v_mov_b32 v{ST+3}, v{ST+1}
    v_permlane32_swap_b32 v{ST}, v{ST+2}
    v_permlane32_swap_b32 v{ST+1}, v{ST+3}
    v_pk_add_f32 v[{ST}:{ST+1}], v[{ST}:{ST+1}], v[{ST+2}:{ST+3}]
    v_mul_f32 v{ST}, {f32(-1.0/640)}, v{ST}          ; -mean
    v_mul_f32 v{ST+1}, {f32(1.0/640)}, v{ST+1}
    v_fma_f32 v{ST+1}, -v{ST}, v{ST}, v{ST+1}
    v_max_f32 v{ST+1}, 0, v{ST+1}
    v_add_f32 v{ST+1}, {f32(1e-5)}, v{ST+1}
    v_rsq_f32 v{ST+4}, v{ST+1}
    v_cvt_pk_bf16_f32 v{MN}, v{ST}, v{ST}
    v_and_b32 v{ST+3}, 0xffff0000, v{MN}
    v_sub_f32 v{ST+3}, v{ST}, v{ST+3}
    v_cvt_pk_bf16_f32 v{MN+4}, v{ST+3}, v{ST+3}
    v_mov_b32 v{MN+1}, v{MN}
    v_mov_b32 v{MN+2}, v{MN}
    v_mov_b32 v{MN+3}, v{MN}
    v_mov_b32 v{MN+5}, v{MN+4}
    v_mov_b32 v{MN+6}, v{MN+4}
    v_mov_b32 v{MN+7}, v{MN+4}
    v_mul_f32 v{ST+6}, v{ST+4}, v{ST+4}              ; rstd^2
    v_mul_f32 v{ST+4}, {f32(-LOG2E)}, v{ST+4}        ; -log2e*rstd
    s_waitcnt vmcnt(0)
    """)
    for j in range(6): k(f"v_mfma_f32_32x32x16_bf16 {vr(ACC+16*j,16)}, {vr(CSF+4*j,4)}, {vr(MN,4)}, 0")
    for j in range(6): k(f"v_mfma_f32_32x32x16_bf16 {vr(ACC+16*j,16)}, {vr(CSF+4*j,4)}, {vr(MN+4,4)}, {vr(ACC+16*j,16)}")
    ringloop(k, 20, 6, 12288, LA, LB, A, B,
             lambda j, ra, rb: k(f"v_mfma_f32_32x32x16_bf16 {vr(ACC+16*j,16)}, {vr(ra,4)}, {vr(rb,4)}, {vr(ACC+16*j,16)}"))
    T = A
    for p in range(3):
        G = ACC + 32 * p; U = G + 16
        for h in range(2):
            t = T + 8 * h; g = G + 8 * h; u = U + 8 * h
            for i in range(0, 8, 2): k(f"v_pk_mul_f32 v[{t+i}:{t+i+1}], v[{g+i}:{g+i+1}], v[{ST+4}:{ST+5}] op_sel_hi:[1,0]")
            for i in range(8): k(f"v_exp_f32 v{t+i}, v{t+i}")
            for i in range(0, 8, 2): k(f"v_pk_mul_f32 v[{g+i}:{g+i+1}], v[{g+i}:{g+i+1}], v[{u+i}:{u+i+1}]")
            for i in range(0, 8, 2): k(f"v_pk_add_f32 v[{t+i}:{t+i+1}], v[{t+i}:{t+i+1}], 1.0 op_sel_hi:[1,0]")
            for i in range(8): k(f"v_rcp_f32 v{t+i}, v{t+i}")
            for i in range(0, 8, 2): k(f"v_pk_mul_f32 v[{g+i}:{g+i+1}], v[{g+i}:{g+i+1}], v[{ST+6}:{ST+7}] op_sel_hi:[1,0]")
            for i in range(0, 8, 2): k(f"v_pk_mul_f32 v[{g+i}:{g+i+1}], v[{g+i}:{g+i+1}], v[{t+i}:{t+i+1}]")
            for i in range(4): k(f"v_cvt_pk_bf16_f32 v{u+i}, v{g+2*i}, v{g+2*i+1}")
            k(f"buffer_store_dwordx4 {vr(u,4)}, v3, s[{SWS}:{SWS+3}], s26 offen offset:{(4*p+2*h)*256}{SC}")
    k.end(SWS, 3)
    k(f"""
    {L_ld}:
    s_add_u32 s24, s24, 6144
    s_mul_i32 s25, s20, 40960
    s_add_u32 s25, s25, {HF_OFF}
    """)
    rot(k, 20)
    loader(k, SWS, GL, 20, 12288, 3)
    k(f"{L_end}:")
    k("s_endpgm")
    return k

def build_k345():
    return [gemm16("oproj_kernel", 20, WOF_OFF, OF_OFF, True), build_k4(), gemm16("ffn2_kernel", 48, W2F_OFF, HH_OFF, False)]
```

```python
import re, sys, os
PROF = int(os.environ.get('PROF', '0'))

TRANS = re.compile(r"^v_(exp|log|rcp|rsq|sqrt|sin|cos)_")
REG = re.compile(r"^(-|\|)?([vas])(\d+)\|?$")
REGR = re.compile(r"^(-|\|)?([vas])\[(\d+):(\d+)\]\|?$")

def regs_of(tok):
    tok = tok.strip()
    if tok.startswith("neg(") or tok.startswith("abs("):
        tok = tok[4:-1]
    if tok.startswith("-|"):
        tok = tok[1:]
    m = REG.match(tok)
    if m: return [(m.group(2), int(m.group(3)))]
    m = REGR.match(tok)
    if m: return [(m.group(2), i) for i in range(int(m.group(3)), int(m.group(4)) + 1)]
    if tok == "vcc": return [("s", 106), ("s", 107)]
    if tok == "vcc_lo": return [("s", 106)]
    if tok == "vcc_hi": return [("s", 107)]
    if tok == "exec": return [("s", 126), ("s", 127)]
    if tok == "exec_lo": return [("s", 126)]
    if tok == "exec_hi": return [("s", 127)]
    if tok == "m0": return [("s", 124)]
    return []

def mfma_passes(op):
    if "_16b" in op: return 2
    if "_4b" in op: return 8
    if "_2b" in op: return 16
    if "32x32" in op: return 8
    if "16x16" in op: return 4
    raise ValueError(op)

class Ins:
    __slots__ = ("text", "op", "kind", "wr", "rd", "passes", "A", "B", "C", "D", "wide", "lds", "dpp", "sdwa", "target", "nop", "data", "label", "sread")
    def __init__(self, text):
        self.text = text
        t = text.split(";")[0].strip()
        self.label = None; self.op = None; self.kind = None
        self.wr = []; self.rd = []; self.target = None; self.nop = 0; self.data = []
        self.wide = False; self.lds = False; self.dpp = False; self.sdwa = False
        if not t or t.startswith("."):
            self.kind = "none"; return
        if t.endswith(":"):
            self.kind = "label"; self.label = t[:-1]; return
        parts = t.split(None, 1)
        op = parts[0]; self.op = op
        rest = parts[1] if len(parts) > 1 else ""
        ops = []; cur = ""; depth = 0
        for ch in rest:
            if ch in "[(": depth += 1
            if ch in "])": depth -= 1
            if ch == "," and depth == 0:
                ops.append(cur.strip()); cur = ""
            else: cur += ch
        if cur.strip(): ops.append(cur.strip())
        mods = []
        if ops:
            last = ops[-1].split()
            ops[-1] = last[0]; mods = last[1:]
        R = [regs_of(o) for o in ops]
        allr = lambda L: [r for x in L for r in x]
        if op.startswith("v_mfma"):
            self.kind = "mfma"; self.passes = mfma_passes(op)
            self.D, self.A, self.B, self.C = R[0], R[1], R[2], R[3]
            self.wr = R[0]; self.rd = R[1] + R[2] + R[3]
        elif op.startswith("v_"):
            self.kind = "valu"
            self.dpp = op.endswith("_dpp") or any(m.startswith(("row_", "quad_perm", "wave_")) for m in mods)
            self.sdwa = op.endswith("_sdwa") or any(m.startswith("op_sel:") for m in mods)
            if op == "v_nop": pass
            elif "permlane" in op and "swap" in op:
                self.wr = R[0] + R[1]; self.rd = R[0] + R[1]
            elif op.startswith("v_cmp"):
                self.wr = R[0]; self.rd = allr(R[1:])
                assert not op.startswith("v_cmpx")
            elif "_co_" in op:
                self.wr = R[0] + R[1]; self.rd = allr(R[2:])
            else:
                self.wr = R[0]; self.rd = allr(R[1:])
                if op.startswith(("v_fmac", "v_dot2c", "v_mac")) or self.sdwa or self.dpp or op.startswith("v_writelane"):
                    self.rd = self.rd + R[0]
                if op.startswith("v_cndmask") and len(ops) == 3: self.rd += regs_of("vcc")
        elif op.startswith("ds_"):
            self.kind = "ds"
            if op.startswith(("ds_read", "ds_bpermute", "ds_permute", "ds_swizzle")) or "_rtn" in op:
                self.wr = R[0]; self.rd = allr(R[1:])
            else:
                self.rd = allr(R)
        elif op.startswith(("buffer_", "global_")):
            self.kind = "vmem"
            self.lds = "lds" in mods or "_lds_" in op
            if op in ("buffer_wbl2", "buffer_inv"): pass
            elif "_load" in op:
                if self.lds: self.rd = allr(R) + regs_of("m0")
                else:
                    self.wr = R[0]; self.rd = allr(R[1:])
                    if "d16" in op: self.data = R[0]
            elif "_store" in op:
                self.rd = allr(R)
                self.data = R[0] if op.startswith("buffer") else R[1]
                self.wide = op.endswith(("x3", "x4"))
            elif "atomic" in op:
                self.rd = allr(R)
                if "sc0" in mods: self.wr = R[0]
            else: raise ValueError(op)
        elif op.startswith("s_"):
            self.kind = "salu"
            if op == "s_nop": self.nop = int(ops[0], 0)
            elif op.startswith(("s_cbranch", "s_branch")):
                self.kind = "branch"; self.target = ops[0]
            elif op == "s_endpgm": self.kind = "end"
            elif op == "s_waitcnt": self.kind = "wait"; self.data = t
            elif op.startswith(("s_memtime", "s_memrealtime")): pass
            elif op.startswith(("s_load", "s_buffer_load")):
                self.kind = "smem"; self.wr = R[0]; self.rd = allr(R[1:])
            elif op.startswith(("s_cmp", "s_bitcmp", "s_barrier", "s_setprio", "s_sleep", "s_setreg")):
                self.rd = allr(R)
            else:
                self.wr = R[0]; self.rd = allr(R[1:])
                if "saveexec" in op: self.wr = self.wr + regs_of("exec")
        else:
            raise ValueError("unknown instruction: " + text)

MD_C = {2: 4, 4: 6, 8: 10, 16: 18}
MD_AB = {2: 5, 4: 8, 8: 12, 16: 20}
MC_W = {2: 1, 4: 3, 8: 7, 16: 15}

def need_states(hist, ins):
    need = 0
    rd = set(ins.rd); wr = set(ins.wr)
    for age, p in hist:
        n = 0
        pw = set(p.wr)
        if p.kind == "valu":
            vw = {r for r in pw if r[0] != "s"}; sw = pw - vw
            isdot = p.op.startswith("v_dot")
            if ins.kind == "mfma" and vw & rd: n = max(n, 3 if isdot else 2)
            if ins.kind == "valu":
                if TRANS.match(p.op) and not TRANS.match(ins.op) and vw & rd: n = max(n, 1)
                if ins.op.startswith(("v_readlane", "v_readfirstlane")) and vw & rd: n = max(n, 1)
                if ("permlane" in ins.op or ins.dpp) and vw & rd: n = max(n, 2)
                if sw & rd: n = max(n, 4 if ins.op.startswith(("v_readlane", "v_writelane")) else 2)
                if p.sdwa and vw & (rd | wr): n = max(n, 1)
                if isdot and vw & (rd | wr) and not (ins.op == p.op and ins.wr == p.wr): n = max(n, 3)
            if ins.kind in ("vmem", "ds"):
                if sw & rd: n = max(n, 5)
                if isdot and vw & rd: n = max(n, 3)
            if ins.kind in ("salu", "branch", "smem") and sw & rd: n = max(n, 1)
        elif p.kind == "mfma":
            D = set(p.D)
            if ins.kind == "mfma":
                if D & set(ins.C):
                    if ins.C == p.D and ins.passes == p.passes: n = max(n, 2 if p.passes == 2 else 0)
                    else: n = max(n, MD_C[p.passes])
                if D & (set(ins.A) | set(ins.B)): n = max(n, MD_AB[p.passes])
                if D & set(ins.D) and not (ins.D == p.D and ins.passes == p.passes): n = max(n, MD_AB[p.passes])
            elif ins.kind in ("valu", "vmem", "ds"):
                if D & (rd | wr): n = max(n, MD_AB[p.passes])
                if ins.kind == "valu" and set(p.C) & wr: n = max(n, MC_W[p.passes])
        elif p.kind == "salu":
            if ("s", 124) in pw and ins.kind == "vmem" and ins.lds: n = max(n, 1)
        elif p.kind == "vmem":
            if p.wide and set(p.data) & wr: n = max(n, 2)
        if n - age > need: need = n - age
    return need

def paths(ins, maxback=1):
    lab = {x.label: i for i, x in enumerate(ins) if x.kind == "label"}
    out = []
    stack = [(0, [], {})]
    while stack:
        pc, tr, taken = stack.pop()
        tr = list(tr)
        while True:
            assert pc < len(ins), "fell off the end"
            x = ins[pc]; tr.append(pc)
            if x.kind == "end": break
            if x.kind == "branch":
                t = lab[x.target]
                ms = re.search(r"@seq=([NT]+)", x.text)
                if ms:
                    n = taken.get(pc, 0); taken = dict(taken); taken[pc] = n + 1
                    if ms.group(1)[min(n, len(ms.group(1)) - 1)] == "T": pc = t
                    else: pc += 1
                    continue
                if "@both" in x.text:
                    stack.append((t, list(tr), taken)); pc += 1; continue
                if x.op == "s_branch":
                    if t <= pc:
                        if taken.get(pc, 0) >= maxback: break
                        taken = dict(taken); taken[pc] = taken.get(pc, 0) + 1
                    pc = t; continue
                if t <= pc:
                    if taken.get(pc, 0) < maxback:
                        taken = dict(taken); taken[pc] = taken.get(pc, 0) + 1
                        pc = t; continue
                else:
                    stack.append((t, list(tr), taken))
            pc += 1
        out.append(tr)
        assert len(out) < 3000, "too many paths"
    return out

def pad_and_check(lines, name="", verbose=True):
    ins = [Ins(l) for l in lines]
    ps = paths(ins)
    pad = [0] * len(ins)
    changed = True
    while changed:
        changed = False
        for tr in ps:
            hist = []
            for pc in tr:
                x = ins[pc]
                if x.kind in ("none", "label"): continue
                if pad[pc]: hist = [(a + pad[pc], p) for a, p in hist]
                n = need_states(hist, x)
                if n > 0:
                    pad[pc] += n; changed = True
                    hist = [(a + n, p) for a, p in hist]
                st = x.nop + 1
                hist = [(a + st, p) for a, p in hist if a + st < 21]
                if x.kind in ("valu", "mfma", "salu", "vmem"): hist.insert(0, (0, x))
    errs = set()
    for tr in ps:
        vm = []; lg = []
        for pc in tr:
            x = ins[pc]
            if x.kind in ("none", "label"): continue
            if x.kind == "wait":
                m = re.search(r"vmcnt\((\d+)\)", x.data)
                if m:
                    n = int(m.group(1)); vm = vm[max(0, len(vm) - n):] if n else []
                m = re.search(r"lgkmcnt\((\d+)\)", x.data)
                if m:
                    n = int(m.group(1))
                    if n == 0: lg = []
                    elif not any(k == "smem" for k, _ in lg): lg = lg[len(lg) - n:] if n < len(lg) else lg
                continue
            use = set(x.rd) | set(x.wr)
            for q, same in ((vm, "vmem"), (lg, "ds")):
                for k, d in q:
                    u = use
                    if x.kind == same and k == same: u = set(x.rd)
                    if d & u: errs.add((pc, "outstanding %s dest used: %s" % (k, x.text.strip())))
            if x.kind == "vmem":
                vm.append(("vmem", set(x.wr)))
                if len(vm) > 63: errs.add((pc, "vmcnt overflow"))
            elif x.kind == "ds":
                lg.append(("ds", set(x.wr)))
                if len(lg) > 15: lg = lg
            elif x.kind == "smem": lg.append(("smem", set(x.wr)))
    for pc, e in sorted(errs)[:8]: print(f"[{name}] WAITCNT ERROR line {pc}: {e}", file=sys.stderr)
    if errs: raise SystemExit(1)
    out = []
    npad = 0
    for i, x in enumerate(ins):
        n = pad[i]
        npad += n
        while n > 0:
            k = min(n, 16); out.append(f"    s_nop {k-1}"); n -= k
        out.append(x.text)
    mv = max([r[1] for x in ins for r in x.rd + x.wr if r[0] == "v"] + [0])
    ma = max([r[1] for x in ins for r in x.rd + x.wr if r[0] == "a"] + [-1])
    if verbose: print(f"[{name}] {sum(1 for x in ins if x.op)} instrs, {len(ps)} paths, {npad} pad states, max v{mv} a{ma}", file=sys.stderr)
    return out, mv + 1, ma + 1

class Kern:
    def __init__(self, name, grid, block, lds):
        self.name = name; self.grid = grid; self.block = block; self.lds = lds
        self.lines = []; self.nl = 0
    def __call__(self, text):
        for l in text.split("\n"):
            l = l.strip()
            if not l: continue
            self.lines.append(l if l.endswith(":") or l.startswith(".") else "    " + l)
    def lab(self, base):
        self.nl += 1
        return f"L_{self.name}_{base}_{self.nl}"
    def stamp(self, slot):
        if PROF: self(f"s_memrealtime s[{86+2*slot}:{87+2*slot}]")
        if PROF and slot == 0: self("s_memtime s[84:85]")
        if PROF and slot == 2 and os.environ.get("CYC"): self("s_memtime s[78:79]")
        if PROF and slot == int(os.environ.get("CYC", "99")): self("s_memtime s[80:81]")
    def end(self, sws, idx):
        if PROF:
            self("s_waitcnt vmcnt(0)") if PROF > 1 else None
            self("s_memrealtime s[100:101]")
            self("s_memtime s[82:83]")
            self("s_mov_b64 exec, 1")
            self("v_lshrrev_b32 v0, 6, v0")
            self("v_lshlrev_b32 v0, 6, v0")
            self("s_lshl_b32 s2, s2, 9")
            self(f"s_add_u32 s2, s2, {0x2700000 + idx * 131072}")
            self("s_waitcnt lgkmcnt(0)")
            for i in range(8): self(f"v_mov_b32 v{8+i}, s{86+2*i}")
            self(f"buffer_store_dwordx4 v[8:11], v0, s[{sws}:{sws+3}], s2 offen")
            self(f"buffer_store_dwordx4 v[12:15], v0, s[{sws}:{sws+3}], s2 offen offset:16")
            self("s_sub_u32 s82, s82, s84")
            self("v_mov_b32 v16, s82")
            self(f"buffer_store_dword v16, v0, s[{sws}:{sws+3}], s2 offen offset:32")
            self("s_sub_u32 s80, s80, s78")
            self("v_mov_b32 v17, s80")
            self(f"buffer_store_dword v17, v0, s[{sws}:{sws+3}], s2 offen offset:36")
        self("s_endpgm")
    def finish(self):
        body, nv, na = pad_and_check(self.lines, self.name)
        acc = (nv + 3) // 4 * 4
        nfv = acc + na if na else nv
        txt = f".text\n.globl {self.name}\n.p2align 8\n.type {self.name},@function\n{self.name}:\n" + "\n".join(body) + "\n"
        txt += f""".section .rodata,"a"
.p2align 6
.amdhsa_kernel {self.name}
  .amdhsa_next_free_vgpr {nfv}
  .amdhsa_next_free_sgpr 102
  .amdhsa_accum_offset {acc}
  .amdhsa_group_segment_fixed_size 0
  .amdhsa_kernarg_size 80
  .amdhsa_user_sgpr_count 2
  .amdhsa_user_sgpr_kernarg_segment_ptr 1
  .amdhsa_system_sgpr_workgroup_id_x 1
.end_amdhsa_kernel
"""
        return txt

def vr(a, n=1, k="v"):
    return f"{k}{a}" if n == 1 else f"{k}[{a}:{a+n-1}]"

class Alloc:
    def __init__(self, start=0): self.n = start
    def __call__(self, cnt=1, align=1):
        if cnt > 1 and align == 1: align = 2
        self.n = (self.n + align - 1) // align * align
        r = self.n; self.n += cnt
        return r

def write_file(path, kerns, order=None):
    order = order or kerns
    head = "; generated by gen/gen.py (hand-written generator)\n"
    for k in order:
        head += f"; @launch kernel={k.name} grid=({k.grid},1,1) block=({k.block},1,1) lds={k.lds}\n"
    head += '.amdgcn_target "amdgcn-amd-amdhsa--gfx950"\n'
    seen = set(); body = ""
    for k in kerns:
        if k.name in seen: continue
        seen.add(k.name); body += k.finish()
    body += ".text\ncode_end:\n    s_endpgm\n"
    open(path, "w").write(head + body)
```

```python
from common import *
E = lambda n, d: int(os.environ.get(n, d))

def build_k1():
    k = Kern("qkv_kernel", 240, 512, 4 * 32768 + 2048)
    SX, SW, SWS = 12, 16, 20
    STAT = 4 * 32768
    PF = E("PF", 0); PRE = E("PRE", 2); PART = E("PART", 1); QSC = os.environ.get("QSC", ""); VSC = os.environ.get("VSC", "")
    L_end = k.lab("end"); L_help = k.lab("help")
    k(f"""
    s_cmp_ge_u32 s2, 240
    s_cbranch_scc1 {L_end}
    """)
    k.stamp(0)
    load_srds(k, [("x", SX), ("wqkv", SW), ("ws", SWS)])
    k(f"""
    v_lshrrev_b32 v1, 6, v0
    v_and_b32 v2, 63, v0         ; lane
    v_readfirstlane_b32 s26, v1  ; wave
    s_lshr_b32 s38, s2, 3        ; j = 0..29
    s_bfe_u32 s39, s2, 0x20001
    s_and_b32 s40, s2, 1
    s_lshl_b32 s27, s40, 3
    s_lshr_b32 s25, s38, 2
    s_add_u32 s25, s25, s27
    s_and_b32 s24, s38, 3
    s_lshl_b32 s27, s40, 1
    s_add_u32 s27, s27, s24
    s_cmp_ge_u32 s38, 28
    s_cmov_b32 s25, 7            ; ct
    s_cmov_b32 s24, s27
    s_lshl_b32 s27, s39, 2
    s_add_u32 s24, s24, s27      ; rt
    s_cmp_ge_u32 s26, 4
    s_cbranch_scc1 {L_help}
    """)
    a = Alloc(8)
    XA = a(4); XB = a(4); WA = a(2); SEL = a(4); CS = a(4); RS = a(4); SQ = a(8); OFF = a(8)
    FB = [a(16, 4), a(16, 4)]
    ACC = a(64, 4); RV2 = a(16, 4); PD = a(4); PA = a()
    Lx = k.lab("pfx"); Lj = k.lab("pfj")
    if PF == 4:
        k(f"""
        s_mul_i32 s41, s26, {64*9600}
        s_mul_i32 s42, s38, 320
        s_add_u32 s41, s41, s42
        v_mul_u32_u24 v{PA}, 9600, v2
        s_waitcnt lgkmcnt(0)
        buffer_load_dword v{PD}, v{PA}, s[{SW}:{SW+3}], s41 offen
        """)
    elif PF:
        k(f"""
        s_lshl_b32 s41, s38, 2
        s_add_u32 s41, s41, s26      ; w'
        s_cmp_lt_u32 s38, 10
        s_cbranch_scc1 {Lx}
        v_lshrrev_b32 v6, 4, v2
        v_mul_u32_u24 v6, {3840-2048}, v6
        v_lshl_add_u32 v{PA}, v2, 7, v6
        s_mul_i32 s41, s41, {4*3840}
        s_mul_i32 s42, s40, 1792
        s_add_u32 s41, s41, s42
        s_sub_u32 s41, s41, {40*4*3840}
        s_add_u32 s42, s41, {320*3840}
        s_waitcnt lgkmcnt(0)
        s_mov_b64 s[44:45], s[{SW}:{SW+1}]
        s_mov_b32 s46, {SIZE['wqkv']}
        s_branch {Lj}
        {Lx}:
        v_mul_u32_u24 v{PA}, 1280, v2
        s_lshl_b32 s42, s39, 3
        s_and_b32 s43, s41, 7
        s_add_u32 s42, s42, s43
        s_mul_i32 s42, s42, {64*1280}
        s_lshr_b32 s41, s41, 3
        s_lshl_b32 s41, s41, 7
        s_add_u32 s41, s41, s42
        s_add_u32 s42, s41, 640
        s_waitcnt lgkmcnt(0)
        s_mov_b64 s[44:45], s[{SX}:{SX+1}]
        s_mov_b32 s46, {SIZE['x']}
        {Lj}:
        s_mov_b32 s47, 0x00020000
        buffer_load_dword v{PD}, v{PA}, s[44:47], s41 offen
        """)
        if PF == 1: k(f"buffer_load_dword v{PD+1}, v{PA}, s[44:47], s42 offen")
        k("s_mov_b32 s43, s42")
    T0 = FB[0]
    k(f"""
    v_and_b32 v3, 31, v2         ; m
    v_lshrrev_b32 v4, 5, v2      ; hf
    v_bfe_u32 v5, v3, 1, 3
    v_xor_b32 v5, v5, v4
    v_lshlrev_b32 v5, 4, v5
    v_lshl_add_u32 v5, v3, 7, v5
    s_lshr_b32 s27, s26, 1       ; wr
    s_and_b32 s28, s26, 1        ; wc
    s_lshl_b32 s29, s26, 12
    v_add_u32 v{XA}, s29, v5
    v_xor_b32 v{XA+1}, 32, v{XA}
    v_xor_b32 v{XA+2}, 64, v{XA}
    v_xor_b32 v{XA+3}, 0x60, v{XA}
    v_xor_b32 v{XB}, 0x1000, v{XA}
    v_xor_b32 v{XB+1}, 0x1000, v{XA+1}
    v_xor_b32 v{XB+2}, 0x1000, v{XA+2}
    v_xor_b32 v{XB+3}, 0x1000, v{XA+3}
    v_bfe_u32 v6, v2, 2, 2       ; r
    v_lshl_add_u32 v7, v4, 3, v6 ; row
    v_lshlrev_b32 v7, 8, v7
    v_bfe_u32 v1, v2, 4, 1
    v_lshl_add_u32 v7, v1, 5, v7
    v_and_b32 v1, 3, v2
    v_lshl_add_u32 v7, v1, 3, v7
    v_add_u32 v7, 16384, v7
    s_lshl_b32 s30, s28, 1
    s_add_u32 s30, s30, s27      ; n0
    s_xor_b32 s31, s30, 1        ; n1
    v_xor_b32 v1, s30, v6
    v_lshl_add_u32 v{WA}, v1, 6, v7
    v_xor_b32 v{WA+1}, 64, v{WA}
    ; selector
    v_lshrrev_b32 v1, 2, v2
    v_lshrrev_b32 v6, 4, v2
    v_xor_b32 v1, v1, v6
    v_and_b32 v1, 1, v1
    v_add_u32 v1, -1, v1
    v_and_b32 v{SEL}, 0x3f803f80, v1
    v_mov_b32 v{SEL+1}, v{SEL}
    v_mov_b32 v{SEL+2}, v{SEL}
    v_mov_b32 v{SEL+3}, v{SEL}
    v_and_b32 v1, 3, v2
    v_cmp_eq_u32 s[48:49], 1, v1
    v_cmp_eq_u32 s[50:51], 2, v1
    v_cmp_eq_u32 s[52:53], 3, v1
    """)
    code_prefetch(k, 26, PD + 2)
    for i in range(16): k(f"v_mov_b32 v{CS+i}, 0")
    for i in range(64): k(f"v_mov_b32 v{ACC+i}, 0")
    if PF == 2: k(f"buffer_load_dword v{PD+1}, v{PA}, s[44:47], s43 offen")
    L_V = k.lab("v")
    k(f"""
    s_lshl_b32 s32, s24, 2
    s_add_u32 s32, s32, s26
    s_xor_b32 s33, s32, 1
    s_mul_i32 s32, s32, {TS}
    s_mul_i32 s33, s33, {TS}
    s_cmp_ge_u32 s25, 10
    s_cbranch_scc1 {L_V}
    """)
    NORD = E("NORD", 0)
    def rd0(buf, off, s):
        b = FB[buf]
        if NORD: return
        k(f"ds_read_b64_tr_b16 v[{b+8}:{b+9}], v{WA} offset:{off + s*4096}")
        k(f"ds_read_b64_tr_b16 v[{b+10}:{b+11}], v{WA} offset:{off + s*4096 + 1024}")
        k(f"ds_read_b128 v[{b}:{b+3}], v{XA+s} offset:{off}")
    def rd1(buf, off, s):
        b = FB[buf]
        if NORD: return
        k(f"ds_read_b128 v[{b+4}:{b+7}], v{XB+s} offset:{off}")
        k(f"ds_read_b64_tr_b16 v[{b+12}:{b+13}], v{WA+1} offset:{off + s*4096}")
        k(f"ds_read_b64_tr_b16 v[{b+14}:{b+15}], v{WA+1} offset:{off + s*4096 + 1024}")
    def acc(ts, ns): return ACC + (ts * 2 + ns) * 16
    def mm(buf, ts, ns, isv):
        b = FB[buf]
        x = vr(b + 4 * ts, 4); w = vr(b + 8 + 4 * ns, 4); c = vr(acc(ts, ns), 16)
        k(f"v_mfma_f32_32x32x16_bf16 {c}, {x if isv else w}, {w if isv else x}, {c}")
    SM = os.environ.get("SM", "qQrc")
    def stats(buf):
        b = FB[buf]
        for ch in SM:
            h = 1 if ch == "Q" else 0
            if ch in "qQ": k(f"v_mfma_f32_4x4x4_16b_bf16 {vr(SQ+4*h,4)}, {vr(b+2*h,2)}, {vr(b+2*h,2)}, {vr(SQ+4*h,4)}")
            if ch == "r": k(f"v_mfma_f32_16x16x32_bf16 {vr(RS,4)}, {vr(SEL,4)}, {vr(b,4)}, {vr(RS,4)}")
            if ch == "c": k(f"v_mfma_f32_16x16x32_bf16 {vr(CS,4)}, {vr(SEL,4)}, {vr(b+8,4)}, {vr(CS,4)}")
    def tog(regs):
        for r in regs: k(f"v_xor_b32 v{r}, 0x10000, v{r}")
    def mainloop(isv):
        L = k.lab("loop"); Lin = k.lab("in")
        k("s_mov_b32 s34, 5")
        k("s_waitcnt lgkmcnt(0)")
        k.stamp(1)
        k("s_barrier")
        k.stamp(2)
        if PF == 3: k(f"buffer_load_dword v{PD+1}, v{PA}, s[44:47], s43 offen")
        rd0(0, 0, 0); rd1(0, 0, 0)
        k(f"s_branch {Lin}")
        nxt = lambda t: ((t + 1) & 1, ((t + 1) >> 2 & 1) * 32768, (t + 1) & 3)
        def head(t):
            b = t & 1
            k("s_waitcnt lgkmcnt(3)")
            mm(b, 0, 0, isv)
            if t & 3 == 3:
                k("s_waitcnt lgkmcnt(0)")
                if not E("NOBAR", 0): k("s_barrier")
            rd0(*nxt(t))
            stats(b)
        def tail(t):
            b = t & 1
            if t & 3 != 3: k("s_waitcnt lgkmcnt(3)")
            mm(b, 1, 0, isv)
            rd1(*nxt(t))
            mm(b, 0, 1, isv)
            if 3 <= t <= 6: tog([XA + t - 3, XB + t - 3])
            if t == 6: tog([WA, WA + 1]); k("s_sub_u32 s34, s34, 1"); k("s_cmp_lg_u32 s34, 0")
            mm(b, 1, 1, isv)
        k(f"{L}:")
        tail(7)
        k(f"{Lin}:")
        for t in range(7): head(t); tail(t)
        head(7)
        k(f"s_cbranch_scc1 {L}")
        k.stamp(3)
        T = SEL
        mm(1, 1, 0, isv)
        k(f"""
        s_lshl_b32 s35, s30, 8
        v_lshl_add_u32 v1, v3, 3, s35
        v_add_u32 v1, {STAT+1024}, v1
        s_lshl_b32 s35, s26, 7
        v_lshl_add_u32 v7, v3, 2, s35
        v_add_u32 v7, {STAT}, v7
        v_pk_add_f32 v[{SQ}:{SQ+1}], v[{SQ}:{SQ+1}], v[{SQ+4}:{SQ+5}]
        v_pk_add_f32 v[{SQ+2}:{SQ+3}], v[{SQ+2}:{SQ+3}], v[{SQ+6}:{SQ+7}]
        """)
        mm(1, 0, 1, isv)
        k(f"""
        v_cndmask_b32 v{SQ}, v{SQ}, v{SQ+1}, s[48:49]
        v_cndmask_b32 v{SQ}, v{SQ}, v{SQ+2}, s[50:51]
        v_cndmask_b32 v{SQ}, v{SQ}, v{SQ+3}, s[52:53]
        v_mul_f32 v{RS}, {f32(-1.0/640)}, v{RS}          ; -mean
        v_mov_b32 v{SQ+1}, v{SQ}
        v_cvt_pk_bf16_f32 v{T}, v{CS}, v{CS}
        """)
        mm(1, 1, 1, isv)
        k(f"""
        v_permlane32_swap_b32 v{SQ}, v{SQ+1}
        v_and_b32 v{T+2}, 0xffff0000, v{T}
        v_add_f32 v{SQ}, v{SQ}, v{SQ+1}
        v_sub_f32 v{T+2}, v{CS}, v{T+2}
        v_mul_f32 v{SQ}, {f32(1.0/640)}, v{SQ}
        v_cvt_pk_bf16_f32 v{T+1}, v{T+2}, v{T+2}
        v_fma_f32 v{SQ}, -v{RS}, v{RS}, v{SQ}          ; var
        ds_write_b64 v1, v[{T}:{T+1}]
        v_cvt_pk_bf16_f32 v{RS+1}, v{RS}, v{RS}
        v_max_f32 v{SQ}, 0, v{SQ}
        v_and_b32 v{RS+1}, 0xffff0000, v{RS+1}
        v_add_f32 v{SQ}, {f32(1e-5)}, v{SQ}
        v_sub_f32 v{RS+1}, v{RS}, v{RS+1}
        v_rsq_f32 v{SQ}, v{SQ}
        v_cvt_pk_bf16_f32 v{RS}, v{RS}, v{RS+1}
        ds_write_b32 v7, v{RS}
        ds_write_b32 v7, v{SQ} offset:512
        v_xor_b32 v6, 256, v1
        v_xor_b32 v7, 128, v7
        v_add_u32 v4, -1, v4          ; hf==0 ? ~0 : 0
        v_mov_b32 v{RS+1}, v{RS}
        s_waitcnt lgkmcnt(0)
        s_barrier
        ds_read_b64 v[{T+2}:{T+3}], v6
        ds_read_b32 v{RS+2}, v7
        """)
    def ext_mfma(isv, nwait):
        T = SEL
        def em(ts, ns):
            x = vr(RS + 2 * ts, 2); w = vr(T + 2 * ns, 2); c = vr(acc(ts, ns), 16)
            k(f"v_mfma_f32_32x32x8_bf16 {c}, {x if isv else w}, {w if isv else x}, {c}")
        k(f"""
        v_and_b32 v{T}, v{T}, v4
        v_and_b32 v{T+1}, v{T+1}, v4
        """)
        em(0, 0)
        k(f"""
        s_waitcnt lgkmcnt({nwait})
        v_mov_b32 v{RS+3}, v{RS+2}
        v_and_b32 v{T+2}, v{T+2}, v4
        v_and_b32 v{T+3}, v{T+3}, v4
        """)
        em(1, 0); em(0, 1); em(1, 1)
    k(f"""
    s_cmp_ge_u32 s25, 5
    s_cselect_b32 s35, 5, 0
    s_cselect_b32 s36, 0, {Q_OFF}
    s_cselect_b32 s37, 1.0, {f32(LOG2E * 20 ** -0.5)}
    s_sub_u32 s29, s25, s35
    s_add_u32 s32, s32, s36
    s_add_u32 s33, s33, s36
    s_lshl_b32 s29, s29, 5       ; (ct%5)*32
    """)
    for ns in range(2):
        k(f"s_lshl_b32 s35, s{30+ns}, 3")
        k(f"s_add_u32 s35, s35, s29")
        for rq in range(4):
            o = OFF + ns * 4 + rq
            k(f"""
            v_add3_u32 v1, v4, s35, {2*rq}     ; g4
            v_mul_u32_u24 v6, 205, v1
            v_lshrrev_b32 v6, 10, v6           ; head
            v_mul_u32_u24 v7, 5, v6
            v_sub_u32 v1, v1, v7               ; p
            v_mul_u32_u24 v6, {HS}, v6
            v_and_b32 v7, 1, v1
            v_lshl_add_u32 v6, v7, 9, v6
            v_bfe_u32 v7, v1, 1, 1
            v_lshl_add_u32 v6, v7, 3, v6
            v_lshrrev_b32 v1, 2, v1            ; p==4
            v_lshl_add_u32 v6, v1, 10, v6
            v_sub_u32 v1, 4, v1
            v_lshlrev_b32 v1, v1, v3
            v_add_u32 v{o}, v6, v1
            """)
    if E("TW", 0):
        k("s_waitcnt lgkmcnt(0)")
        for i in (0, 3, 4, 7): k(f"buffer_load_dword v{PD+3}, v{OFF+i}, s[{SWS}:{SWS+3}], s32 offen")
    mainloop(False)
    k(f"ds_read_b32 v{SQ+2}, v7 offset:512")
    k(f"v_mul_f32 v{SQ}, s37, v{SQ}")
    ext_mfma(False, 1)
    k("s_waitcnt lgkmcnt(0)")
    k(f"v_mul_f32 v{SQ+2}, s37, v{SQ+2}")
    for ns in range(2):
        for ts in range(2):
            c = acc(ts, ns)
            for i in range(0, 16, 2):
                k(f"v_pk_mul_f32 v[{c+i}:{c+i+1}], v[{c+i}:{c+i+1}], v[{SQ+2*ts}:{SQ+2*ts+1}] op_sel_hi:[1,0]")
            for i in range(8):
                k(f"v_cvt_pk_bf16_f32 v{c+i}, v{c+2*i}, v{c+2*i+1}")
            for rq in range(4):
                k(f"buffer_store_dwordx2 v[{c+2*rq}:{c+2*rq+1}], v{OFF+ns*4+rq}, s[{SWS}:{SWS+3}], s{32+ts} offen{QSC}")
    k.end(SWS, 0)
    k(f"{L_V}:")
    k(f"""
    s_sub_u32 s29, s25, 10
    s_lshl_b32 s29, s29, 7
    """)
    for ns in range(2):
        k(f"""
        s_lshl_b32 s35, s{30+ns}, 5
        s_add_u32 s35, s35, s29
        v_add_u32 v1, s35, v3
        v_mul_u32_u24 v6, 3277, v1
        v_lshrrev_b32 v6, 16, v6           ; head
        v_mul_u32_u24 v7, 20, v6
        v_sub_u32 v1, v1, v7               ; d
        v_mul_u32_u24 v6, {HS}, v6
        v_lshl_add_u32 v6, v1, 4, v6
        v_mul_u32_u24 v1, 320, v4
        v_add_u32 v{OFF+ns}, v6, v1
        """)
    k(f"""
    s_lshl_b32 s35, s26, 7
    s_add_u32 s35, s35, {STAT+512}
    v_lshl_add_u32 v{OFF+2}, v4, 4, s35
    v_xor_b32 v{OFF+3}, 128, v{OFF+2}
    """)
    if E("TW", 0):
        k("s_waitcnt lgkmcnt(0)")
        for i in (0, 1): k(f"buffer_load_dword v{PD+3}, v{OFF+i}, s[{SWS}:{SWS+3}], s32 offen offset:1280")
    mainloop(True)
    RV = FB[0]
    for ts in range(2):
        for rq in range(4):
            r = (RV, RV2)[ts] + 4 * rq
            k(f"ds_read_b128 v[{r}:{r+3}], v{OFF+2+ts} offset:{rq*32}")
    ext_mfma(True, 8)
    for ns in range(2):
        for ts in range(2):
            c = acc(ts, ns); r = (RV, RV2)[ts]
            if ns == 0: k(f"s_waitcnt lgkmcnt({4 - 4*ts})")
            for i in range(0, 16, 2):
                k(f"v_pk_mul_f32 v[{c+i}:{c+i+1}], v[{c+i}:{c+i+1}], v[{r+i}:{r+i+1}]")
            for i in range(8):
                k(f"v_cvt_pk_bf16_f32 v{c+i}, v{c+2*i}, v{c+2*i+1}")
            for s in range(2):
                k(f"buffer_store_dwordx4 v[{c+4*s}:{c+4*s+3}], v{OFF+ns}, s[{SWS}:{SWS+3}], s{32+ts} offen offset:{1280 + s*640}{VSC}")
    k.end(SWS, 0)
    k(f"{L_help}:")
    a = Alloc(8)
    GA = a(4); GB = a(4)
    k(f"""
    s_sub_u32 s26, s26, 4        ; w
    v_lshrrev_b32 v1, 3, v2
    v_mul_u32_u24 v1, 1280, v1
    v_and_b32 v6, 7, v2
    v_lshrrev_b32 v7, 4, v2
    v_xor_b32 v6, v6, v7
    v_lshl_add_u32 v{GA}, v6, 4, v1
    v_xor_b32 v6, 4, v6
    v_lshl_add_u32 v{GA+1}, v6, 4, v1
    v_add_u32 v{GA+1}, {10240-1024}, v{GA+1}
    v_add_u32 v{GA+2}, {2*(10240-1024)}, v{GA}
    v_add_u32 v{GA+3}, {2*(10240-1024)}, v{GA+1}
    s_lshl_b32 s30, s24, 2
    s_add_u32 s30, s30, s26
    s_mul_i32 s30, s30, {32*1280}     ; A soffset
    v_mul_u32_u24 v1, 3840, v7
    v_lshlrev_b32 v7, 2, v7
    v_and_b32 v6, 15, v2
    v_xor_b32 v6, v6, v7
    v_lshl_add_u32 v{GB}, v6, 4, v1
    v_add_u32 v{GB+1}, {15360-1024}, v{GB}
    v_add_u32 v{GB+2}, {2*(15360-1024)}, v{GB}
    v_add_u32 v{GB+3}, {3*(15360-1024)}, v{GB}
    s_mul_i32 s31, s26, {16*3840}
    s_lshl_b32 s27, s25, 8
    s_add_u32 s31, s31, s27           ; B soffset
    s_lshl_b32 s32, s26, 12
    s_mov_b32 s34, 0
    """)
    NPH = E("NPH", 4)
    if NPH > 1:
        if NPH == 8: k("s_lshl_b32 s35, s24, 1"); k("s_add_u32 s35, s35, s25")
        else: k("s_add_u32 s35, s24, s25")
        if NPH in (2, 4, 8): k(f"s_and_b32 s35, s35, {NPH-1}")
        else:
            k(f"s_mul_i32 s36, s35, {(256 + NPH - 1)//NPH}"); k("s_lshr_b32 s36, s36, 8"); k(f"s_mul_i32 s36, s36, {NPH}"); k("s_sub_u32 s35, s35, s36")
        k(f"""
        s_mul_i32 s35, s35, {(2560 + NPH - 1)//NPH}
        s_lshr_b32 s35, s35, 8
        s_lshl_b32 s36, s35, 7
        s_add_u32 s30, s30, s36
        s_mul_i32 s36, s35, {64*3840}
        s_add_u32 s31, s31, s36
        s_sub_u32 s35, 10, s35
        """)
    k.stamp(1)
    k("s_waitcnt lgkmcnt(0)")
    k.stamp(2)
    Lp = k.lab("dma"); Lw = k.lab("w"); Lb = k.lab("b")
    if E("NOHELP", 0): k("s_barrier"); k.end(SWS, 0)
    k(f"{Lp}:")
    k("s_mov_b32 m0, s32")
    k("s_add_u32 s34, s34, 1")
    for i in range(4): k(f"buffer_load_dwordx4 v{GA+i}, s[{SX}:{SX+3}], s30 offen offset:{i*1024} lds")
    k("s_add_u32 m0, s32, 16384")
    if NPH > 1:
        k("s_cmp_eq_u32 s34, s35")
        k(f"s_cselect_b32 s37, -9, 1")
        k(f"s_lshl_b32 s36, s37, 7")
        k(f"s_mul_i32 s37, s37, {64*3840}")
        k("s_add_u32 s30, s30, s36")
    else: k("s_add_u32 s30, s30, 128")
    for i in range(4): k(f"buffer_load_dwordx4 v{GB+i}, s[{SW}:{SW+3}], s31 offen offset:{i*1024} lds")
    k(f"s_add_u32 s31, s31, {'s37' if NPH > 1 else 64*3840}")
    k("s_add_u32 s32, s32, 32768")
    k("s_and_b32 s32, s32, 0x1ffff")
    if E("NODMA", 0): k(f"s_mov_b32 s{SX+2}, 0"); k(f"s_mov_b32 s{SW+2}, 0")
    if PRE == 3:
        k(f"""
        s_cmp_lt_u32 s34, 3
        s_cbranch_scc1 {Lp} ; @seq=TTN
        s_waitcnt vmcnt(16)
        s_barrier
        s_cmp_lt_u32 s34, 10
        s_cbranch_scc1 {Lp} ; @seq=TN
        """)
    elif PRE == 2:
        k(f"""
        s_bitcmp1_b32 0xa, s34
        s_cbranch_scc1 {Lp} ; @seq=TNTN
        s_cmp_lg_u32 s34, 2
        s_cbranch_scc1 {Lw} ; @seq=NT
        s_waitcnt vmcnt(8)
        {Lw}:
        s_waitcnt vmcnt(16)
        s_barrier
        s_cmp_lt_u32 s34, 10
        s_cbranch_scc1 {Lp} ; @seq=TTN
        """)
    else:
        k(f"""
        s_bitcmp1_b32 0x14, s34
        s_cbranch_scc1 {Lp} ; @seq=NTNTN
        s_cmp_gt_u32 s34, 3
        s_cbranch_scc1 {Lw} ; @seq=NNT
        s_waitcnt vmcnt(8)
        s_cmp_gt_u32 s34, 1
        s_cbranch_scc1 {Lw} ; @seq=NT
        s_waitcnt vmcnt(0)
        {Lw}:
        s_waitcnt vmcnt(16)
        s_barrier
        s_cmp_lt_u32 s34, 10
        s_cbranch_scc1 {Lp} ; @seq=TTTN
        """)
    k("""
    s_waitcnt vmcnt(8)
    s_barrier
    s_waitcnt vmcnt(0)
    s_barrier
    """)
    k.end(SWS, 0)
    k(f"{L_end}:")
    k("s_endpgm")
    return k
```

```python
from common import *

import os
AHEAD = int(os.environ.get("AHEAD", "4"))
ROT = int(os.environ.get("ROT", "0"))
SC = os.environ.get("SC", " sc1")

def loader(k, SWS, GL, nch, wbytes, idx):
    wq = wbytes // 4; slot = wbytes + 8192
    Lp = k.lab("pre"); Ll = k.lab("ll")
    k(f"""
    s_mul_i32 s26, s23, {wq}
    s_add_u32 s24, s24, s26
    s_lshl_b32 s27, s23, 11
    s_add_u32 s27, s27, {wbytes}
    s_mul_i32 s31, s30, {wbytes}
    s_add_u32 s24, s24, s31
    s_lshl_b32 s31, s30, 11
    s_add_u32 s25, s25, s31
    s_mov_b32 s28, 0
    s_mov_b32 s29, 0
    {"s_memrealtime s[88:89]" if PROF else ""}
    s_waitcnt lgkmcnt(0)
    {"s_memrealtime s[90:91]" if PROF else ""}
    s_branch {Lp}
    {Ll}:
    {f"s_cmp_lg_u32 s29, {AHEAD}" if PROF else ""}
    {f"s_cbranch_scc1 {Ll}x" if PROF else ""}
    {"s_memrealtime s[92:93]" if PROF else ""}
    s_waitcnt vmcnt({5*(AHEAD-1)})
    {"s_memrealtime s[94:95]" if PROF else ""}
    {Ll}x:
    s_waitcnt vmcnt({5*(AHEAD-1)})
    s_barrier
    {Lp}:
    s_add_u32 m0, s28, s27
    s_add_u32 s29, s29, 1
    buffer_load_dwordx4 v{GL}, s[{SWS}:{SWS+3}], s25 offen lds
    buffer_load_dwordx4 v{GL}, s[{SWS}:{SWS+3}], s25 offen offset:1024 lds
    s_add_u32 m0, s28, s26
    s_add_u32 s30, s30, 1
    buffer_load_dwordx4 v{GL}, s[{SWS}:{SWS+3}], s24 offen lds
    buffer_load_dwordx4 v{GL}, s[{SWS}:{SWS+3}], s24 offen offset:1024 lds
    """)
    if wq < 3072: k("s_mov_b32 exec_hi, 0")
    k(f"buffer_load_dwordx4 v{GL}, s[{SWS}:{SWS+3}], s24 offen offset:2048 lds")
    if wq < 3072: k("s_mov_b32 exec_hi, -1")
    k(f"""
    s_cmp_eq_u32 s30, {nch}
    s_cselect_b32 s31, {-(nch-1)}, 1
    s_cmov_b32 s30, 0
    s_mul_i32 s32, s31, {wbytes}
    s_lshl_b32 s31, s31, 11
    s_add_u32 s24, s24, s32
    s_add_u32 s25, s25, s31
    s_add_u32 s28, s28, {slot}
    s_cmp_eq_u32 s28, {8*slot}
    s_cmov_b32 s28, 0
    s_cmp_lt_u32 s29, {AHEAD}
    s_cbranch_scc1 {Lp} ; @seq={"T"*(AHEAD-1)}N
    s_cmp_lt_u32 s29, {nch}
    s_cbranch_scc1 {Ll} ; @seq=TTN
    """)
    for i in range(AHEAD):
        k(f"s_waitcnt vmcnt({5*(AHEAD-1-i)})")
        k("s_barrier")
    k("s_barrier")
    k.end(SWS, idx)

def ringloop(k, nch, nt, wbytes, LA, LB, A, B, mfma):
    slot = wbytes + 8192
    L = k.lab("loop")
    k("s_mov_b32 s27, 0")
    k.stamp(1)
    k("s_barrier")
    k.stamp(2)
    k(f"ds_read_b128 {vr(B[0],4)}, v{LB}")
    for j in range(nt): k(f"ds_read_b128 {vr(A+4*j,4)}, v{LA} offset:{j*1024}")
    k(f"{L}:")
    for s in range(2):
        if s == 1:
            k(f"""
            s_add_u32 s27, s27, 1
            s_and_b32 s25, s27, 7
            s_mov_b32 s25, {-7*slot}
            s_cmov_b32 s25, {slot}
            v_add_u32 v{LA}, s25, v{LA}
            v_add_u32 v{LB}, s25, v{LB}
            s_cmp_lt_u32 s27, {nch}
            s_barrier
            """)
        k(f"ds_read_b128 {vr(B[1-s],4)}, v{LB} offset:{(1-s)*1024}")
        for j in range(nt):
            k(f"s_waitcnt lgkmcnt({nt})")
            mfma(j, A + 4 * j, B[s])
            k(f"ds_read_b128 {vr(A+4*j,4)}, v{LA} offset:{(1-s)*nt*1024 + j*1024}")
    k(f"s_cbranch_scc1 {L}")
    k.stamp(6)
    k("s_waitcnt lgkmcnt(0)")

def gemm16(name, nks, woff, aoff, first):
    nch = nks // 2
    k = Kern(name, 256, 512, 8 * 18432)
    SWS, SRM = 12, 16
    idx = 2 if first else 4
    L_end = k.lab("end"); L_ld = k.lab("ld")
    a = Alloc(8)
    GL = a(); LA = a(); LB = a(); RM = a(); RM2 = a(); FM = a(); FM2 = a()
    RES = a(10, 2); ACC = a(20, 4); A = a(20, 4); B = [a(4, 4), a(4, 4)]
    k(f"""
    s_cmp_ge_u32 s2, 256
    s_cbranch_scc1 {L_end}
    """)
    k.stamp(0)
    load_srds(k, [("ws", SWS), ("x" if first else "out", SRM)])
    k(f"""
    v_lshrrev_b32 v1, 6, v0
    v_and_b32 v2, 63, v0
    v_readfirstlane_b32 s22, v1        ; wave
    s_bfe_u32 s20, s2, 0x20001         ; x>>1
    s_lshl_b32 s20, s20, 3
    s_bfe_u32 s30, s2, 0x30003
    s_add_u32 s20, s20, s30            ; rt
    s_and_b32 s21, s2, 1
    s_lshl_b32 s21, s21, 2
    s_lshr_b32 s31, s2, 6
    s_add_u32 s21, s21, s31            ; ct
    v_lshlrev_b32 v{GL}, 4, v2
    s_and_b32 s23, s22, 3
    s_lshl_b32 s20, s20, 2
    s_add_u32 s20, s20, s23            ; tile16
    s_cmp_ge_u32 s22, 4
    s_cbranch_scc1 {L_ld}
    v_and_b32 v3, 15, v2               ; n
    v_lshrrev_b32 v4, 4, v2            ; g
    v_mul_u32_u24 v{RM2}, 1280, v3
    v_lshl_add_u32 v{RM}, v4, 4, v{RM2}
    v_lshl_add_u32 v{RM2}, v4, 3, v{RM2}
    v_lshlrev_b32 v{FM2}, 4, v3
    v_lshl_add_u32 v{FM}, v4, 9, v{FM2}
    v_lshrrev_b32 v1, 1, v4
    v_lshl_add_u32 v{FM2}, v1, 9, v{FM2}
    v_and_b32 v1, 1, v4
    v_lshl_add_u32 v{FM2}, v1, 3, v{FM2}
    v_add_u32 v{FM2}, 4096, v{FM2}
    s_mul_i32 s26, s20, {16*1280}
    s_mul_i32 s28, s21, 160
    s_add_u32 s26, s26, s28
    s_lshr_b32 s28, s20, 1
    s_mul_i32 s28, s28, 40960
    s_and_b32 s29, s20, 1
    s_lshl_b32 s29, s29, 8
    s_add_u32 s28, s28, s29
    s_mul_i32 s29, s21, 5120
    s_add_u32 s28, s28, s29
    s_add_u32 s28, s28, {HF_OFF}
    s_waitcnt lgkmcnt(0)
    """)
    def rw(op, rm):
        sc = SC if op == "store" and first else ""
        if rm:
            k(f"buffer_{op}_dwordx4 v[{RES}:{RES+3}], v{RM}, s[{SRM}:{SRM+3}], s26 offen{sc}")
            k(f"buffer_{op}_dwordx4 v[{RES+4}:{RES+7}], v{RM}, s[{SRM}:{SRM+3}], s26 offen offset:64{sc}")
            k(f"buffer_{op}_dwordx2 v[{RES+8}:{RES+9}], v{RM2}, s[{SRM}:{SRM+3}], s26 offen offset:128{sc}")
        else:
            k(f"buffer_{op}_dwordx4 v[{RES}:{RES+3}], v{FM}, s[{SWS}:{SWS+3}], s28 offen{sc}")
            k(f"buffer_{op}_dwordx4 v[{RES+4}:{RES+7}], v{FM}, s[{SWS}:{SWS+3}], s28 offen offset:2048{sc}")
            k(f"buffer_{op}_dwordx2 v[{RES+8}:{RES+9}], v{FM2}, s[{SWS}:{SWS+3}], s28 offen{sc}")
    rw("load", first)
    k(f"""
    v_mov_b32 v{LA}, v{GL}
    s_lshl_b32 s25, s23, 11
    s_add_u32 s25, s25, 10240
    v_add_u32 v{LB}, s25, v{GL}
    s_waitcnt vmcnt(0)
    """)
    for i in range(10):
        k(f"v_lshlrev_b32 v{ACC+2*i}, 16, v{RES+i}")
        k(f"v_and_b32 v{ACC+2*i+1}, 0xffff0000, v{RES+i}")
    ringloop(k, nch, 5, 10240, LA, LB, A, B,
             lambda j, ra, rb: k(f"v_mfma_f32_16x16x32_bf16 {vr(ACC+4*j,4)}, {vr(ra,4)}, {vr(rb,4)}, {vr(ACC+4*j,4)}"))
    for i in range(10):
        k(f"v_cvt_pk_bf16_f32 v{RES+i}, v{ACC+2*i}, v{ACC+2*i+1}")
    rw("store", not first)
    if first:
        k(f"""
        v_mov_b32 v5, 0x3f803f80
        v_mov_b32 v6, 0
        v_mov_b32 v7, 0
        """)
        for i in range(10):
            k(f"v_dot2_f32_bf16 v6, v{RES+i}, v5, v6")
            k(f"v_dot2_f32_bf16 v7, v{RES+i}, v{RES+i}, v7")
        k(f"""
        s_lshl_b32 s29, s21, 14
        s_lshl_b32 s20, s20, 7
        s_add_u32 s29, s29, s20
        s_add_u32 s29, s29, {ST_OFF}
        v_lshrrev_b32 v1, 5, v2
        v_lshlrev_b32 v1, 2, v1
        v_lshl_add_u32 v1, v3, 3, v1
        v_permlane32_swap_b32 v6, v7
        v_add_f32 v6, v6, v7
        v_mov_b32 v7, v6
        v_permlane16_swap_b32 v6, v7
        v_add_f32 v6, v6, v7
        buffer_store_dword v6, v1, s[{SWS}:{SWS+3}], s29 offen
        """)
    k.end(SWS, idx)
    k(f"""
    {L_ld}:
    s_mul_i32 s24, s21, {nks*5120}
    s_add_u32 s24, s24, {woff}
    s_mul_i32 s25, s20, {nks*1024}
    s_add_u32 s25, s25, {aoff}
    """)
    rot(k, nch)
    loader(k, SWS, GL, nch, 10240, idx)
    k(f"{L_end}:")
    k("s_endpgm")
    return k

def rot(k, nch):
    if ROT: k(f"s_lshl_b32 s31, s31, 1\ns_add_u32 s30, s30, s31\ns_and_b32 s30, s30, 7\ns_mul_i32 s30, s30, {nch}\ns_lshr_b32 s30, s30, 3")
    else: k("s_mov_b32 s30, 0")

def build_k4():
    k = Kern("ffn1_kernel", 256, 512, 163840)
    SWS = 12
    L_end = k.lab("end"); L_ld = k.lab("ld")
    a = Alloc(8)
    GL = a(); LA = a(); LB = a()
    ST = a(8, 4); MN = a(8, 4); A = a(24, 4); CSF = A; B = [a(4, 4), a(4, 4)]; ACC = a(96, 4)
    k(f"""
    s_cmp_ge_u32 s2, 256
    s_cbranch_scc1 {L_end}
    """)
    k.stamp(0)
    load_srds(k, [("ws", SWS)])
    k(f"""
    v_lshrrev_b32 v1, 6, v0
    v_and_b32 v2, 63, v0
    v_readfirstlane_b32 s22, v1        ; wave
    s_and_b32 s20, s2, 1
    s_lshl_b32 s20, s20, 3
    s_bfe_u32 s30, s2, 0x30003
    s_add_u32 s20, s20, s30
    s_bfe_u32 s21, s2, 0x20001
    s_lshl_b32 s21, s21, 2
    s_lshr_b32 s31, s2, 6
    s_add_u32 s21, s21, s31            ; ct
    v_lshlrev_b32 v{GL}, 4, v2
    s_and_b32 s23, s22, 3
    s_lshl_b32 s20, s20, 2
    s_add_u32 s20, s20, s23            ; tile32
    s_mul_i32 s24, s21, {41*6144}
    s_add_u32 s24, s24, {W13F_OFF}
    s_cmp_ge_u32 s22, 4
    s_cbranch_scc1 {L_ld}
    v_and_b32 v3, 31, v2               ; m
    v_lshrrev_b32 v4, 5, v2            ; hf
    v_lshlrev_b32 v1, 16, v4
    v_lshl_add_u32 v1, v3, 3, v1
    s_lshl_b32 s25, s20, 8
    s_add_u32 s25, s25, {ST_OFF}
    s_add_u32 s26, s25, 16384
    s_add_u32 s27, s25, 32768
    s_add_u32 s28, s25, 49152
    s_add_u32 s29, s24, 3072
    s_waitcnt lgkmcnt(0)
    """)
    for i in range(4): k(f"buffer_load_dwordx2 v[{ST+2*i}:{ST+2*i+1}], v1, s[{SWS}:{SWS+3}], s{25+i} offen")
    for j in range(6): k(f"buffer_load_dwordx4 v[{CSF+4*j}:{CSF+4*j+3}], v{GL}, s[{SWS}:{SWS+3}], s{24 if j < 3 else 29} offen offset:{(j%3)*1024}")
    k(f"""
    v_mov_b32 v{LA}, v{GL}
    s_lshl_b32 s25, s23, 11
    s_add_u32 s25, s25, 12288
    v_add_u32 v{LB}, s25, v{GL}
    v_lshrrev_b32 v1, 4, v3
    v_mul_u32_u24 v1, {192*256}, v1
    v_and_b32 v5, 15, v3
    v_lshl_add_u32 v1, v5, 4, v1
    v_lshl_add_u32 v3, v4, 8, v1
    s_mul_i32 s26, s20, {2*192*256}
    s_mul_i32 s27, s21, {12*256}
    s_add_u32 s26, s26, s27
    s_add_u32 s26, s26, {HH_OFF}
    s_waitcnt vmcnt(6)
    v_pk_add_f32 v[{ST}:{ST+1}], v[{ST}:{ST+1}], v[{ST+2}:{ST+3}]
    v_pk_add_f32 v[{ST+4}:{ST+5}], v[{ST+4}:{ST+5}], v[{ST+6}:{ST+7}]
    v_pk_add_f32 v[{ST}:{ST+1}], v[{ST}:{ST+1}], v[{ST+4}:{ST+5}]
    v_mov_b32 v{ST+2}, v{ST}
    v_mov_b32 v{ST+3}, v{ST+1}
    v_permlane32_swap_b32 v{ST}, v{ST+2}
    v_permlane32_swap_b32 v{ST+1}, v{ST+3}
    v_pk_add_f32 v[{ST}:{ST+1}], v[{ST}:{ST+1}], v[{ST+2}:{ST+3}]
    v_mul_f32 v{ST}, {f32(-1.0/640)}, v{ST}          ; -mean
    v_mul_f32 v{ST+1}, {f32(1.0/640)}, v{ST+1}
    v_fma_f32 v{ST+1}, -v{ST}, v{ST}, v{ST+1}
    v_max_f32 v{ST+1}, 0, v{ST+1}
    v_add_f32 v{ST+1}, {f32(1e-5)}, v{ST+1}
    v_rsq_f32 v{ST+4}, v{ST+1}
    v_cvt_pk_bf16_f32 v{MN}, v{ST}, v{ST}
    v_and_b32 v{ST+3}, 0xffff0000, v{MN}
    v_sub_f32 v{ST+3}, v{ST}, v{ST+3}
    v_cvt_pk_bf16_f32 v{MN+4}, v{ST+3}, v{ST+3}
    v_mov_b32 v{MN+1}, v{MN}
    v_mov_b32 v{MN+2}, v{MN}
    v_mov_b32 v{MN+3}, v{MN}
    v_mov_b32 v{MN+5}, v{MN+4}
    v_mov_b32 v{MN+6}, v{MN+4}
    v_mov_b32 v{MN+7}, v{MN+4}
    v_mul_f32 v{ST+6}, v{ST+4}, v{ST+4}              ; rstd^2
    v_mul_f32 v{ST+4}, {f32(-LOG2E)}, v{ST+4}        ; -log2e*rstd
    s_waitcnt vmcnt(0)
    """)
    for j in range(6): k(f"v_mfma_f32_32x32x16_bf16 {vr(ACC+16*j,16)}, {vr(CSF+4*j,4)}, {vr(MN,4)}, 0")
    for j in range(6): k(f"v_mfma_f32_32x32x16_bf16 {vr(ACC+16*j,16)}, {vr(CSF+4*j,4)}, {vr(MN+4,4)}, {vr(ACC+16*j,16)}")
    ringloop(k, 20, 6, 12288, LA, LB, A, B,
             lambda j, ra, rb: k(f"v_mfma_f32_32x32x16_bf16 {vr(ACC+16*j,16)}, {vr(ra,4)}, {vr(rb,4)}, {vr(ACC+16*j,16)}"))
    T = A
    for p in range(3):
        G = ACC + 32 * p; U = G + 16
        for h in range(2):
            t = T + 8 * h; g = G + 8 * h; u = U + 8 * h
            for i in range(0, 8, 2): k(f"v_pk_mul_f32 v[{t+i}:{t+i+1}], v[{g+i}:{g+i+1}], v[{ST+4}:{ST+5}] op_sel_hi:[1,0]")
            for i in range(8): k(f"v_exp_f32 v{t+i}, v{t+i}")
            for i in range(0, 8, 2): k(f"v_pk_mul_f32 v[{g+i}:{g+i+1}], v[{g+i}:{g+i+1}], v[{u+i}:{u+i+1}]")
            for i in range(0, 8, 2): k(f"v_pk_add_f32 v[{t+i}:{t+i+1}], v[{t+i}:{t+i+1}], 1.0 op_sel_hi:[1,0]")
            for i in range(8): k(f"v_rcp_f32 v{t+i}, v{t+i}")
            for i in range(0, 8, 2): k(f"v_pk_mul_f32 v[{g+i}:{g+i+1}], v[{g+i}:{g+i+1}], v[{ST+6}:{ST+7}] op_sel_hi:[1,0]")
            for i in range(0, 8, 2): k(f"v_pk_mul_f32 v[{g+i}:{g+i+1}], v[{g+i}:{g+i+1}], v[{t+i}:{t+i+1}]")
            for i in range(4): k(f"v_cvt_pk_bf16_f32 v{u+i}, v{g+2*i}, v{g+2*i+1}")
            k(f"buffer_store_dwordx4 {vr(u,4)}, v3, s[{SWS}:{SWS+3}], s26 offen offset:{(4*p+2*h)*256}{SC}")
    k.end(SWS, 3)
    k(f"""
    {L_ld}:
    s_add_u32 s24, s24, 6144
    s_mul_i32 s25, s20, 40960
    s_add_u32 s25, s25, {HF_OFF}
    """)
    rot(k, 20)
    loader(k, SWS, GL, 20, 12288, 3)
    k(f"{L_end}:")
    k("s_endpgm")
    return k

def build_k345():
    return [gemm16("oproj_kernel", 20, WOF_OFF, OF_OFF, True), build_k4(), gemm16("ffn2_kernel", 48, W2F_OFF, HH_OFF, False)]
```

```python
from common import *
E = lambda n, d: int(os.environ.get(n, d))

def build_k1():
    k = Kern("qkv_kernel", 240, 512, 4 * 32768 + 2048)
    SX, SW, SWS = 12, 16, 20
    STAT = 4 * 32768
    PF = E("PF", 0); PRE = E("PRE", 2); PART = E("PART", 1); QSC = os.environ.get("QSC", ""); VSC = os.environ.get("VSC", " sc1")
    L_end = k.lab("end"); L_help = k.lab("help")
    k(f"""
    s_cmp_ge_u32 s2, 240
    s_cbranch_scc1 {L_end}
    """)
    k.stamp(0)
    load_srds(k, [("x", SX), ("wqkv", SW), ("ws", SWS)])
    k(f"""
    v_lshrrev_b32 v1, 6, v0
    v_and_b32 v2, 63, v0         ; lane
    v_readfirstlane_b32 s26, v1  ; wave
    s_lshr_b32 s38, s2, 3        ; j = 0..29
    s_bfe_u32 s39, s2, 0x20001
    s_and_b32 s40, s2, 1
    s_lshl_b32 s27, s40, 3
    s_lshr_b32 s25, s38, 2
    s_add_u32 s25, s25, s27
    s_and_b32 s24, s38, 3
    s_lshl_b32 s27, s40, 1
    s_add_u32 s27, s27, s24
    s_cmp_ge_u32 s38, 28
    s_cmov_b32 s25, 7            ; ct
    s_cmov_b32 s24, s27
    s_lshl_b32 s27, s39, 2
    s_add_u32 s24, s24, s27      ; rt
    s_cmp_ge_u32 s26, 4
    s_cbranch_scc1 {L_help}
    """)
    a = Alloc(8)
    XA = a(4); XB = a(4); WA = a(2); SEL = a(4); CS = a(4); RS = a(4); SQ = a(8); OFF = a(8)
    FB = [a(16, 4), a(16, 4)]
    ACC = a(64, 4); RV2 = a(16, 4); PD = a(4); PA = a()
    Lx = k.lab("pfx"); Lj = k.lab("pfj")
    if PF == 4:
        k(f"""
        s_mul_i32 s41, s26, {64*9600}
        s_mul_i32 s42, s38, 320
        s_add_u32 s41, s41, s42
        v_mul_u32_u24 v{PA}, 9600, v2
        s_waitcnt lgkmcnt(0)
        buffer_load_dword v{PD}, v{PA}, s[{SW}:{SW+3}], s41 offen
        """)
    elif PF:
        k(f"""
        s_lshl_b32 s41, s38, 2
        s_add_u32 s41, s41, s26      ; w'
        s_cmp_lt_u32 s38, 10
        s_cbranch_scc1 {Lx}
        v_lshrrev_b32 v6, 4, v2
        v_mul_u32_u24 v6, {3840-2048}, v6
        v_lshl_add_u32 v{PA}, v2, 7, v6
        s_mul_i32 s41, s41, {4*3840}
        s_mul_i32 s42, s40, 1792
        s_add_u32 s41, s41, s42
        s_sub_u32 s41, s41, {40*4*3840}
        s_add_u32 s42, s41, {320*3840}
        s_waitcnt lgkmcnt(0)
        s_mov_b64 s[44:45], s[{SW}:{SW+1}]
        s_mov_b32 s46, {SIZE['wqkv']}
        s_branch {Lj}
        {Lx}:
        v_mul_u32_u24 v{PA}, 1280, v2
        s_lshl_b32 s42, s39, 3
        s_and_b32 s43, s41, 7
        s_add_u32 s42, s42, s43
        s_mul_i32 s42, s42, {64*1280}
        s_lshr_b32 s41, s41, 3
        s_lshl_b32 s41, s41, 7
        s_add_u32 s41, s41, s42
        s_add_u32 s42, s41, 640
        s_waitcnt lgkmcnt(0)
        s_mov_b64 s[44:45], s[{SX}:{SX+1}]
        s_mov_b32 s46, {SIZE['x']}
        {Lj}:
        s_mov_b32 s47, 0x00020000
        buffer_load_dword v{PD}, v{PA}, s[44:47], s41 offen
        """)
        if PF == 1: k(f"buffer_load_dword v{PD+1}, v{PA}, s[44:47], s42 offen")
        k("s_mov_b32 s43, s42")
    T0 = FB[0]
    k(f"""
    v_and_b32 v3, 31, v2         ; m
    v_lshrrev_b32 v4, 5, v2      ; hf
    v_bfe_u32 v5, v3, 1, 3
    v_xor_b32 v5, v5, v4
    v_lshlrev_b32 v5, 4, v5
    v_lshl_add_u32 v5, v3, 7, v5
    s_lshr_b32 s27, s26, 1       ; wr
    s_and_b32 s28, s26, 1        ; wc
    s_lshl_b32 s29, s26, 12
    v_add_u32 v{XA}, s29, v5
    v_xor_b32 v{XA+1}, 32, v{XA}
    v_xor_b32 v{XA+2}, 64, v{XA}
    v_xor_b32 v{XA+3}, 0x60, v{XA}
    v_xor_b32 v{XB}, 0x1000, v{XA}
    v_xor_b32 v{XB+1}, 0x1000, v{XA+1}
    v_xor_b32 v{XB+2}, 0x1000, v{XA+2}
    v_xor_b32 v{XB+3}, 0x1000, v{XA+3}
    v_bfe_u32 v6, v2, 2, 2       ; r
    v_lshl_add_u32 v7, v4, 3, v6 ; row
    v_lshlrev_b32 v7, 8, v7
    v_bfe_u32 v1, v2, 4, 1
    v_lshl_add_u32 v7, v1, 5, v7
    v_and_b32 v1, 3, v2
    v_lshl_add_u32 v7, v1, 3, v7
    v_add_u32 v7, 16384, v7
    s_lshl_b32 s30, s28, 1
    s_add_u32 s30, s30, s27      ; n0
    s_xor_b32 s31, s30, 1        ; n1
    v_xor_b32 v1, s30, v6
    v_lshl_add_u32 v{WA}, v1, 6, v7
    v_xor_b32 v{WA+1}, 64, v{WA}
    ; selector
    v_lshrrev_b32 v1, 2, v2
    v_lshrrev_b32 v6, 4, v2
    v_xor_b32 v1, v1, v6
    v_and_b32 v1, 1, v1
    v_add_u32 v1, -1, v1
    v_and_b32 v{SEL}, 0x3f803f80, v1
    v_mov_b32 v{SEL+1}, v{SEL}
    v_mov_b32 v{SEL+2}, v{SEL}
    v_mov_b32 v{SEL+3}, v{SEL}
    v_and_b32 v1, 3, v2
    v_cmp_eq_u32 s[48:49], 1, v1
    v_cmp_eq_u32 s[50:51], 2, v1
    v_cmp_eq_u32 s[52:53], 3, v1
    """)
    code_prefetch(k, 26, PD + 2)
    for i in range(16): k(f"v_mov_b32 v{CS+i}, 0")
    for i in range(64): k(f"v_mov_b32 v{ACC+i}, 0")
    if PF == 2: k(f"buffer_load_dword v{PD+1}, v{PA}, s[44:47], s43 offen")
    L_V = k.lab("v")
    k(f"""
    s_lshl_b32 s32, s24, 2
    s_add_u32 s32, s32, s26
    s_xor_b32 s33, s32, 1
    s_mul_i32 s32, s32, {TS}
    s_mul_i32 s33, s33, {TS}
    s_cmp_ge_u32 s25, 10
    s_cbranch_scc1 {L_V}
    """)
    NORD = E("NORD", 0)
    def rd0(buf, off, s):
        b = FB[buf]
        if NORD: return
        k(f"ds_read_b64_tr_b16 v[{b+8}:{b+9}], v{WA} offset:{off + s*4096}")
        k(f"ds_read_b64_tr_b16 v[{b+10}:{b+11}], v{WA} offset:{off + s*4096 + 1024}")
        k(f"ds_read_b128 v[{b}:{b+3}], v{XA+s} offset:{off}")
    def rd1(buf, off, s):
        b = FB[buf]
        if NORD: return
        k(f"ds_read_b128 v[{b+4}:{b+7}], v{XB+s} offset:{off}")
        k(f"ds_read_b64_tr_b16 v[{b+12}:{b+13}], v{WA+1} offset:{off + s*4096}")
        k(f"ds_read_b64_tr_b16 v[{b+14}:{b+15}], v{WA+1} offset:{off + s*4096 + 1024}")
    def acc(ts, ns): return ACC + (ts * 2 + ns) * 16
    def mm(buf, ts, ns, isv):
        b = FB[buf]
        x = vr(b + 4 * ts, 4); w = vr(b + 8 + 4 * ns, 4); c = vr(acc(ts, ns), 16)
        if os.environ.get("FAKE16"):
            o = acc(ts, ns) + 8 * buf
            k(f"v_mfma_f32_16x16x32_bf16 {vr(o,4)}, {x}, {w}, {vr(o,4)}")
            k(f"v_mfma_f32_16x16x32_bf16 {vr(o+4,4)}, {w}, {x}, {vr(o+4,4)}")
            return
        k(f"v_mfma_f32_32x32x16_bf16 {c}, {x if isv else w}, {w if isv else x}, {c}")
    SM = os.environ.get("SM", "qQrc")
    def stats(buf):
        b = FB[buf]
        for ch in SM:
            h = 1 if ch == "Q" else 0
            if ch in "qQ": k(f"v_mfma_f32_4x4x4_16b_bf16 {vr(SQ+4*h,4)}, {vr(b+2*h,2)}, {vr(b+2*h,2)}, {vr(SQ+4*h,4)}")
            if ch == "r": k(f"v_mfma_f32_16x16x32_bf16 {vr(RS,4)}, {vr(SEL,4)}, {vr(b,4)}, {vr(RS,4)}")
            if ch == "c": k(f"v_mfma_f32_16x16x32_bf16 {vr(CS,4)}, {vr(SEL,4)}, {vr(b+8,4)}, {vr(CS,4)}")
    def tog(regs):
        for r in regs: k(f"v_xor_b32 v{r}, 0x10000, v{r}")
    def mainloop(isv):
        L = k.lab("loop"); Lin = k.lab("in")
        k("s_mov_b32 s34, 5")
        k("s_waitcnt lgkmcnt(0)")
        k.stamp(1)
        k("s_barrier")
        k.stamp(2)
        if PF == 3: k(f"buffer_load_dword v{PD+1}, v{PA}, s[44:47], s43 offen")
        rd0(0, 0, 0); rd1(0, 0, 0)
        k(f"s_branch {Lin}")
        nxt = lambda t: ((t + 1) & 1, ((t + 1) >> 2 & 1) * 32768, (t + 1) & 3)
        def head(t):
            b = t & 1
            k("s_waitcnt lgkmcnt(3)")
            mm(b, 0, 0, isv)
            if t & 3 == 3:
                k("s_waitcnt lgkmcnt(0)")
                if not E("NOBAR", 0): k("s_barrier")
            rd0(*nxt(t))
            stats(b)
        def tail(t):
            b = t & 1
            if t & 3 != 3: k("s_waitcnt lgkmcnt(3)")
            mm(b, 1, 0, isv)
            rd1(*nxt(t))
            mm(b, 0, 1, isv)
            if 3 <= t <= 6: tog([XA + t - 3, XB + t - 3])
            if t == 6: tog([WA, WA + 1]); k("s_sub_u32 s34, s34, 1"); k("s_cmp_lg_u32 s34, 0")
            mm(b, 1, 1, isv)
        k(f"{L}:")
        tail(7)
        k(f"{Lin}:")
        for t in range(7): head(t); tail(t)
        head(7)
        k(f"s_cbranch_scc1 {L}")
        k.stamp(3)
        T = SEL
        mm(1, 1, 0, isv)
        k(f"""
        s_lshl_b32 s35, s30, 8
        v_lshl_add_u32 v1, v3, 3, s35
        v_add_u32 v1, {STAT+1024}, v1
        s_lshl_b32 s35, s26, 7
        v_lshl_add_u32 v7, v3, 2, s35
        v_add_u32 v7, {STAT}, v7
        v_pk_add_f32 v[{SQ}:{SQ+1}], v[{SQ}:{SQ+1}], v[{SQ+4}:{SQ+5}]
        v_pk_add_f32 v[{SQ+2}:{SQ+3}], v[{SQ+2}:{SQ+3}], v[{SQ+6}:{SQ+7}]
        """)
        mm(1, 0, 1, isv)
        k(f"""
        v_cndmask_b32 v{SQ}, v{SQ}, v{SQ+1}, s[48:49]
        v_cndmask_b32 v{SQ}, v{SQ}, v{SQ+2}, s[50:51]
        v_cndmask_b32 v{SQ}, v{SQ}, v{SQ+3}, s[52:53]
        v_mul_f32 v{RS}, {f32(-1.0/640)}, v{RS}          ; -mean
        v_mov_b32 v{SQ+1}, v{SQ}
        v_cvt_pk_bf16_f32 v{T}, v{CS}, v{CS}
        """)
        mm(1, 1, 1, isv)
        k(f"""
        v_permlane32_swap_b32 v{SQ}, v{SQ+1}
        v_and_b32 v{T+2}, 0xffff0000, v{T}
        v_add_f32 v{SQ}, v{SQ}, v{SQ+1}
        v_sub_f32 v{T+2}, v{CS}, v{T+2}
        v_mul_f32 v{SQ}, {f32(1.0/640)}, v{SQ}
        v_cvt_pk_bf16_f32 v{T+1}, v{T+2}, v{T+2}
        v_fma_f32 v{SQ}, -v{RS}, v{RS}, v{SQ}          ; var
        ds_write_b64 v1, v[{T}:{T+1}]
        v_cvt_pk_bf16_f32 v{RS+1}, v{RS}, v{RS}
        v_max_f32 v{SQ}, 0, v{SQ}
        v_and_b32 v{RS+1}, 0xffff0000, v{RS+1}
        v_add_f32 v{SQ}, {f32(1e-5)}, v{SQ}
        v_sub_f32 v{RS+1}, v{RS}, v{RS+1}
        v_rsq_f32 v{SQ}, v{SQ}
        v_cvt_pk_bf16_f32 v{RS}, v{RS}, v{RS+1}
        ds_write_b32 v7, v{RS}
        ds_write_b32 v7, v{SQ} offset:512
        v_xor_b32 v6, 256, v1
        v_xor_b32 v7, 128, v7
        v_add_u32 v4, -1, v4          ; hf==0 ? ~0 : 0
        v_mov_b32 v{RS+1}, v{RS}
        s_waitcnt lgkmcnt(0)
        s_barrier
        ds_read_b64 v[{T+2}:{T+3}], v6
        ds_read_b32 v{RS+2}, v7
        """)
    def ext_mfma(isv, nwait):
        T = SEL
        def em(ts, ns):
            x = vr(RS + 2 * ts, 2); w = vr(T + 2 * ns, 2); c = vr(acc(ts, ns), 16)
            k(f"v_mfma_f32_32x32x8_bf16 {c}, {x if isv else w}, {w if isv else x}, {c}")
        k(f"""
        v_and_b32 v{T}, v{T}, v4
        v_and_b32 v{T+1}, v{T+1}, v4
        """)
        em(0, 0)
        k(f"""
        s_waitcnt lgkmcnt({nwait})
        v_mov_b32 v{RS+3}, v{RS+2}
        v_and_b32 v{T+2}, v{T+2}, v4
        v_and_b32 v{T+3}, v{T+3}, v4
        """)
        em(1, 0); em(0, 1); em(1, 1)
    k(f"""
    s_cmp_ge_u32 s25, 5
    s_cselect_b32 s35, 5, 0
    s_cselect_b32 s36, 0, {Q_OFF}
    s_cselect_b32 s37, 1.0, {f32(LOG2E * 20 ** -0.5)}
    s_sub_u32 s29, s25, s35
    s_add_u32 s32, s32, s36
    s_add_u32 s33, s33, s36
    s_lshl_b32 s29, s29, 5       ; (ct%5)*32
    """)
    for ns in range(2):
        k(f"s_lshl_b32 s35, s{30+ns}, 3")
        k(f"s_add_u32 s35, s35, s29")
        for rq in range(4):
            o = OFF + ns * 4 + rq
            k(f"""
            v_add3_u32 v1, v4, s35, {2*rq}     ; g4
            v_mul_u32_u24 v6, 205, v1
            v_lshrrev_b32 v6, 10, v6           ; head
            v_mul_u32_u24 v7, 5, v6
            v_sub_u32 v1, v1, v7               ; p
            v_mul_u32_u24 v6, {HS}, v6
            v_and_b32 v7, 1, v1
            v_lshl_add_u32 v6, v7, 9, v6
            v_bfe_u32 v7, v1, 1, 1
            v_lshl_add_u32 v6, v7, 3, v6
            v_lshrrev_b32 v1, 2, v1            ; p==4
            v_lshl_add_u32 v6, v1, 10, v6
            v_sub_u32 v1, 4, v1
            v_lshlrev_b32 v1, v1, v3
            v_add_u32 v{o}, v6, v1
            """)
    if E("TW", 0):
        k("s_waitcnt lgkmcnt(0)")
        for i in (0, 3, 4, 7): k(f"buffer_load_dword v{PD+3}, v{OFF+i}, s[{SWS}:{SWS+3}], s32 offen")
    mainloop(False)
    k(f"ds_read_b32 v{SQ+2}, v7 offset:512")
    k(f"v_mul_f32 v{SQ}, s37, v{SQ}")
    ext_mfma(False, 1)
    k("s_waitcnt lgkmcnt(0)")
    k(f"v_mul_f32 v{SQ+2}, s37, v{SQ+2}")
    for ns in range(2):
        for ts in range(2):
            c = acc(ts, ns)
            for i in range(0, 16, 2):
                k(f"v_pk_mul_f32 v[{c+i}:{c+i+1}], v[{c+i}:{c+i+1}], v[{SQ+2*ts}:{SQ+2*ts+1}] op_sel_hi:[1,0]")
            for i in range(8):
                k(f"v_cvt_pk_bf16_f32 v{c+i}, v{c+2*i}, v{c+2*i+1}")
            for rq in range(4):
                k(f"buffer_store_dwordx2 v[{c+2*rq}:{c+2*rq+1}], v{OFF+ns*4+rq}, s[{SWS}:{SWS+3}], s{32+ts} offen{QSC}")
    k.end(SWS, 0)
    k(f"{L_V}:")
    k(f"""
    s_sub_u32 s29, s25, 10
    s_lshl_b32 s29, s29, 7
    """)
    for ns in range(2):
        k(f"""
        s_lshl_b32 s35, s{30+ns}, 5
        s_add_u32 s35, s35, s29
        v_add_u32 v1, s35, v3
        v_mul_u32_u24 v6, 3277, v1
        v_lshrrev_b32 v6, 16, v6           ; head
        v_mul_u32_u24 v7, 20, v6
        v_sub_u32 v1, v1, v7               ; d
        v_mul_u32_u24 v6, {HS}, v6
        v_lshl_add_u32 v6, v1, 4, v6
        v_mul_u32_u24 v1, 320, v4
        v_add_u32 v{OFF+ns}, v6, v1
        """)
    k(f"""
    s_lshl_b32 s35, s26, 7
    s_add_u32 s35, s35, {STAT+512}
    v_lshl_add_u32 v{OFF+2}, v4, 4, s35
    v_xor_b32 v{OFF+3}, 128, v{OFF+2}
    """)
    if E("TW", 0):
        k("s_waitcnt lgkmcnt(0)")
        for i in (0, 1): k(f"buffer_load_dword v{PD+3}, v{OFF+i}, s[{SWS}:{SWS+3}], s32 offen offset:1280")
    mainloop(True)
    RV = FB[0]
    for ts in range(2):
        for rq in range(4):
            r = (RV, RV2)[ts] + 4 * rq
            k(f"ds_read_b128 v[{r}:{r+3}], v{OFF+2+ts} offset:{rq*32}")
    ext_mfma(True, 8)
    for ns in range(2):
        for ts in range(2):
            c = acc(ts, ns); r = (RV, RV2)[ts]
            if ns == 0: k(f"s_waitcnt lgkmcnt({4 - 4*ts})")
            for i in range(0, 16, 2):
                k(f"v_pk_mul_f32 v[{c+i}:{c+i+1}], v[{c+i}:{c+i+1}], v[{r+i}:{r+i+1}]")
            for i in range(8):
                k(f"v_cvt_pk_bf16_f32 v{c+i}, v{c+2*i}, v{c+2*i+1}")
            for s in range(2):
                k(f"buffer_store_dwordx4 v[{c+4*s}:{c+4*s+3}], v{OFF+ns}, s[{SWS}:{SWS+3}], s{32+ts} offen offset:{1280 + s*640}{VSC}")
    k.end(SWS, 0)
    k(f"{L_help}:")
    a = Alloc(8)
    GA = a(4); GB = a(4)
    k(f"""
    s_sub_u32 s26, s26, 4        ; w
    v_lshrrev_b32 v1, 3, v2
    v_mul_u32_u24 v1, 1280, v1
    v_and_b32 v6, 7, v2
    v_lshrrev_b32 v7, 4, v2
    v_xor_b32 v6, v6, v7
    v_lshl_add_u32 v{GA}, v6, 4, v1
    v_xor_b32 v6, 4, v6
    v_lshl_add_u32 v{GA+1}, v6, 4, v1
    v_add_u32 v{GA+1}, {10240-1024}, v{GA+1}
    v_add_u32 v{GA+2}, {2*(10240-1024)}, v{GA}
    v_add_u32 v{GA+3}, {2*(10240-1024)}, v{GA+1}
    s_lshl_b32 s30, s24, 2
    s_add_u32 s30, s30, s26
    s_mul_i32 s30, s30, {32*1280}     ; A soffset
    v_mul_u32_u24 v1, 3840, v7
    v_lshlrev_b32 v7, 2, v7
    v_and_b32 v6, 15, v2
    v_xor_b32 v6, v6, v7
    v_lshl_add_u32 v{GB}, v6, 4, v1
    v_add_u32 v{GB+1}, {15360-1024}, v{GB}
    v_add_u32 v{GB+2}, {2*(15360-1024)}, v{GB}
    v_add_u32 v{GB+3}, {3*(15360-1024)}, v{GB}
    s_mul_i32 s31, s26, {16*3840}
    s_lshl_b32 s27, s25, 8
    s_add_u32 s31, s31, s27           ; B soffset
    s_lshl_b32 s32, s26, 12
    s_mov_b32 s34, 0
    """)
    NPH = E("NPH", 4)
    if NPH > 1:
        if NPH == 8: k("s_lshl_b32 s35, s24, 1"); k("s_add_u32 s35, s35, s25")
        else: k("s_add_u32 s35, s24, s25")
        if NPH in (2, 4, 8): k(f"s_and_b32 s35, s35, {NPH-1}")
        else:
            k(f"s_mul_i32 s36, s35, {(256 + NPH - 1)//NPH}"); k("s_lshr_b32 s36, s36, 8"); k(f"s_mul_i32 s36, s36, {NPH}"); k("s_sub_u32 s35, s35, s36")
        k(f"""
        s_mul_i32 s35, s35, {(2560 + NPH - 1)//NPH}
        s_lshr_b32 s35, s35, 8
        s_lshl_b32 s36, s35, 7
        s_add_u32 s30, s30, s36
        s_mul_i32 s36, s35, {64*3840}
        s_add_u32 s31, s31, s36
        s_sub_u32 s35, 10, s35
        """)
    k.stamp(1)
    k("s_waitcnt lgkmcnt(0)")
    k.stamp(2)
    Lp = k.lab("dma"); Lw = k.lab("w"); Lb = k.lab("b")
    if E("NOHELP", 0): k("s_barrier"); k.end(SWS, 0)
    k(f"{Lp}:")
    k("s_mov_b32 m0, s32")
    k("s_add_u32 s34, s34, 1")
    for i in range(4): k(f"buffer_load_dwordx4 v{GA+i}, s[{SX}:{SX+3}], s30 offen offset:{i*1024} lds")
    k("s_add_u32 m0, s32, 16384")
    if NPH > 1:
        k("s_cmp_eq_u32 s34, s35")
        k(f"s_cselect_b32 s37, -9, 1")
        k(f"s_lshl_b32 s36, s37, 7")
        k(f"s_mul_i32 s37, s37, {64*3840}")
        k("s_add_u32 s30, s30, s36")
    else: k("s_add_u32 s30, s30, 128")
    for i in range(4): k(f"buffer_load_dwordx4 v{GB+i}, s[{SW}:{SW+3}], s31 offen offset:{i*1024} lds")
    k(f"s_add_u32 s31, s31, {'s37' if NPH > 1 else 64*3840}")
    k("s_add_u32 s32, s32, 32768")
    k("s_and_b32 s32, s32, 0x1ffff")
    if E("NODMA", 0): k(f"s_mov_b32 s{SX+2}, 0"); k(f"s_mov_b32 s{SW+2}, 0")
    if PRE == 3:
        k(f"""
        s_cmp_lt_u32 s34, 3
        s_cbranch_scc1 {Lp} ; @seq=TTN
        s_waitcnt vmcnt(16)
        s_barrier
        s_cmp_lt_u32 s34, 10
        s_cbranch_scc1 {Lp} ; @seq=TN
        """)
    elif PRE == 2:
        k(f"""
        s_bitcmp1_b32 0xa, s34
        s_cbranch_scc1 {Lp} ; @seq=TNTN
        s_cmp_lg_u32 s34, 2
        s_cbranch_scc1 {Lw} ; @seq=NT
        s_waitcnt vmcnt(8)
        {Lw}:
        s_waitcnt vmcnt(16)
        s_barrier
        s_cmp_lt_u32 s34, 10
        s_cbranch_scc1 {Lp} ; @seq=TTN
        """)
    else:
        k(f"""
        s_bitcmp1_b32 0x14, s34
        s_cbranch_scc1 {Lp} ; @seq=NTNTN
        s_cmp_gt_u32 s34, 3
        s_cbranch_scc1 {Lw} ; @seq=NNT
        s_waitcnt vmcnt(8)
        s_cmp_gt_u32 s34, 1
        s_cbranch_scc1 {Lw} ; @seq=NT
        s_waitcnt vmcnt(0)
        {Lw}:
        s_waitcnt vmcnt(16)
        s_barrier
        s_cmp_lt_u32 s34, 10
        s_cbranch_scc1 {Lp} ; @seq=TTTN
        """)
    k("""
    s_waitcnt vmcnt(8)
    s_barrier
    s_waitcnt vmcnt(0)
    s_barrier
    """)
    k.end(SWS, 0)
    k(f"{L_end}:")
    k("s_endpgm")
    return k
```

```python
from common import *
PRIO = int(os.environ.get("PRIO", "2"))
OSC = os.environ.get("OSC", "")
RSC = os.environ.get("RSC", " sc1")
TLB = int(os.environ.get("TLB", "0"))
OSC2 = os.environ.get("OSC2", "")
PJ = int(os.environ.get("PJ", "19"))

def build_k2():
    k = Kern("attn_kernel", 256, 512, 163840)
    SWS, SRC = 12, 16
    L_end = k.lab("end")
    a = Alloc(8)
    QL = [a(4), a(4)]; QH = a(2); AK = a(); AH = a(); AV = a(); GL = a()
    NM = a(32, 4); S = [a(32, 4), a(32, 4)]; P = a(16, 4); O = a(32, 4)
    KL = [a(4), a(4)]; KH = [a(2), a(2)]; V = [a(8), a(8)]
    RP = a(20, 4); RA = a(2); SEL = a(4); CS = a(4)
    k(f"""
    s_cmp_ge_u32 s2, 256
    s_cbranch_scc1 {L_end}
    """)
    k.stamp(0)
    load_srds(k, [("ws", SWS)])
    k(f"""
    s_load_dwordx2 s[20:21], s[0:1], {ARG['wo']}
    s_load_dwordx4 s[24:27], s[0:1], {ARG['w1']}
    s_load_dwordx2 s[22:23], s[0:1], {ARG['w2']}
    v_lshrrev_b32 v1, 6, v0
    v_and_b32 v2, 63, v0           ; lane
    v_readfirstlane_b32 s30, v1    ; wave
    s_and_b32 s28, s2, 7
    s_lshl_b32 s28, s28, 2
    s_lshr_b32 s29, s2, 6
    s_add_u32 s28, s28, s29        ; head
    v_lshlrev_b32 v{GL}, 4, v2
    s_mul_i32 s31, s28, {HS}
    s_lshl_b32 s34, s30, 11
    s_add_u32 s35, s31, s34
    s_mov_b32 m0, s34
    v_and_b32 v3, 31, v2           ; m
    v_lshrrev_b32 v4, 5, v2        ; hf
    s_bfe_u32 s29, s2, 0x30003     ; qb
    s_lshr_b32 s39, s30, 2         ; par
    s_lshl_b32 s32, s29, 2
    s_and_b32 s33, s30, 3
    s_add_u32 s32, s32, s33
    s_lshl_b32 s32, s32, 1
    s_mul_i32 s33, s32, {TS}
    s_add_u32 s33, s33, s31
    s_add_u32 s33, s33, {Q_OFF}
    s_add_u32 s32, s32, s39
    s_mul_i32 s37, s39, {TS}
    s_add_u32 s36, s33, s37
    s_sub_u32 s38, s33, s37
    v_lshlrev_b32 v5, 3, v3
    v_xor_b32 v1, s39, v4
    v_mul_u32_u24 v1, {TS}, v1
    v_add_u32 v1, v1, v5
    s_waitcnt lgkmcnt(0)
    """)
    def dma(b):
        if b: k(f"s_add_u32 m0, s34, {b*16384}"); k("s_add_u32 s35, s35, 16384")
        for i in range(2): k(f"buffer_load_dwordx4 v{GL}, s[{SWS}:{SWS+3}], s35 offen offset:{i*1024} lds")
    dma(0)
    k(f"""
    buffer_load_dwordx4 {vr(QL[0],4)}, v{GL}, s[{SWS}:{SWS+3}], s36 offen
    buffer_load_dwordx4 {vr(QL[1],4)}, v{GL}, s[{SWS}:{SWS+3}], s38 offen offset:{TS}
    buffer_load_dwordx2 {vr(QH,2)}, v1, s[{SWS}:{SWS+3}], s33 offen offset:1024
    v_add_u32 v{AK}, s37, v{GL}
    v_add_u32 v5, 1024, v5
    v_add_u32 v{AH}, s37, v5
    v_mul_u32_u24 v{AV}, 320, v4
    v_lshl_add_u32 v{AV}, v3, 4, v{AV}
    s_add_u32 s37, s37, 1280
    v_add_u32 v{AV}, s37, v{AV}
    s_mov_b32 s50, 0x000fffff
    s_mov_b32 s51, 0x000fffff
    """)
    for i in range(32): k(f"v_mov_b32 v{O+i}, 0")
    dma(1)
    k("v_cmp_eq_u32 vcc, 20, v3"); k("v_mov_b32 v6, 0x3f803f80")
    for i in range(16): k(f"v_cndmask_b32 v{V[0]+i}, 0, v6, vcc")
    dma(2)
    def rdK(b, off):
        k(f"ds_read_b128 {vr(KL[b],4)}, v{AK} offset:{off}")
        k(f"ds_read_b64 {vr(KH[b],2)}, v{AH} offset:{off}")
    def rdV(b, off):
        k("s_mov_b64 exec, s[50:51]")
        k(f"ds_read_b128 {vr(V[b],4)}, v{AV} offset:{off}")
        k(f"ds_read_b128 {vr(V[b]+4,4)}, v{AV} offset:{off+640}")
        k("s_mov_b64 exec, -1")
    def qkh(b, kh, c): k(f"v_mfma_f32_32x32x4_2b_bf16 {vr(S[b],32)}, {vr(kh,2)}, {vr(QH,2)}, {c}")
    def qkl(b, kl, q): k(f"v_mfma_f32_32x32x16_bf16 {vr(S[b]+16*q,16)}, {vr(kl,4)}, {vr(QL[q],4)}, {vr(S[b]+16*q,16)}")
    def pv(b, q, h): k(f"v_mfma_f32_32x32x16_bf16 {vr(O+16*q,16)}, {vr(V[b]+4*h,4)}, {vr(P+8*q+4*h,4)}, {vr(O+16*q,16)}")
    def exps(b, lo, hi):
        for i in range(lo, hi): k(f"v_exp_f32 v{S[b]+i}, v{S[b]+i}")
    def cvts(b, lo, hi):
        for i in range(lo, hi): k(f"v_cvt_pk_bf16_f32 v{P+i}, v{S[b]+2*i}, v{S[b]+2*i+1}")
    def maxred(s, dst, init):
        if init: k(f"v_max3_f32 v{dst}, v{s}, v{s+1}, v{s+2}"); k(f"v_max_f32 v{dst}, v{dst}, v{s+3}"); st = 4
        else: st = 0
        for i in range(st, 16, 2): k(f"v_max3_f32 v{dst}, v{dst}, v{s+i}, v{s+i+1}")
    k("s_waitcnt vmcnt(4)")
    k("s_barrier")
    k.stamp(2)
    k(f"ds_read_b64 {vr(P+4,2)}, v5")
    k(f"ds_read_b128 {vr(P,4)}, v{GL}")
    rdK(0, 0); rdK(1, 2*TS); rdV(0, 0)
    k("s_waitcnt lgkmcnt(6)")
    k(f"v_mfma_f32_32x32x16_bf16 {vr(S[1],16)}, {vr(P,4)}, {vr(QL[0],4)}, 0")
    k(f"v_mfma_f32_32x32x16_bf16 {vr(S[1]+16,16)}, {vr(P,4)}, {vr(QL[1],4)}, 0")
    qkh(1, P + 4, vr(S[1], 32))
    maxred(S[1], 6, True); maxred(S[1] + 16, 7, True)
    k(f"""
    v_permlane32_swap_b32 v6, v7
    v_max_f32 v6, v6, v7
    v_mov_b32 v7, v6
    v_permlane32_swap_b32 v6, v7
    """)
    for i in range(32): k(f"v_sub_f32 v{NM+i}, 0, v{6 + i//16}")
    k("s_waitcnt lgkmcnt(4)")
    k(f"v_mfma_f32_32x32x16_bf16 {vr(S[0],16)}, {vr(KL[0],4)}, {vr(QL[0],4)}, {vr(NM,16)}")
    k(f"v_mfma_f32_32x32x16_bf16 {vr(S[0]+16,16)}, {vr(KL[0],4)}, {vr(QL[1],4)}, {vr(NM+16,16)}")
    qkh(0, KH[0], vr(S[0], 32))
    L_loop = k.lab("loop"); L_epi = k.lab("epi"); L_slow = k.lab("slow")
    L_r1 = k.lab("r1"); L_r1r = k.lab("r1r"); L_hk = k.lab("hk"); L_hkr = k.lab("hkr")
    k("s_mov_b32 s36, 0            ; round")
    k("s_mov_b32 s38, 0")
    def iteration(j, first=False, top=None, mid=None, late=None):
        c = j & 1; n = 1 - c
        exps(c, 0, 2)
        if not first: pv(n, 1, 1)
        if top: top()
        k("s_waitcnt lgkmcnt(0)")
        if j == 6:
            k(f"v_add_u32 v{AK}, {16*TS}, v{AK}"); k(f"v_add_u32 v{AH}, {16*TS}, v{AH}")
        if j == 7: k(f"v_add_u32 v{AV}, {16*TS}, v{AV}")
        rdV(n, ((j + 1) & 7) * 2 * TS)
        rdK(c, ((j + 2) & 7) * 2 * TS)
        qkh(n, KH[n], vr(NM, 32))
        exps(c, 2, 8); cvts(c, 0, 4); exps(c, 8, 10)
        pv(c, 0, 0)
        exps(c, 10, 16); cvts(c, 4, 5)
        qkl(n, KL[n], 0)
        cvts(c, 5, 8); exps(c, 16, 19)
        pv(c, 0, 1)
        if mid: mid()
        exps(c, 19, 23)
        qkl(n, KL[n], 1)
        exps(c, 23, 24); cvts(c, 8, 12); exps(c, 24, 26)
        pv(c, 1, 0)
        if late: late()
        exps(c, 26, 32); cvts(c, 12, 16)
    def sync(n):
        def f():
            k(f"s_waitcnt vmcnt({n})"); k("s_barrier")
            if PRIO == 1: k("s_setprio 1")
        return f
    lo = (lambda: k("s_setprio 0")) if PRIO == 1 else None
    if PRIO == 1: k("s_setprio 1")
    iteration(0, first=True, mid=lambda: dma(3), late=lo)
    iteration(1, top=sync(4), mid=lambda: dma(4))
    iteration(2, mid=lambda: dma(5))
    iteration(3, mid=lambda: dma(6), late=lo)
    iteration(4, top=sync(4), mid=lambda: dma(7))
    iteration(5, mid=lambda: dma(8))
    iteration(6, mid=lambda: dma(9))
    iteration(7, late=lo)
    k(f"{L_loop}:")
    def hook():
        k("s_cmp_lg_u32 s36, 1"); k(f"s_cbranch_scc1 {L_hk} ; @seq=TNT"); k(f"{L_hkr}:")
    def lastlo():
        if PRIO:
            Ls = k.lab("np")
            k(f"s_cmp_lg_u32 s36, {PJ//8}"); k(f"s_cbranch_scc1 {Ls}"); k("s_setprio 0"); k(f"{Ls}:")
    def cnt(): k("s_add_u32 s36, s36, 1"); k("s_cmp_lt_u32 s36, 3")
    for j in range(8):
        iteration(j, top=hook if j == 0 else None, mid=lastlo if j == PJ % 8 else None, late=cnt if j == 7 else None)
    k(f"s_cbranch_scc1 {L_loop} ; @seq=TTN")
    k(f"""
    s_mul_i32 s33, s30, 5120
    v_add_u32 v1, s33, v{GL}
    """)
    pv(1, 1, 1)
    k.stamp(5)
    k(f"""
    s_xor_b32 s33, s30, 4
    s_mul_i32 s33, s33, 5120
    v_add_u32 v6, s33, v{GL}
    """)
    for i in range(3): k(f"ds_write_b128 v1, {vr(O+16+4*i,4)} offset:{i*1024}")
    k(f"""
    s_mul_i32 s33, s32, {2*80*256}
    s_add_u32 s33, s33, {OF_OFF}
    s_lshl_b32 s34, s28, 9
    s_add_u32 s34, s34, s33            ; chunk 2h
    s_lshr_b32 s35, s28, 1
    s_lshl_b32 s35, s35, 8
    s_add_u32 s35, s35, s33
    s_and_b32 s39, s28, 1
    s_lshl_b32 s39, s39, 3
    s_add_u32 s35, s35, s39
    s_add_u32 s35, s35, {64*256}
    v_lshrrev_b32 v1, 4, v3
    v_mul_u32_u24 v1, {80*256}, v1
    v_and_b32 v7, 15, v3
    v_lshl_add_u32 v1, v7, 4, v1
    v_lshl_add_u32 v1, v4, 8, v1
    s_waitcnt lgkmcnt(0)
    s_barrier
    """)
    k.stamp(6)
    for i in range(3): k(f"ds_read_b128 {vr(O+16+4*i,4)}, v6 offset:{i*1024}")
    for i in range(12):
        if i % 4 == 0: k(f"s_waitcnt lgkmcnt({2 - i//4})")
        k(f"v_add_f32 v{O+i}, v{O+i}, v{O+16+i}")
    k(f"{L_epi}:")
    k(f"""
    v_mov_b32 v6, v{O+8}
    v_mov_b32 v7, v{O+8}
    v_mul_f32 v{P}, 0, v{O}
    v_mul_f32 v{P+1}, 0, v{O+8}
    v_permlane32_swap_b32 v6, v7       ; v7 = l
    """)
    for i in range(1, 8): k(f"v_fma_f32 v{P}, v{O+i}, 0, v{P}")
    for i in range(9, 12): k(f"v_fma_f32 v{P+1}, v{O+i}, 0, v{P+1}")
    k(f"""
    v_rcp_f32 v6, v7
    v_mov_b32 v{P+2}, {f32(2.0**60)}
    v_cmp_nlt_f32 s[40:41], v7, v{P+2}
    v_cmp_u_f32 s[42:43], v{P}, v{P+1}
    """)
    for i in range(0, 12, 2): k(f"v_pk_mul_f32 v[{O+i}:{O+i+1}], v[{O+i}:{O+i+1}], v[6:7] op_sel_hi:[1,0]")
    k(f"""
    s_or_b64 s[40:41], s[40:41], s[42:43]
    s_or_b32 s40, s40, s41
    s_andn2_b32 s40, s40, s38
    s_cbranch_scc1 {L_slow}
    """)
    for i in range(6): k(f"v_cvt_pk_bf16_f32 v{P+i}, v{O+2*i}, v{O+2*i+1}")
    k(f"""
    buffer_store_dwordx4 v[{P}:{P+3}], v1, s[{SWS}:{SWS+3}], s34 offen{OSC}
    s_mov_b64 exec, 0xffffffff
    buffer_store_dwordx2 v[{P+4}:{P+5}], v1, s[{SWS}:{SWS+3}], s35 offen{OSC2}
    """)
    k.end(SWS, 1)
    k(f"{L_end}:")
    k("s_endpgm")
    L_j2 = k.lab("j2"); L_wo = k.lab("wo"); L_go = k.lab("go"); L_t2 = k.lab("t2"); L_st = k.lab("st"); L_d = k.lab("d"); L_bar = k.lab("bar")
    slot = lambda s: s * 1024
    k(f"""
    {L_hk}:
    s_waitcnt vmcnt(0)
    s_cmp_lg_u32 s36, 0
    s_cbranch_scc1 {L_r1} ; @seq=NT
    s_barrier
    {"s_setprio 1" if PRIO else ""}
    {"s_memrealtime s[88:89]" if PROF else ""}
    """)
    if TLB:
        k(f"""
        s_load_dwordx2 s[52:53], s[0:1], {ARG['out']}
        s_mov_b32 s54, {SIZE['out']}
        s_mov_b32 s55, 0x00020000
        s_lshr_b32 s40, s2, 3
        s_lshl_b32 s40, s40, 3
        s_add_u32 s40, s40, s30
        s_lshl_b32 s40, s40, {6 + TLB}
        v_lshlrev_b32 v1, {TLB}, v2
        s_add_u32 s41, s40, {HF_OFF}
        s_cmp_lt_u32 s41, {WOF_OFF}
        s_cselect_b32 s41, s41, {WS_SIZE}
        v_add_u32 v6, s41, v1
        v_add_u32 v1, s40, v1
        buffer_load_dword v{CS}, v6, s[{SWS}:{SWS+3}], 0 offen
        s_waitcnt lgkmcnt(0)
        buffer_load_dword v{CS+1}, v1, s[52:55], 0 offen
        """)
    k(f"""
    s_cmp_ge_u32 s2, 164
    s_cbranch_scc1 {L_hkr} ; @both
    s_mul_i32 s34, s30, 5120
    s_mov_b32 s{SRC+3}, 0x00020000
    v_and_b32 v6, 3, v2                ; c
    s_cmp_ge_u32 s2, 96
    s_cbranch_scc1 {L_j2}
    ; ---- W1/W3 strip: ct = J/6, j = J%6
    s_mul_i32 s40, s2, 171
    s_lshr_b32 s40, s40, 10            ; ct
    s_mul_i32 s41, s40, 6
    s_sub_u32 s41, s2, s41             ; j
    s_bitcmp1_b32 s41, 0
    s_cselect_b32 s{SRC}, s26, s24
    s_cselect_b32 s{SRC+1}, s27, s25
    s_mov_b32 s{SRC+2}, {SIZE['w1']}
    s_lshr_b32 s42, s41, 1
    s_lshl_b32 s42, s42, 6
    s_mul_i32 s43, s40, 192
    s_add_u32 s42, s42, s43
    s_mul_i32 s43, s30, {80*3072}
    s_add_u32 s42, s42, s43
    v_lshrrev_b32 v1, 2, v2
    v_mul_u32_u24 v1, 3072, v1
    v_lshl_add_u32 v1, v6, 4, v1
    """)
    for f in range(5):
        k(f"s_add_u32 m0, s34, {slot(f)}")
        if f: k(f"s_add_u32 s42, s42, {16*3072}")
        k(f"buffer_load_dwordx4 v1, s[{SRC}:{SRC+3}], s42 offen lds")
    k(f"""
    s_mul_i32 s44, s40, {41*6}
    s_add_u32 s44, s44, s41
    s_lshl_b32 s44, s44, 10
    s_add_u32 s44, s44, {W13F_OFF}
    s_mul_i32 s45, s30, {5*6144}
    s_add_u32 s45, s45, s44
    s_add_u32 s45, s45, 6144
    s_mov_b32 s46, 6144
    s_branch {L_hkr} ; @seq=T
    {L_j2}:
    s_sub_u32 s40, s2, 96
    s_lshl_b32 s40, s40, 3
    s_add_u32 s40, s40, s30            ; u
    s_mov_b32 s46, 1024
    s_cmp_lt_u32 s2, 116
    s_cbranch_scc1 {L_wo}
    s_sub_u32 s40, s40, 160
    s_mul_i32 s41, s40, 1366
    s_lshr_b32 s41, s41, 16            ; ct
    s_mul_i32 s42, s41, 48
    s_sub_u32 s42, s40, s42            ; ks
    s_mov_b32 s{SRC}, s22
    s_mov_b32 s{SRC+1}, s23
    s_mov_b32 s{SRC+2}, {SIZE['w2']}
    s_mul_i32 s45, s40, 5120
    s_add_u32 s45, s45, {W2F_OFF}
    s_lshl_b32 s42, s42, 5
    s_mov_b32 s43, 16
    s_mov_b32 s44, 4
    s_mov_b32 s47, 8
    s_branch {L_go}
    {L_wo}:
    s_mul_i32 s41, s40, 3277
    s_lshr_b32 s41, s41, 16            ; ct
    s_mul_i32 s42, s41, 20
    s_sub_u32 s42, s40, s42            ; ks
    s_mov_b32 s{SRC}, s20
    s_mov_b32 s{SRC+1}, s21
    s_mov_b32 s{SRC+2}, {SIZE['wo']}
    s_mul_i32 s45, s40, 5120
    s_add_u32 s45, s45, {WOF_OFF}
    s_mul_i32 s48, s42, 40
    s_mul_i32 s49, s42, 160
    s_sub_u32 s49, s49, {16*160-16}
    s_cmp_ge_u32 s42, 16
    s_cselect_b32 s42, s49, s48
    s_cselect_b32 s43, 80, 20
    s_cselect_b32 s44, 40, 4
    s_cselect_b32 s47, 20, 8
    {L_go}:
    s_mul_i32 s42, s42, 1280
    s_mul_i32 s41, s41, 160
    s_add_u32 s42, s42, s41
    s_mul_i32 s41, s43, 1280
    s_add_u32 s41, s41, s42
    v_mul_u32_u24 v1, s44, v4          ; B * bit5
    v_bfe_u32 v7, v2, 4, 1
    v_mad_u32_u24 v1, s47, v7, v1      ; + C * bit4
    v_mul_u32_u24 v7, s44, v7          ; B * bit4
    v_mad_u32_u24 v7, s43, v4, v7      ; + A * bit5
    v_bfe_u32 v{RA}, v2, 2, 2
    v_add_u32 v1, v1, v{RA}
    v_mul_u32_u24 v1, 1280, v1
    v_lshl_add_u32 v1, v6, 4, v1
    v_bfe_u32 v{RA}, v2, 3, 1
    v_mad_u32_u24 v7, s47, v{RA}, v7
    v_bfe_u32 v{RA}, v2, 1, 2
    v_add_u32 v7, v7, v{RA}
    v_mul_u32_u24 v7, 1280, v7
    v_and_b32 v6, 1, v2
    v_lshl_add_u32 v7, v6, 4, v7
    """)
    for f in range(5):
        k(f"s_add_u32 m0, s34, {slot(f) - 64*(f//2)}")
        k(f"buffer_load_dwordx4 v{7 if f == 4 else 1}, s[{SRC}:{SRC+3}], s{41 if f & 1 else 42} offen offset:{64*(f//2)} lds")
    k(f"s_branch {L_hkr} ; @seq=T")
    k(f"""
    {L_r1}:
    """)
    k.stamp(3)
    k(f"""
    s_cmp_ge_u32 s2, 164
    s_cbranch_scc1 {L_hkr} ; @both
    s_add_u32 s40, s34, {slot(0)}
    v_bfe_u32 v1, v2, 2, 2             ; r
    v_and_b32 v6, 3, v2                ; c
    s_cmp_ge_u32 s2, 96
    s_cbranch_scc1 {L_t2}
    v_lshl_add_u32 v1, v4, 3, v1
    v_lshl_add_u32 v1, v1, 6, s40
    v_bfe_u32 v7, v2, 4, 1
    v_lshl_add_u32 v1, v7, 5, v1
    v_lshl_add_u32 v1, v6, 3, v1
    """)
    for f in range(5):
        for h in range(2): k(f"ds_read_b64_tr_b16 {vr(RP+4*f+2*h,2)}, v1 offset:{slot(f) - slot(0) + 256*h}")
    k(f"""
    v_lshrrev_b32 v1, 2, v2
    v_xor_b32 v1, v1, v7
    v_and_b32 v1, 1, v1
    v_add_u32 v1, -1, v1
    v_and_b32 v{SEL}, 0x3f803f80, v1
    v_mov_b32 v{SEL+1}, v{SEL}
    v_mov_b32 v{SEL+2}, v{SEL}
    v_mov_b32 v{SEL+3}, v{SEL}
    s_lshr_b32 s40, s30, 2
    s_lshl_b32 s40, s40, 9
    s_and_b32 s41, s30, 3
    s_lshl_b32 s41, s41, 2
    s_add_u32 s40, s40, s41
    s_add_u32 s44, s44, s40
    v_lshlrev_b32 v1, 4, v3
    s_waitcnt lgkmcnt(0)
    """)
    for f in range(5):
        k(f"v_mfma_f32_16x16x32_bf16 {vr(CS,4)}, {vr(SEL,4)}, {vr(RP+4*f,4)}, {vr(CS,4) if f else 0}")
    k(f"""
    v_cvt_pk_bf16_f32 v{CS+1}, v{CS}, v{CS}
    v_and_b32 v{CS+2}, 0xffff0000, v{CS+1}
    v_sub_f32 v{CS+2}, v{CS}, v{CS+2}
    v_cvt_pk_bf16_f32 v{CS+1}, v{CS}, v{CS+2}
    buffer_store_dword v{CS+1}, v1, s[{SWS}:{SWS+3}], s44 offen
    s_branch {L_st}
    {L_t2}:
    v_lshrrev_b32 v7, 4, v2            ; g
    v_lshl_add_u32 v1, v7, 3, v1
    v_lshlrev_b32 v1, 5, v1
    v_lshl_add_u32 v7, v6, 3, v1
    v_lshl_add_u32 v1, v7, 1, s40
    v_add_u32 v7, s40, v7
    """)
    for f in range(4):
        for h in range(2): k(f"ds_read_b64_tr_b16 {vr(RP+4*f+2*h,2)}, v1 offset:{(f//2)*2048 + 8*(f&1) + 256*h}")
    for h in range(2): k(f"ds_read_b64_tr_b16 {vr(RP+16+2*h,2)}, v7 offset:{4096 + 128*h}")
    k("s_waitcnt lgkmcnt(0)")
    k(f"{L_st}:")
    for f in range(5):
        k(f"buffer_store_dwordx4 {vr(RP+4*f,4)}, v{GL}, s[{SWS}:{SWS+3}], s45 offen{RSC}")
        k(f"s_add_u32 s45, s45, s46")
    k.stamp(4)
    k(f"s_branch {L_hkr} ; @seq=T")
    L1 = k.lab("s1"); L2 = k.lab("s2")
    def qk1(c):
        k(f"v_mfma_f32_32x32x16_bf16 {vr(S[0],16)}, {vr(KL[0],4)}, {vr(QL[0],4)}, {c}")
        k(f"v_mfma_f32_32x32x8_bf16 {vr(S[0],16)}, {vr(KH[0],2)}, {vr(QH,2)}, {vr(S[0],16)}")
    k(f"""
    {L_slow}:
    s_mov_b32 s38, -1
    v_add_u32 v6, -1, v4
    v_and_b32 v{QH}, v{QH}, v6
    v_and_b32 v{QH+1}, v{QH+1}, v6
    v_mul_u32_u24 v{AV}, 320, v4
    v_lshl_add_u32 v{AV}, v3, 4, v{AV}
    v_mov_b32 v6, 0xff800000
    s_mov_b32 s37, s31
    s_mov_b32 s36, 0
    {L1}:
    buffer_load_dwordx4 {vr(KL[0],4)}, v{GL}, s[{SWS}:{SWS+3}], s37 offen
    buffer_load_dwordx2 {vr(KH[0],2)}, v5, s[{SWS}:{SWS+3}], s37 offen
    s_waitcnt vmcnt(0)
    """)
    qk1(0)
    maxred(S[0], 6, False)
    k(f"""
    s_add_u32 s37, s37, {TS}
    s_add_u32 s36, s36, 1
    s_cmp_lt_u32 s36, 64
    s_cbranch_scc1 {L1}
    v_mov_b32 v7, v6
    v_permlane32_swap_b32 v6, v7
    v_max_f32 v6, v6, v7
    """)
    for i in range(16): k(f"v_sub_f32 v{NM+i}, 0, v6")
    for i in range(16): k(f"v_mov_b32 v{O+i}, 0")
    k(f"""
    s_mov_b32 s37, s31
    s_mov_b32 s36, 0
    {L2}:
    buffer_load_dwordx4 {vr(KL[0],4)}, v{GL}, s[{SWS}:{SWS+3}], s37 offen
    buffer_load_dwordx2 {vr(KH[0],2)}, v5, s[{SWS}:{SWS+3}], s37 offen
    s_mov_b64 exec, s[50:51]
    buffer_load_dwordx4 {vr(V[0],4)}, v{AV}, s[{SWS}:{SWS+3}], s37 offen offset:1280
    buffer_load_dwordx4 {vr(V[0]+4,4)}, v{AV}, s[{SWS}:{SWS+3}], s37 offen offset:1920
    s_mov_b64 exec, -1
    s_waitcnt vmcnt(0)
    """)
    qk1(vr(NM, 16))
    exps(0, 0, 16); cvts(0, 0, 8); pv(0, 0, 0); pv(0, 0, 1)
    k(f"""
    s_add_u32 s37, s37, {TS}
    s_add_u32 s36, s36, 1
    s_cmp_lt_u32 s36, 64
    s_cbranch_scc1 {L2}
    s_branch {L_epi}
    """)
    return k
```

```python
from common import *

import os
AHEAD = int(os.environ.get("AHEAD", "4"))
ROT = int(os.environ.get("ROT", "0"))
SC = os.environ.get("SC", " sc1")
WPF = {2: os.environ.get("PF3", ""), 3: os.environ.get("PF4", "")}
RD2 = int(os.environ.get("RD2", "0"))

def loader(k, SWS, GL, nch, wbytes, idx):
    wq = wbytes // 4; slot = wbytes + 8192
    Lp = k.lab("pre"); Ll = k.lab("ll")
    k(f"""
    s_mul_i32 s26, s23, {wq}
    s_add_u32 s24, s24, s26
    s_lshl_b32 s27, s23, 11
    s_add_u32 s27, s27, {wbytes}
    s_mul_i32 s31, s30, {wbytes}
    s_add_u32 s24, s24, s31
    s_lshl_b32 s31, s30, 11
    s_add_u32 s25, s25, s31
    s_mov_b32 s28, 0
    s_mov_b32 s29, 0
    {"s_memrealtime s[88:89]" if PROF else ""}
    s_waitcnt lgkmcnt(0)
    {"s_memrealtime s[90:91]" if PROF else ""}
    s_branch {Lp}
    {Ll}:
    {f"s_cmp_lg_u32 s29, {AHEAD}" if PROF else ""}
    {f"s_cbranch_scc1 {Ll}x" if PROF else ""}
    {"s_memrealtime s[92:93]" if PROF else ""}
    s_waitcnt vmcnt({5*(AHEAD-1)})
    {"s_memrealtime s[94:95]" if PROF else ""}
    {Ll}x:
    s_waitcnt vmcnt({5*(AHEAD-1)})
    s_barrier
    {Lp}:
    s_add_u32 m0, s28, s27
    s_add_u32 s29, s29, 1
    buffer_load_dwordx4 v{GL}, s[{SWS}:{SWS+3}], s25 offen lds
    buffer_load_dwordx4 v{GL}, s[{SWS}:{SWS+3}], s25 offen offset:1024 lds
    s_add_u32 m0, s28, s26
    s_add_u32 s30, s30, 1
    buffer_load_dwordx4 v{GL}, s[{SWS}:{SWS+3}], s24 offen lds
    buffer_load_dwordx4 v{GL}, s[{SWS}:{SWS+3}], s24 offen offset:1024 lds
    """)
    if wq < 3072: k("s_mov_b32 exec_hi, 0")
    k(f"buffer_load_dwordx4 v{GL}, s[{SWS}:{SWS+3}], s24 offen offset:2048 lds")
    if wq < 3072: k("s_mov_b32 exec_hi, -1")
    k(f"""
    s_cmp_eq_u32 s30, {nch}
    s_cselect_b32 s31, {-(nch-1)}, 1
    s_cmov_b32 s30, 0
    s_mul_i32 s32, s31, {wbytes}
    s_lshl_b32 s31, s31, 11
    s_add_u32 s24, s24, s32
    s_add_u32 s25, s25, s31
    s_add_u32 s28, s28, {slot}
    s_cmp_eq_u32 s28, {8*slot}
    s_cmov_b32 s28, 0
    s_cmp_lt_u32 s29, {AHEAD}
    s_cbranch_scc1 {Lp} ; @seq={"T"*(AHEAD-1)}N
    s_cmp_lt_u32 s29, {nch}
    s_cbranch_scc1 {Ll} ; @seq=TTN
    """)
    npf = 0
    for which in WPF.get(idx, ""):
        size = {"4": 4*41*6144, "5": 4*48*5120}[which]; per = size // 128
        k(f"""
        {"s_bfe_u32 s34, s2, 0x20001" if which == "4" else "s_and_b32 s34, s2, 1"}
        s_mul_i32 s34, s34, {size}
        s_lshr_b32 s35, s2, 3
        s_lshl_b32 s35, s35, 2
        s_add_u32 s35, s35, s23
        s_mul_i32 s35, s35, {per}
        s_add_u32 s34, s34, s35
        s_add_u32 s34, s34, {W13F_OFF if which == "4" else W2F_OFF}
        v_lshlrev_b32 v1, 3, v{GL}
        buffer_load_dword v{3+npf}, v1, s[{SWS}:{SWS+3}], s34 offen
        """)
        npf += 1
    for i in range(AHEAD):
        k(f"s_waitcnt vmcnt({5*(AHEAD-1-i)+npf})")
        k("s_barrier")
    k("s_barrier")
    k.end(SWS, idx)

def ringloop(k, nch, nt, wbytes, LA, LB, A, B, mfma):
    slot = wbytes + 8192
    L = k.lab("loop")
    k("s_mov_b32 s27, 0")
    k.stamp(1)
    k("s_barrier")
    k.stamp(2)
    k(f"ds_read_b128 {vr(B[0],4)}, v{LB}")
    for j in range(nt): k(f"ds_read_b128 {vr(A+4*j,4)}, v{LA} offset:{j*1024}")
    k(f"{L}:")
    for s in range(2):
        if s == 1:
            k(f"""
            s_add_u32 s27, s27, 1
            s_and_b32 s25, s27, 7
            s_mov_b32 s25, {-7*slot}
            s_cmov_b32 s25, {slot}
            v_add_u32 v{LA}, s25, v{LA}
            v_add_u32 v{LB}, s25, v{LB}
            s_cmp_lt_u32 s27, {nch}
            s_barrier
            """)
        k(f"ds_read_b128 {vr(B[1-s],4)}, v{LB} offset:{(1-s)*1024}")
        for j in range(nt):
            k(f"s_waitcnt lgkmcnt({[nt, 2, 0][RD2]})")
            mfma(j, A + 4 * j, B[s])
            if RD2 == 0 or (RD2 == 1 and j < 2): k(f"ds_read_b128 {vr(A+4*j,4)}, v{LA} offset:{(1-s)*nt*1024 + j*1024}")
    k(f"s_cbranch_scc1 {L}")
    k.stamp(6)
    k("s_waitcnt lgkmcnt(0)")

def gemm16(name, nks, woff, aoff, first):
    nch = nks // 2
    k = Kern(name, 256, 512, 8 * 18432)
    SWS, SRM = 12, 16
    idx = 2 if first else 4
    L_end = k.lab("end"); L_ld = k.lab("ld")
    a = Alloc(8)
    GL = a(); LA = a(); LB = a(); RM = a(); RM2 = a(); FM = a(); FM2 = a()
    RES = a(10, 2); ACC = a(20, 4); A = a(20, 4); B = [a(4, 4), a(4, 4)]
    k(f"""
    s_cmp_ge_u32 s2, 256
    s_cbranch_scc1 {L_end}
    """)
    k.stamp(0)
    load_srds(k, [("ws", SWS), ("x" if first else "out", SRM)])
    k(f"""
    v_lshrrev_b32 v1, 6, v0
    v_and_b32 v2, 63, v0
    v_readfirstlane_b32 s22, v1        ; wave
    s_bfe_u32 s20, s2, 0x20001         ; x>>1
    s_lshl_b32 s20, s20, 3
    s_bfe_u32 s30, s2, 0x30003
    s_add_u32 s20, s20, s30            ; rt
    s_and_b32 s21, s2, 1
    s_lshl_b32 s21, s21, 2
    s_lshr_b32 s31, s2, 6
    s_add_u32 s21, s21, s31            ; ct
    v_lshlrev_b32 v{GL}, 4, v2
    s_and_b32 s23, s22, 3
    s_lshl_b32 s20, s20, 2
    s_add_u32 s20, s20, s23            ; tile16
    s_cmp_ge_u32 s22, 4
    s_cbranch_scc1 {L_ld}
    v_and_b32 v3, 15, v2               ; n
    v_lshrrev_b32 v4, 4, v2            ; g
    v_mul_u32_u24 v{RM2}, 1280, v3
    v_lshl_add_u32 v{RM}, v4, 4, v{RM2}
    v_lshl_add_u32 v{RM2}, v4, 3, v{RM2}
    v_lshlrev_b32 v{FM2}, 4, v3
    v_lshl_add_u32 v{FM}, v4, 9, v{FM2}
    v_lshrrev_b32 v1, 1, v4
    v_lshl_add_u32 v{FM2}, v1, 9, v{FM2}
    v_and_b32 v1, 1, v4
    v_lshl_add_u32 v{FM2}, v1, 3, v{FM2}
    v_add_u32 v{FM2}, 4096, v{FM2}
    s_mul_i32 s26, s20, {16*1280}
    s_mul_i32 s28, s21, 160
    s_add_u32 s26, s26, s28
    s_lshr_b32 s28, s20, 1
    s_mul_i32 s28, s28, 40960
    s_and_b32 s29, s20, 1
    s_lshl_b32 s29, s29, 8
    s_add_u32 s28, s28, s29
    s_mul_i32 s29, s21, 5120
    s_add_u32 s28, s28, s29
    s_add_u32 s28, s28, {HF_OFF}
    s_waitcnt lgkmcnt(0)
    """)
    def rw(op, rm):
        sc = SC if op == "store" and first else ""
        if rm:
            k(f"buffer_{op}_dwordx4 v[{RES}:{RES+3}], v{RM}, s[{SRM}:{SRM+3}], s26 offen{sc}")
            k(f"buffer_{op}_dwordx4 v[{RES+4}:{RES+7}], v{RM}, s[{SRM}:{SRM+3}], s26 offen offset:64{sc}")
            k(f"buffer_{op}_dwordx2 v[{RES+8}:{RES+9}], v{RM2}, s[{SRM}:{SRM+3}], s26 offen offset:128{sc}")
        else:
            k(f"buffer_{op}_dwordx4 v[{RES}:{RES+3}], v{FM}, s[{SWS}:{SWS+3}], s28 offen{sc}")
            k(f"buffer_{op}_dwordx4 v[{RES+4}:{RES+7}], v{FM}, s[{SWS}:{SWS+3}], s28 offen offset:2048{sc}")
            k(f"buffer_{op}_dwordx2 v[{RES+8}:{RES+9}], v{FM2}, s[{SWS}:{SWS+3}], s28 offen{sc}")
    rw("load", first)
    k(f"""
    v_mov_b32 v{LA}, v{GL}
    s_lshl_b32 s25, s23, 11
    s_add_u32 s25, s25, 10240
    v_add_u32 v{LB}, s25, v{GL}
    s_waitcnt vmcnt(0)
    """)
    for i in range(10):
        k(f"v_lshlrev_b32 v{ACC+2*i}, 16, v{RES+i}")
        k(f"v_and_b32 v{ACC+2*i+1}, 0xffff0000, v{RES+i}")
    ringloop(k, nch, 5, 10240, LA, LB, A, B,
             lambda j, ra, rb: k(f"v_mfma_f32_16x16x32_bf16 {vr(ACC+4*j,4)}, {vr(ra,4)}, {vr(rb,4)}, {vr(ACC+4*j,4)}"))
    for i in range(10):
        k(f"v_cvt_pk_bf16_f32 v{RES+i}, v{ACC+2*i}, v{ACC+2*i+1}")
    rw("store", not first)
    if first:
        k(f"""
        v_mov_b32 v5, 0x3f803f80
        v_mov_b32 v6, 0
        v_mov_b32 v7, 0
        """)
        for i in range(10):
            k(f"v_dot2_f32_bf16 v6, v{RES+i}, v5, v6")
            k(f"v_dot2_f32_bf16 v7, v{RES+i}, v{RES+i}, v7")
        k(f"""
        s_lshl_b32 s29, s21, 14
        s_lshl_b32 s20, s20, 7
        s_add_u32 s29, s29, s20
        s_add_u32 s29, s29, {ST_OFF}
        v_lshrrev_b32 v1, 5, v2
        v_lshlrev_b32 v1, 2, v1
        v_lshl_add_u32 v1, v3, 3, v1
        v_permlane32_swap_b32 v6, v7
        v_add_f32 v6, v6, v7
        v_mov_b32 v7, v6
        v_permlane16_swap_b32 v6, v7
        v_add_f32 v6, v6, v7
        buffer_store_dword v6, v1, s[{SWS}:{SWS+3}], s29 offen
        """)
    k.end(SWS, idx)
    k(f"""
    {L_ld}:
    s_mul_i32 s24, s21, {nks*5120}
    s_add_u32 s24, s24, {woff}
    s_mul_i32 s25, s20, {nks*1024}
    s_add_u32 s25, s25, {aoff}
    """)
    rot(k, nch)
    loader(k, SWS, GL, nch, 10240, idx)
    k(f"{L_end}:")
    k("s_endpgm")
    return k

def rot(k, nch):
    if ROT: k(f"s_lshl_b32 s31, s31, 1\ns_add_u32 s30, s30, s31\ns_and_b32 s30, s30, 7\ns_mul_i32 s30, s30, {nch}\ns_lshr_b32 s30, s30, 3")
    else: k("s_mov_b32 s30, 0")

def build_k4():
    k = Kern("ffn1_kernel", 256, 512, 163840)
    SWS = 12
    L_end = k.lab("end"); L_ld = k.lab("ld")
    a = Alloc(8)
    GL = a(); LA = a(); LB = a()
    ST = a(8, 4); MN = a(8, 4); A = a(24, 4); CSF = A; B = [a(4, 4), a(4, 4)]; ACC = a(96, 4)
    k(f"""
    s_cmp_ge_u32 s2, 256
    s_cbranch_scc1 {L_end}
    """)
    k.stamp(0)
    load_srds(k, [("ws", SWS)])
    k(f"""
    v_lshrrev_b32 v1, 6, v0
    v_and_b32 v2, 63, v0
    v_readfirstlane_b32 s22, v1        ; wave
    s_and_b32 s20, s2, 1
    s_lshl_b32 s20, s20, 3
    s_bfe_u32 s30, s2, 0x30003
    s_add_u32 s20, s20, s30
    s_bfe_u32 s21, s2, 0x20001
    s_lshl_b32 s21, s21, 2
    s_lshr_b32 s31, s2, 6
    s_add_u32 s21, s21, s31            ; ct
    v_lshlrev_b32 v{GL}, 4, v2
    s_and_b32 s23, s22, 3
    s_lshl_b32 s20, s20, 2
    s_add_u32 s20, s20, s23            ; tile32
    s_mul_i32 s24, s21, {41*6144}
    s_add_u32 s24, s24, {W13F_OFF}
    s_cmp_ge_u32 s22, 4
    s_cbranch_scc1 {L_ld}
    v_and_b32 v3, 31, v2               ; m
    v_lshrrev_b32 v4, 5, v2            ; hf
    v_lshlrev_b32 v1, 16, v4
    v_lshl_add_u32 v1, v3, 3, v1
    s_lshl_b32 s25, s20, 8
    s_add_u32 s25, s25, {ST_OFF}
    s_add_u32 s26, s25, 16384
    s_add_u32 s27, s25, 32768
    s_add_u32 s28, s25, 49152
    s_add_u32 s29, s24, 3072
    s_waitcnt lgkmcnt(0)
    """)
    for i in range(4): k(f"buffer_load_dwordx2 v[{ST+2*i}:{ST+2*i+1}], v1, s[{SWS}:{SWS+3}], s{25+i} offen")
    for j in range(6): k(f"buffer_load_dwordx4 v[{CSF+4*j}:{CSF+4*j+3}], v{GL}, s[{SWS}:{SWS+3}], s{24 if j < 3 else 29} offen offset:{(j%3)*1024}")
    k(f"""
    v_mov_b32 v{LA}, v{GL}
    s_lshl_b32 s25, s23, 11
    s_add_u32 s25, s25, 12288
    v_add_u32 v{LB}, s25, v{GL}
    v_lshrrev_b32 v1, 4, v3
    v_mul_u32_u24 v1, {192*256}, v1
    v_and_b32 v5, 15, v3
    v_lshl_add_u32 v1, v5, 4, v1
    v_lshl_add_u32 v3, v4, 8, v1
    s_mul_i32 s26, s20, {2*192*256}
    s_mul_i32 s27, s21, {12*256}
    s_add_u32 s26, s26, s27
    s_add_u32 s26, s26, {HH_OFF}
    s_waitcnt vmcnt(6)
    v_pk_add_f32 v[{ST}:{ST+1}], v[{ST}:{ST+1}], v[{ST+2}:{ST+3}]
    v_pk_add_f32 v[{ST+4}:{ST+5}], v[{ST+4}:{ST+5}], v[{ST+6}:{ST+7}]
    v_pk_add_f32 v[{ST}:{ST+1}], v[{ST}:{ST+1}], v[{ST+4}:{ST+5}]
    v_mov_b32 v{ST+2}, v{ST}
    v_mov_b32 v{ST+3}, v{ST+1}
    v_permlane32_swap_b32 v{ST}, v{ST+2}
    v_permlane32_swap_b32 v{ST+1}, v{ST+3}
    v_pk_add_f32 v[{ST}:{ST+1}], v[{ST}:{ST+1}], v[{ST+2}:{ST+3}]
    v_mul_f32 v{ST}, {f32(-1.0/640)}, v{ST}          ; -mean
    v_mul_f32 v{ST+1}, {f32(1.0/640)}, v{ST+1}
    v_fma_f32 v{ST+1}, -v{ST}, v{ST}, v{ST+1}
    v_max_f32 v{ST+1}, 0, v{ST+1}
    v_add_f32 v{ST+1}, {f32(1e-5)}, v{ST+1}
    v_rsq_f32 v{ST+4}, v{ST+1}
    v_cvt_pk_bf16_f32 v{MN}, v{ST}, v{ST}
    v_and_b32 v{ST+3}, 0xffff0000, v{MN}
    v_sub_f32 v{ST+3}, v{ST}, v{ST+3}
    v_cvt_pk_bf16_f32 v{MN+4}, v{ST+3}, v{ST+3}
    v_mov_b32 v{MN+1}, v{MN}
    v_mov_b32 v{MN+2}, v{MN}
    v_mov_b32 v{MN+3}, v{MN}
    v_mov_b32 v{MN+5}, v{MN+4}
    v_mov_b32 v{MN+6}, v{MN+4}
    v_mov_b32 v{MN+7}, v{MN+4}
    v_mul_f32 v{ST+6}, v{ST+4}, v{ST+4}              ; rstd^2
    v_mul_f32 v{ST+4}, {f32(-LOG2E)}, v{ST+4}        ; -log2e*rstd
    s_waitcnt vmcnt(0)
    """)
    for j in range(6): k(f"v_mfma_f32_32x32x16_bf16 {vr(ACC+16*j,16)}, {vr(CSF+4*j,4)}, {vr(MN,4)}, 0")
    for j in range(6): k(f"v_mfma_f32_32x32x16_bf16 {vr(ACC+16*j,16)}, {vr(CSF+4*j,4)}, {vr(MN+4,4)}, {vr(ACC+16*j,16)}")
    def mf4(j, ra, rb):
        if os.environ.get("FAKE16"):
            o = ACC + 16*j + (8 if rb == B[1] else 0)
            k(f"v_mfma_f32_16x16x32_bf16 {vr(o,4)}, {vr(ra,4)}, {vr(rb,4)}, {vr(o,4)}")
            k(f"v_mfma_f32_16x16x32_bf16 {vr(o+4,4)}, {vr(rb,4)}, {vr(ra,4)}, {vr(o+4,4)}")
        else: k(f"v_mfma_f32_32x32x16_bf16 {vr(ACC+16*j,16)}, {vr(ra,4)}, {vr(rb,4)}, {vr(ACC+16*j,16)}")
    ringloop(k, 20, 6, 12288, LA, LB, A, B, mf4)
    T = A
    for p in range(3):
        G = ACC + 32 * p; U = G + 16
        for h in range(2):
            t = T + 8 * h; g = G + 8 * h; u = U + 8 * h
            for i in range(0, 8, 2): k(f"v_pk_mul_f32 v[{t+i}:{t+i+1}], v[{g+i}:{g+i+1}], v[{ST+4}:{ST+5}] op_sel_hi:[1,0]")
            for i in range(8): k(f"v_exp_f32 v{t+i}, v{t+i}")
            for i in range(0, 8, 2): k(f"v_pk_mul_f32 v[{g+i}:{g+i+1}], v[{g+i}:{g+i+1}], v[{u+i}:{u+i+1}]")
            for i in range(0, 8, 2): k(f"v_pk_add_f32 v[{t+i}:{t+i+1}], v[{t+i}:{t+i+1}], 1.0 op_sel_hi:[1,0]")
            for i in range(8): k(f"v_rcp_f32 v{t+i}, v{t+i}")
            for i in range(0, 8, 2): k(f"v_pk_mul_f32 v[{g+i}:{g+i+1}], v[{g+i}:{g+i+1}], v[{ST+6}:{ST+7}] op_sel_hi:[1,0]")
            for i in range(0, 8, 2): k(f"v_pk_mul_f32 v[{g+i}:{g+i+1}], v[{g+i}:{g+i+1}], v[{t+i}:{t+i+1}]")
            for i in range(4): k(f"v_cvt_pk_bf16_f32 v{u+i}, v{g+2*i}, v{g+2*i+1}")
            k(f"buffer_store_dwordx4 {vr(u,4)}, v3, s[{SWS}:{SWS+3}], s26 offen offset:{(4*p+2*h)*256}{SC}")
    k.end(SWS, 3)
    k(f"""
    {L_ld}:
    s_add_u32 s24, s24, 6144
    s_mul_i32 s25, s20, 40960
    s_add_u32 s25, s25, {HF_OFF}
    """)
    rot(k, 20)
    loader(k, SWS, GL, 20, 12288, 3)
    k(f"{L_end}:")
    k("s_endpgm")
    return k

def build_k345():
    return [gemm16("oproj_kernel", 20, WOF_OFF, OF_OFF, True), build_k4(), gemm16("ffn2_kernel", 48, W2F_OFF, HH_OFF, False)]
```

```python
from common import *
E = lambda n, d: int(os.environ.get(n, d))

def build_k1():
    k = Kern("qkv_kernel", 240, 512, 4 * 32768 + 2048)
    SX, SW, SWS = 12, 16, 20
    STAT = 4 * 32768
    PF = E("PF", 0); PRE = E("PRE", 2); PART = E("PART", 1); QSC = os.environ.get("QSC", " sc1"); VSC = os.environ.get("VSC", " sc1")
    L_end = k.lab("end"); L_help = k.lab("help")
    k(f"""
    s_cmp_ge_u32 s2, 240
    s_cbranch_scc1 {L_end}
    """)
    k.stamp(0)
    load_srds(k, [("x", SX), ("wqkv", SW), ("ws", SWS)])
    k(f"""
    v_lshrrev_b32 v1, 6, v0
    v_and_b32 v2, 63, v0         ; lane
    v_readfirstlane_b32 s26, v1  ; wave
    s_lshr_b32 s38, s2, 3        ; j = 0..29
    s_bfe_u32 s39, s2, 0x20001
    s_and_b32 s40, s2, 1
    s_lshl_b32 s27, s40, 3
    s_lshr_b32 s25, s38, 2
    s_add_u32 s25, s25, s27
    s_and_b32 s24, s38, 3
    s_lshl_b32 s27, s40, 1
    s_add_u32 s27, s27, s24
    s_cmp_ge_u32 s38, 28
    s_cmov_b32 s25, 7            ; ct
    s_cmov_b32 s24, s27
    s_lshl_b32 s27, s39, 2
    s_add_u32 s24, s24, s27      ; rt
    s_cmp_ge_u32 s26, 4
    s_cbranch_scc1 {L_help}
    """)
    a = Alloc(8)
    XA = a(4); XB = a(4); WA = a(2); SEL = a(4); CS = a(4); RS = a(4); SQ = a(8); OFF = a(8)
    FB = [a(16, 4), a(16, 4)]
    ACC = a(64, 4); RV2 = a(16, 4); PD = a(4); PA = a()
    Lx = k.lab("pfx"); Lj = k.lab("pfj")
    if PF == 4:
        k(f"""
        s_mul_i32 s41, s26, {64*9600}
        s_mul_i32 s42, s38, 320
        s_add_u32 s41, s41, s42
        v_mul_u32_u24 v{PA}, 9600, v2
        s_waitcnt lgkmcnt(0)
        buffer_load_dword v{PD}, v{PA}, s[{SW}:{SW+3}], s41 offen
        """)
    elif PF:
        k(f"""
        s_lshl_b32 s41, s38, 2
        s_add_u32 s41, s41, s26      ; w'
        s_cmp_lt_u32 s38, 10
        s_cbranch_scc1 {Lx}
        v_lshrrev_b32 v6, 4, v2
        v_mul_u32_u24 v6, {3840-2048}, v6
        v_lshl_add_u32 v{PA}, v2, 7, v6
        s_mul_i32 s41, s41, {4*3840}
        s_mul_i32 s42, s40, 1792
        s_add_u32 s41, s41, s42
        s_sub_u32 s41, s41, {40*4*3840}
        s_add_u32 s42, s41, {320*3840}
        s_waitcnt lgkmcnt(0)
        s_mov_b64 s[44:45], s[{SW}:{SW+1}]
        s_mov_b32 s46, {SIZE['wqkv']}
        s_branch {Lj}
        {Lx}:
        v_mul_u32_u24 v{PA}, 1280, v2
        s_lshl_b32 s42, s39, 3
        s_and_b32 s43, s41, 7
        s_add_u32 s42, s42, s43
        s_mul_i32 s42, s42, {64*1280}
        s_lshr_b32 s41, s41, 3
        s_lshl_b32 s41, s41, 7
        s_add_u32 s41, s41, s42
        s_add_u32 s42, s41, 640
        s_waitcnt lgkmcnt(0)
        s_mov_b64 s[44:45], s[{SX}:{SX+1}]
        s_mov_b32 s46, {SIZE['x']}
        {Lj}:
        s_mov_b32 s47, 0x00020000
        buffer_load_dword v{PD}, v{PA}, s[44:47], s41 offen
        """)
        if PF == 1: k(f"buffer_load_dword v{PD+1}, v{PA}, s[44:47], s42 offen")
        k("s_mov_b32 s43, s42")
    T0 = FB[0]
    k(f"""
    v_and_b32 v3, 31, v2         ; m
    v_lshrrev_b32 v4, 5, v2      ; hf
    v_bfe_u32 v5, v3, 1, 3
    v_xor_b32 v5, v5, v4
    v_lshlrev_b32 v5, 4, v5
    v_lshl_add_u32 v5, v3, 7, v5
    s_lshr_b32 s27, s26, 1       ; wr
    s_and_b32 s28, s26, 1        ; wc
    s_lshl_b32 s29, s26, 12
    v_add_u32 v{XA}, s29, v5
    v_xor_b32 v{XA+1}, 32, v{XA}
    v_xor_b32 v{XA+2}, 64, v{XA}
    v_xor_b32 v{XA+3}, 0x60, v{XA}
    v_xor_b32 v{XB}, 0x1000, v{XA}
    v_xor_b32 v{XB+1}, 0x1000, v{XA+1}
    v_xor_b32 v{XB+2}, 0x1000, v{XA+2}
    v_xor_b32 v{XB+3}, 0x1000, v{XA+3}
    v_bfe_u32 v6, v2, 2, 2       ; r
    v_lshl_add_u32 v7, v4, 3, v6 ; row
    v_lshlrev_b32 v7, 8, v7
    v_bfe_u32 v1, v2, 4, 1
    v_lshl_add_u32 v7, v1, 5, v7
    v_and_b32 v1, 3, v2
    v_lshl_add_u32 v7, v1, 3, v7
    v_add_u32 v7, 16384, v7
    s_lshl_b32 s30, s28, 1
    s_add_u32 s30, s30, s27      ; n0
    s_xor_b32 s31, s30, 1        ; n1
    v_xor_b32 v1, s30, v6
    v_lshl_add_u32 v{WA}, v1, 6, v7
    v_xor_b32 v{WA+1}, 64, v{WA}
    ; selector
    v_lshrrev_b32 v1, 2, v2
    v_lshrrev_b32 v6, 4, v2
    v_xor_b32 v1, v1, v6
    v_and_b32 v1, 1, v1
    v_add_u32 v1, -1, v1
    v_and_b32 v{SEL}, 0x3f803f80, v1
    v_mov_b32 v{SEL+1}, v{SEL}
    v_mov_b32 v{SEL+2}, v{SEL}
    v_mov_b32 v{SEL+3}, v{SEL}
    v_and_b32 v1, 3, v2
    v_cmp_eq_u32 s[48:49], 1, v1
    v_cmp_eq_u32 s[50:51], 2, v1
    v_cmp_eq_u32 s[52:53], 3, v1
    """)
    code_prefetch(k, 26, PD + 2)
    for i in range(16): k(f"v_mov_b32 v{CS+i}, 0")
    for i in range(64): k(f"v_mov_b32 v{ACC+i}, 0")
    if PF == 2: k(f"buffer_load_dword v{PD+1}, v{PA}, s[44:47], s43 offen")
    L_V = k.lab("v")
    k(f"""
    s_lshl_b32 s32, s24, 2
    s_add_u32 s32, s32, s26
    s_xor_b32 s33, s32, 1
    s_mul_i32 s32, s32, {TS}
    s_mul_i32 s33, s33, {TS}
    {f's_add_u32 s32, s32, {KV_OFF}' if KV_OFF else ''}
    {f's_add_u32 s33, s33, {KV_OFF}' if KV_OFF else ''}
    s_cmp_ge_u32 s25, 10
    s_cbranch_scc1 {L_V}
    """)
    NORD = E("NORD", 0)
    def rd0(buf, off, s):
        b = FB[buf]
        if NORD: return
        k(f"ds_read_b64_tr_b16 v[{b+8}:{b+9}], v{WA} offset:{off + s*4096}")
        k(f"ds_read_b64_tr_b16 v[{b+10}:{b+11}], v{WA} offset:{off + s*4096 + 1024}")
        k(f"ds_read_b128 v[{b}:{b+3}], v{XA+s} offset:{off}")
    def rd1(buf, off, s):
        b = FB[buf]
        if NORD: return
        k(f"ds_read_b128 v[{b+4}:{b+7}], v{XB+s} offset:{off}")
        k(f"ds_read_b64_tr_b16 v[{b+12}:{b+13}], v{WA+1} offset:{off + s*4096}")
        k(f"ds_read_b64_tr_b16 v[{b+14}:{b+15}], v{WA+1} offset:{off + s*4096 + 1024}")
    def acc(ts, ns): return ACC + (ts * 2 + ns) * 16
    def mm(buf, ts, ns, isv):
        b = FB[buf]
        x = vr(b + 4 * ts, 4); w = vr(b + 8 + 4 * ns, 4); c = vr(acc(ts, ns), 16)
        if os.environ.get("FAKE16"):
            o = acc(ts, ns) + 8 * buf
            k(f"v_mfma_f32_16x16x32_bf16 {vr(o,4)}, {x}, {w}, {vr(o,4)}")
            k(f"v_mfma_f32_16x16x32_bf16 {vr(o+4,4)}, {w}, {x}, {vr(o+4,4)}")
            return
        k(f"v_mfma_f32_32x32x16_bf16 {c}, {x if isv else w}, {w if isv else x}, {c}")
    SM = os.environ.get("SM", "qQrc")
    def stats(buf):
        b = FB[buf]
        for ch in SM:
            h = 1 if ch == "Q" else 0
            if ch in "qQ": k(f"v_mfma_f32_4x4x4_16b_bf16 {vr(SQ+4*h,4)}, {vr(b+2*h,2)}, {vr(b+2*h,2)}, {vr(SQ+4*h,4)}")
            if ch == "r": k(f"v_mfma_f32_16x16x32_bf16 {vr(RS,4)}, {vr(SEL,4)}, {vr(b,4)}, {vr(RS,4)}")
            if ch == "c": k(f"v_mfma_f32_16x16x32_bf16 {vr(CS,4)}, {vr(SEL,4)}, {vr(b+8,4)}, {vr(CS,4)}")
    def tog(regs):
        for r in regs: k(f"v_xor_b32 v{r}, 0x10000, v{r}")
    def mainloop(isv):
        L = k.lab("loop"); Lin = k.lab("in")
        k("s_mov_b32 s34, 5")
        k("s_waitcnt lgkmcnt(0)")
        k.stamp(1)
        k("s_barrier")
        k.stamp(2)
        if PF == 3: k(f"buffer_load_dword v{PD+1}, v{PA}, s[44:47], s43 offen")
        rd0(0, 0, 0); rd1(0, 0, 0)
        k(f"s_branch {Lin}")
        nxt = lambda t: ((t + 1) & 1, ((t + 1) >> 2 & 1) * 32768, (t + 1) & 3)
        def head(t):
            b = t & 1
            k("s_waitcnt lgkmcnt(3)")
            mm(b, 0, 0, isv)
            if t & 3 == 3:
                k("s_waitcnt lgkmcnt(0)")
                if not E("NOBAR", 0): k("s_barrier")
            rd0(*nxt(t))
            stats(b)
        def tail(t):
            b = t & 1
            if t & 3 != 3: k("s_waitcnt lgkmcnt(3)")
            mm(b, 1, 0, isv)
            rd1(*nxt(t))
            mm(b, 0, 1, isv)
            if 3 <= t <= 6: tog([XA + t - 3, XB + t - 3])
            if t == 6: tog([WA, WA + 1]); k("s_sub_u32 s34, s34, 1"); k("s_cmp_lg_u32 s34, 0")
            mm(b, 1, 1, isv)
        k(f"{L}:")
        tail(7)
        k(f"{Lin}:")
        for t in range(7): head(t); tail(t)
        head(7)
        k(f"s_cbranch_scc1 {L}")
        k.stamp(3)
        T = SEL
        mm(1, 1, 0, isv)
        k(f"""
        s_lshl_b32 s35, s30, 8
        v_lshl_add_u32 v1, v3, 3, s35
        v_add_u32 v1, {STAT+1024}, v1
        s_lshl_b32 s35, s26, 7
        v_lshl_add_u32 v7, v3, 2, s35
        v_add_u32 v7, {STAT}, v7
        v_pk_add_f32 v[{SQ}:{SQ+1}], v[{SQ}:{SQ+1}], v[{SQ+4}:{SQ+5}]
        v_pk_add_f32 v[{SQ+2}:{SQ+3}], v[{SQ+2}:{SQ+3}], v[{SQ+6}:{SQ+7}]
        """)
        mm(1, 0, 1, isv)
        k(f"""
        v_cndmask_b32 v{SQ}, v{SQ}, v{SQ+1}, s[48:49]
        v_cndmask_b32 v{SQ}, v{SQ}, v{SQ+2}, s[50:51]
        v_cndmask_b32 v{SQ}, v{SQ}, v{SQ+3}, s[52:53]
        v_mul_f32 v{RS}, {f32(-1.0/640)}, v{RS}          ; -mean
        v_mov_b32 v{SQ+1}, v{SQ}
        v_cvt_pk_bf16_f32 v{T}, v{CS}, v{CS}
        """)
        mm(1, 1, 1, isv)
        k(f"""
        v_permlane32_swap_b32 v{SQ}, v{SQ+1}
        v_and_b32 v{T+2}, 0xffff0000, v{T}
        v_add_f32 v{SQ}, v{SQ}, v{SQ+1}
        v_sub_f32 v{T+2}, v{CS}, v{T+2}
        v_mul_f32 v{SQ}, {f32(1.0/640)}, v{SQ}
        v_cvt_pk_bf16_f32 v{T+1}, v{T+2}, v{T+2}
        v_fma_f32 v{SQ}, -v{RS}, v{RS}, v{SQ}          ; var
        ds_write_b64 v1, v[{T}:{T+1}]
        v_cvt_pk_bf16_f32 v{RS+1}, v{RS}, v{RS}
        v_max_f32 v{SQ}, 0, v{SQ}
        v_and_b32 v{RS+1}, 0xffff0000, v{RS+1}
        v_add_f32 v{SQ}, {f32(1e-5)}, v{SQ}
        v_sub_f32 v{RS+1}, v{RS}, v{RS+1}
        v_rsq_f32 v{SQ}, v{SQ}
        v_cvt_pk_bf16_f32 v{RS}, v{RS}, v{RS+1}
        ds_write_b32 v7, v{RS}
        ds_write_b32 v7, v{SQ} offset:512
        v_xor_b32 v6, 256, v1
        v_xor_b32 v7, 128, v7
        v_add_u32 v4, -1, v4          ; hf==0 ? ~0 : 0
        v_mov_b32 v{RS+1}, v{RS}
        s_waitcnt lgkmcnt(0)
        s_barrier
        ds_read_b64 v[{T+2}:{T+3}], v6
        ds_read_b32 v{RS+2}, v7
        """)
    def ext_mfma(isv, nwait):
        T = SEL
        def em(ts, ns):
            x = vr(RS + 2 * ts, 2); w = vr(T + 2 * ns, 2); c = vr(acc(ts, ns), 16)
            k(f"v_mfma_f32_32x32x8_bf16 {c}, {x if isv else w}, {w if isv else x}, {c}")
        k(f"""
        v_and_b32 v{T}, v{T}, v4
        v_and_b32 v{T+1}, v{T+1}, v4
        """)
        em(0, 0)
        k(f"""
        s_waitcnt lgkmcnt({nwait})
        v_mov_b32 v{RS+3}, v{RS+2}
        v_and_b32 v{T+2}, v{T+2}, v4
        v_and_b32 v{T+3}, v{T+3}, v4
        """)
        em(1, 0); em(0, 1); em(1, 1)
    k(f"""
    s_cmp_ge_u32 s25, 5
    s_cselect_b32 s35, 5, 0
    s_cselect_b32 s36, 0, {Q_OFF-KV_OFF}
    s_cselect_b32 s37, 1.0, {f32(LOG2E * 20 ** -0.5)}
    s_sub_u32 s29, s25, s35
    s_add_u32 s32, s32, s36
    s_add_u32 s33, s33, s36
    s_lshl_b32 s29, s29, 5       ; (ct%5)*32
    """)
    for ns in range(2):
        k(f"s_lshl_b32 s35, s{30+ns}, 3")
        k(f"s_add_u32 s35, s35, s29")
        for rq in range(4):
            o = OFF + ns * 4 + rq
            k(f"""
            v_add3_u32 v1, v4, s35, {2*rq}     ; g4
            v_mul_u32_u24 v6, 205, v1
            v_lshrrev_b32 v6, 10, v6           ; head
            v_mul_u32_u24 v7, 5, v6
            v_sub_u32 v1, v1, v7               ; p
            v_mul_u32_u24 v6, {HS}, v6
            v_lshl_add_u32 v6, v1, 8, v6
            v_lshl_add_u32 v{o}, v3, 3, v6
            """)
    if E("TW", 0):
        k("s_waitcnt lgkmcnt(0)")
        for i in (0, 3, 4, 7): k(f"buffer_load_dword v{PD+3}, v{OFF+i}, s[{SWS}:{SWS+3}], s32 offen")
    mainloop(False)
    k(f"ds_read_b32 v{SQ+2}, v7 offset:512")
    k(f"v_mul_f32 v{SQ}, s37, v{SQ}")
    ext_mfma(False, 1)
    k("s_waitcnt lgkmcnt(0)")
    k(f"v_mul_f32 v{SQ+2}, s37, v{SQ+2}")
    for ns in range(2):
        for ts in range(2):
            c = acc(ts, ns)
            for i in range(0, 16, 2):
                k(f"v_pk_mul_f32 v[{c+i}:{c+i+1}], v[{c+i}:{c+i+1}], v[{SQ+2*ts}:{SQ+2*ts+1}] op_sel_hi:[1,0]")
            for i in range(8):
                k(f"v_cvt_pk_bf16_f32 v{c+i}, v{c+2*i}, v{c+2*i+1}")
            for rq in range(4):
                k(f"buffer_store_dwordx2 v[{c+2*rq}:{c+2*rq+1}], v{OFF+ns*4+rq}, s[{SWS}:{SWS+3}], s{32+ts} offen{QSC}")
    k.end(SWS, 0)
    k(f"{L_V}:")
    k(f"""
    s_sub_u32 s29, s25, 10
    s_lshl_b32 s29, s29, 7
    """)
    for ns in range(2):
        k(f"""
        s_lshl_b32 s35, s{30+ns}, 5
        s_add_u32 s35, s35, s29
        v_add_u32 v1, s35, v3
        v_mul_u32_u24 v6, 3277, v1
        v_lshrrev_b32 v6, 16, v6           ; head
        v_mul_u32_u24 v7, 20, v6
        v_sub_u32 v1, v1, v7               ; d
        v_mul_u32_u24 v6, {HS}, v6
        v_lshl_add_u32 v6, v1, 4, v6
        v_mul_u32_u24 v1, 320, v4
        v_add_u32 v{OFF+ns}, v6, v1
        """)
    k(f"""
    s_lshl_b32 s35, s26, 7
    s_add_u32 s35, s35, {STAT+512}
    v_lshl_add_u32 v{OFF+2}, v4, 4, s35
    v_xor_b32 v{OFF+3}, 128, v{OFF+2}
    """)
    if E("TW", 0):
        k("s_waitcnt lgkmcnt(0)")
        for i in (0, 1): k(f"buffer_load_dword v{PD+3}, v{OFF+i}, s[{SWS}:{SWS+3}], s32 offen offset:1280")
    mainloop(True)
    RV = FB[0]
    for ts in range(2):
        for rq in range(4):
            r = (RV, RV2)[ts] + 4 * rq
            k(f"ds_read_b128 v[{r}:{r+3}], v{OFF+2+ts} offset:{rq*32}")
    ext_mfma(True, 8)
    for ns in range(2):
        for ts in range(2):
            c = acc(ts, ns); r = (RV, RV2)[ts]
            if ns == 0: k(f"s_waitcnt lgkmcnt({4 - 4*ts})")
            for i in range(0, 16, 2):
                k(f"v_pk_mul_f32 v[{c+i}:{c+i+1}], v[{c+i}:{c+i+1}], v[{r+i}:{r+i+1}]")
            for i in range(8):
                k(f"v_cvt_pk_bf16_f32 v{c+i}, v{c+2*i}, v{c+2*i+1}")
            for s in range(2):
                k(f"buffer_store_dwordx4 v[{c+4*s}:{c+4*s+3}], v{OFF+ns}, s[{SWS}:{SWS+3}], s{32+ts} offen offset:{1280 + s*640}{VSC}")
    k.end(SWS, 0)
    k(f"{L_help}:")
    a = Alloc(8)
    GA = a(4); GB = a(4)
    k(f"""
    s_sub_u32 s26, s26, 4        ; w
    v_lshrrev_b32 v1, 3, v2
    v_mul_u32_u24 v1, 1280, v1
    v_and_b32 v6, 7, v2
    v_lshrrev_b32 v7, 4, v2
    v_xor_b32 v6, v6, v7
    v_lshl_add_u32 v{GA}, v6, 4, v1
    v_xor_b32 v6, 4, v6
    v_lshl_add_u32 v{GA+1}, v6, 4, v1
    v_add_u32 v{GA+1}, {10240-1024}, v{GA+1}
    v_add_u32 v{GA+2}, {2*(10240-1024)}, v{GA}
    v_add_u32 v{GA+3}, {2*(10240-1024)}, v{GA+1}
    s_lshl_b32 s30, s24, 2
    s_add_u32 s30, s30, s26
    s_mul_i32 s30, s30, {32*1280}     ; A soffset
    v_mul_u32_u24 v1, 3840, v7
    v_lshlrev_b32 v7, 2, v7
    v_and_b32 v6, 15, v2
    v_xor_b32 v6, v6, v7
    v_lshl_add_u32 v{GB}, v6, 4, v1
    v_add_u32 v{GB+1}, {15360-1024}, v{GB}
    v_add_u32 v{GB+2}, {2*(15360-1024)}, v{GB}
    v_add_u32 v{GB+3}, {3*(15360-1024)}, v{GB}
    s_mul_i32 s31, s26, {16*3840}
    s_lshl_b32 s27, s25, 8
    s_add_u32 s31, s31, s27           ; B soffset
    s_lshl_b32 s32, s26, 12
    s_mov_b32 s34, 0
    """)
    NPH = E("NPH", 4)
    if NPH > 1:
        if NPH == 8: k("s_lshl_b32 s35, s24, 1"); k("s_add_u32 s35, s35, s25")
        else: k("s_add_u32 s35, s24, s25")
        if NPH in (2, 4, 8): k(f"s_and_b32 s35, s35, {NPH-1}")
        else:
            k(f"s_mul_i32 s36, s35, {(256 + NPH - 1)//NPH}"); k("s_lshr_b32 s36, s36, 8"); k(f"s_mul_i32 s36, s36, {NPH}"); k("s_sub_u32 s35, s35, s36")
        k(f"""
        s_mul_i32 s35, s35, {(2560 + NPH - 1)//NPH}
        s_lshr_b32 s35, s35, 8
        s_lshl_b32 s36, s35, 7
        s_add_u32 s30, s30, s36
        s_mul_i32 s36, s35, {64*3840}
        s_add_u32 s31, s31, s36
        s_sub_u32 s35, 10, s35
        """)
    k.stamp(1)
    k("s_waitcnt lgkmcnt(0)")
    k.stamp(2)
    Lp = k.lab("dma"); Lw = k.lab("w"); Lb = k.lab("b")
    if E("NOHELP", 0): k("s_barrier"); k.end(SWS, 0)
    k(f"{Lp}:")
    k("s_mov_b32 m0, s32")
    k("s_add_u32 s34, s34, 1")
    for i in range(4): k(f"buffer_load_dwordx4 v{GA+i}, s[{SX}:{SX+3}], s30 offen offset:{i*1024} lds")
    k("s_add_u32 m0, s32, 16384")
    if NPH > 1:
        k("s_cmp_eq_u32 s34, s35")
        k(f"s_cselect_b32 s37, -9, 1")
        k(f"s_lshl_b32 s36, s37, 7")
        k(f"s_mul_i32 s37, s37, {64*3840}")
        k("s_add_u32 s30, s30, s36")
    else: k("s_add_u32 s30, s30, 128")
    for i in range(4): k(f"buffer_load_dwordx4 v{GB+i}, s[{SW}:{SW+3}], s31 offen offset:{i*1024} lds")
    k(f"s_add_u32 s31, s31, {'s37' if NPH > 1 else 64*3840}")
    k("s_add_u32 s32, s32, 32768")
    k("s_and_b32 s32, s32, 0x1ffff")
    if E("NODMA", 0): k(f"s_mov_b32 s{SX+2}, 0"); k(f"s_mov_b32 s{SW+2}, 0")
    if PRE == 3:
        k(f"""
        s_cmp_lt_u32 s34, 3
        s_cbranch_scc1 {Lp} ; @seq=TTN
        s_waitcnt vmcnt(16)
        s_barrier
        s_cmp_lt_u32 s34, 10
        s_cbranch_scc1 {Lp} ; @seq=TN
        """)
    elif PRE == 2:
        k(f"""
        s_bitcmp1_b32 0xa, s34
        s_cbranch_scc1 {Lp} ; @seq=TNTN
        s_cmp_lg_u32 s34, 2
        s_cbranch_scc1 {Lw} ; @seq=NT
        s_waitcnt vmcnt(8)
        {Lw}:
        s_waitcnt vmcnt(16)
        s_barrier
        s_cmp_lt_u32 s34, 10
        s_cbranch_scc1 {Lp} ; @seq=TTN
        """)
    else:
        k(f"""
        s_bitcmp1_b32 0x14, s34
        s_cbranch_scc1 {Lp} ; @seq=NTNTN
        s_cmp_gt_u32 s34, 3
        s_cbranch_scc1 {Lw} ; @seq=NNT
        s_waitcnt vmcnt(8)
        s_cmp_gt_u32 s34, 1
        s_cbranch_scc1 {Lw} ; @seq=NT
        s_waitcnt vmcnt(0)
        {Lw}:
        s_waitcnt vmcnt(16)
        s_barrier
        s_cmp_lt_u32 s34, 10
        s_cbranch_scc1 {Lp} ; @seq=TTTN
        """)
    k("""
    s_waitcnt vmcnt(8)
    s_barrier
    s_waitcnt vmcnt(0)
    s_barrier
    """)
    k.end(SWS, 0)
    k(f"{L_end}:")
    k("s_endpgm")
    return k
```

```python
from common import *
PRIO = int(os.environ.get("PRIO", "2"))
OSC = os.environ.get("OSC", " sc1")
RSC = os.environ.get("RSC", " sc1")
TLB = int(os.environ.get("TLB", "0"))
CSC = os.environ.get("CSC", " sc1")
PJ = int(os.environ.get("PJ", "19"))

def build_k2():
    k = Kern("attn_kernel", 256, 512, 163840)
    SWS, SRC = 12, 16
    L_end = k.lab("end")
    a = Alloc(8)
    QL = [a(4), a(4)]; QH = a(2); AK = a(); AH = a(); AV = a(); GL = a(); L8 = a()
    NM = a(32, 4); S = [a(32, 4), a(32, 4)]; P = a(16, 4); O = a(32, 4)
    KL = [a(4), a(4)]; KH = [a(2), a(2)]; V = [a(8), a(8)]
    RP = a(20, 4); RA = a(2); SEL = a(4); CS = a(4)
    k(f"""
    s_cmp_ge_u32 s2, 256
    s_cbranch_scc1 {L_end}
    """)
    k.stamp(0)
    load_srds(k, [("ws", SWS)])
    k(f"""
    s_load_dwordx2 s[20:21], s[0:1], {ARG['wo']}
    s_load_dwordx4 s[24:27], s[0:1], {ARG['w1']}
    s_load_dwordx2 s[22:23], s[0:1], {ARG['w2']}
    v_lshrrev_b32 v1, 6, v0
    v_and_b32 v2, 63, v0           ; lane
    v_readfirstlane_b32 s30, v1    ; wave
    s_and_b32 s28, s2, 7
    s_lshl_b32 s28, s28, 2
    s_lshr_b32 s29, s2, 6
    s_add_u32 s28, s28, s29        ; head
    v_lshlrev_b32 v{GL}, 4, v2
    v_lshlrev_b32 v{L8}, 3, v2
    s_mul_i32 s31, s28, {HS}
    {f's_add_u32 s31, s31, {KV_OFF}' if KV_OFF else ''}
    s_lshl_b32 s34, s30, 11
    s_add_u32 s35, s31, s34
    s_mov_b32 m0, s34
    v_and_b32 v3, 31, v2           ; m
    v_lshrrev_b32 v4, 5, v2        ; hf
    s_bfe_u32 s29, s2, 0x30003     ; qb
    s_lshr_b32 s39, s30, 2         ; par
    s_lshl_b32 s32, s29, 2
    s_and_b32 s33, s30, 3
    s_add_u32 s32, s32, s33
    s_lshl_b32 s32, s32, 1
    s_mul_i32 s33, s32, {TS}
    s_add_u32 s33, s33, s31
    s_add_u32 s33, s33, {Q_OFF-KV_OFF}
    s_add_u32 s32, s32, s39
    s_mul_i32 s37, s39, {TS}
    s_add_u32 s36, s33, s37
    s_sub_u32 s38, s33, s37
    v_lshlrev_b32 v5, 3, v3
    v_xor_b32 v1, s39, v4
    v_mul_u32_u24 v1, {TS}, v1
    v_add_u32 v1, v1, v5
    s_waitcnt lgkmcnt(0)
    """)
    def dma(b):
        if b: k(f"s_add_u32 m0, s34, {b*16384}"); k("s_add_u32 s35, s35, 16384")
        for i in range(2): k(f"buffer_load_dwordx4 v{GL}, s[{SWS}:{SWS+3}], s35 offen offset:{i*1024} lds")
    dma(0)
    k(f"""
    buffer_load_dwordx2 {vr(QL[0],2)}, v{L8}, s[{SWS}:{SWS+3}], s36 offen
    buffer_load_dwordx2 {vr(QL[0]+2,2)}, v{L8}, s[{SWS}:{SWS+3}], s36 offen offset:512
    buffer_load_dwordx2 {vr(QL[1],2)}, v{L8}, s[{SWS}:{SWS+3}], s38 offen offset:{TS}
    buffer_load_dwordx2 {vr(QL[1]+2,2)}, v{L8}, s[{SWS}:{SWS+3}], s38 offen offset:{TS+512}
    buffer_load_dwordx2 {vr(QH,2)}, v1, s[{SWS}:{SWS+3}], s33 offen offset:1024
    v_add_u32 v{AK}, s37, v{L8}
    v_add_u32 v5, 1024, v5
    v_add_u32 v{AH}, s37, v5
    v_mul_u32_u24 v{AV}, 320, v4
    v_lshl_add_u32 v{AV}, v3, 4, v{AV}
    s_add_u32 s37, s37, 1280
    v_add_u32 v{AV}, s37, v{AV}
    s_mov_b32 s50, 0x000fffff
    s_mov_b32 s51, 0x000fffff
    """)
    for i in range(32): k(f"v_mov_b32 v{O+i}, 0")
    dma(1)
    k("v_cmp_eq_u32 vcc, 20, v3"); k("v_mov_b32 v6, 0x3f803f80")
    for i in range(16): k(f"v_cndmask_b32 v{V[0]+i}, 0, v6, vcc")
    dma(2)
    def rdK(b, off):
        k(f"ds_read2st64_b64 {vr(KL[b],4)}, v{AK} offset0:{off//512} offset1:{off//512+1}")
        k(f"ds_read_b64 {vr(KH[b],2)}, v{AH} offset:{off}")
    def rdV(b, off):
        k("s_mov_b64 exec, s[50:51]")
        k(f"ds_read_b128 {vr(V[b],4)}, v{AV} offset:{off}")
        k(f"ds_read_b128 {vr(V[b]+4,4)}, v{AV} offset:{off+640}")
        k("s_mov_b64 exec, -1")
    def qkh(b, kh, c): k(f"v_mfma_f32_32x32x4_2b_bf16 {vr(S[b],32)}, {vr(kh,2)}, {vr(QH,2)}, {c}")
    def qkl(b, kl, q): k(f"v_mfma_f32_32x32x16_bf16 {vr(S[b]+16*q,16)}, {vr(kl,4)}, {vr(QL[q],4)}, {vr(S[b]+16*q,16)}")
    def pv(b, q, h): k(f"v_mfma_f32_32x32x16_bf16 {vr(O+16*q,16)}, {vr(V[b]+4*h,4)}, {vr(P+8*q+4*h,4)}, {vr(O+16*q,16)}")
    def exps(b, lo, hi):
        for i in range(lo, hi): k(f"v_exp_f32 v{S[b]+i}, v{S[b]+i}")
    def cvts(b, lo, hi):
        for i in range(lo, hi): k(f"v_cvt_pk_bf16_f32 v{P+i}, v{S[b]+2*i}, v{S[b]+2*i+1}")
    def maxred(s, dst, init):
        if init: k(f"v_max3_f32 v{dst}, v{s}, v{s+1}, v{s+2}"); k(f"v_max_f32 v{dst}, v{dst}, v{s+3}"); st = 4
        else: st = 0
        for i in range(st, 16, 2): k(f"v_max3_f32 v{dst}, v{dst}, v{s+i}, v{s+i+1}")
    k("s_waitcnt vmcnt(4)")
    k("s_barrier")
    k.stamp(2)
    k(f"ds_read_b64 {vr(P+4,2)}, v5")
    k(f"ds_read2st64_b64 {vr(P,4)}, v{L8} offset1:1")
    rdK(0, 0); rdK(1, 2*TS); rdV(0, 0)
    k("s_waitcnt lgkmcnt(6)")
    k(f"v_mfma_f32_32x32x16_bf16 {vr(S[1],16)}, {vr(P,4)}, {vr(QL[0],4)}, 0")
    k(f"v_mfma_f32_32x32x16_bf16 {vr(S[1]+16,16)}, {vr(P,4)}, {vr(QL[1],4)}, 0")
    qkh(1, P + 4, vr(S[1], 32))
    maxred(S[1], 6, True); maxred(S[1] + 16, 7, True)
    k(f"""
    v_permlane32_swap_b32 v6, v7
    v_max_f32 v6, v6, v7
    v_mov_b32 v7, v6
    v_permlane32_swap_b32 v6, v7
    """)
    for i in range(32): k(f"v_sub_f32 v{NM+i}, 0, v{6 + i//16}")
    k("s_waitcnt lgkmcnt(4)")
    k(f"v_mfma_f32_32x32x16_bf16 {vr(S[0],16)}, {vr(KL[0],4)}, {vr(QL[0],4)}, {vr(NM,16)}")
    k(f"v_mfma_f32_32x32x16_bf16 {vr(S[0]+16,16)}, {vr(KL[0],4)}, {vr(QL[1],4)}, {vr(NM+16,16)}")
    qkh(0, KH[0], vr(S[0], 32))
    L_loop = k.lab("loop"); L_epi = k.lab("epi"); L_slow = k.lab("slow")
    L_r1 = k.lab("r1"); L_r1r = k.lab("r1r"); L_hk = k.lab("hk"); L_hkr = k.lab("hkr")
    k("s_mov_b32 s36, 0            ; round")
    k("s_mov_b32 s38, 0")
    def iteration(j, first=False, top=None, mid=None, late=None):
        c = j & 1; n = 1 - c
        exps(c, 0, 2)
        if not first: pv(n, 1, 1)
        if top: top()
        k("s_waitcnt lgkmcnt(0)")
        if j == 6:
            k(f"v_add_u32 v{AK}, {16*TS}, v{AK}"); k(f"v_add_u32 v{AH}, {16*TS}, v{AH}")
        if j == 7: k(f"v_add_u32 v{AV}, {16*TS}, v{AV}")
        rdV(n, ((j + 1) & 7) * 2 * TS)
        rdK(c, ((j + 2) & 7) * 2 * TS)
        qkh(n, KH[n], vr(NM, 32))
        exps(c, 2, 8); cvts(c, 0, 4); exps(c, 8, 10)
        pv(c, 0, 0)
        exps(c, 10, 16); cvts(c, 4, 5)
        qkl(n, KL[n], 0)
        cvts(c, 5, 8); exps(c, 16, 19)
        pv(c, 0, 1)
        if mid: mid()
        exps(c, 19, 23)
        qkl(n, KL[n], 1)
        exps(c, 23, 24); cvts(c, 8, 12); exps(c, 24, 26)
        pv(c, 1, 0)
        if late: late()
        exps(c, 26, 32); cvts(c, 12, 16)
    def sync(n):
        def f():
            k(f"s_waitcnt vmcnt({n})"); k("s_barrier")
            if PRIO == 1: k("s_setprio 1")
        return f
    lo = (lambda: k("s_setprio 0")) if PRIO == 1 else None
    if PRIO == 1: k("s_setprio 1")
    iteration(0, first=True, mid=lambda: dma(3), late=lo)
    iteration(1, top=sync(4), mid=lambda: dma(4))
    iteration(2, mid=lambda: dma(5))
    iteration(3, mid=lambda: dma(6), late=lo)
    iteration(4, top=sync(4), mid=lambda: dma(7))
    iteration(5, mid=lambda: dma(8))
    iteration(6, mid=lambda: dma(9))
    iteration(7, late=lo)
    k(f"{L_loop}:")
    def hook():
        k("s_cmp_lg_u32 s36, 1"); k(f"s_cbranch_scc1 {L_hk} ; @seq=TNT"); k(f"{L_hkr}:")
    def lastlo():
        if PRIO:
            Ls = k.lab("np")
            k(f"s_cmp_lg_u32 s36, {PJ//8}"); k(f"s_cbranch_scc1 {Ls}"); k("s_setprio 0"); k(f"{Ls}:")
    def cnt(): k("s_add_u32 s36, s36, 1"); k("s_cmp_lt_u32 s36, 3")
    for j in range(8):
        iteration(j, top=hook if j == 0 else None, mid=lastlo if j == PJ % 8 else None, late=cnt if j == 7 else None)
    k(f"s_cbranch_scc1 {L_loop} ; @seq=TTN")
    k(f"""
    s_mul_i32 s33, s30, 5120
    v_add_u32 v1, s33, v{GL}
    """)
    pv(1, 1, 1)
    k.stamp(5)
    k(f"""
    s_xor_b32 s33, s30, 4
    s_mul_i32 s33, s33, 5120
    v_add_u32 v6, s33, v{GL}
    """)
    for i in range(3): k(f"ds_write_b128 v1, {vr(O+16+4*i,4)} offset:{i*1024}")
    k(f"""
    s_mul_i32 s33, s32, {2*80*256}
    s_add_u32 s33, s33, {OF_OFF}
    s_lshl_b32 s34, s28, 9
    s_add_u32 s34, s34, s33            ; chunk 2h
    s_lshl_b32 s35, s28, 7
    s_add_u32 s35, s35, s33
    s_add_u32 s35, s35, {64*256}
    v_lshrrev_b32 v1, 4, v3
    v_mul_u32_u24 v1, {80*256}, v1
    v_and_b32 v7, 15, v3
    v_lshl_add_u32 v1, v7, 3, v1
    v_lshl_add_u32 v1, v4, 8, v1
    s_waitcnt lgkmcnt(0)
    s_barrier
    """)
    k.stamp(6)
    for i in range(3): k(f"ds_read_b128 {vr(O+16+4*i,4)}, v6 offset:{i*1024}")
    for i in range(12):
        if i % 4 == 0: k(f"s_waitcnt lgkmcnt({2 - i//4})")
        k(f"v_add_f32 v{O+i}, v{O+i}, v{O+16+i}")
    k(f"{L_epi}:")
    k(f"""
    v_mov_b32 v6, v{O+8}
    v_mov_b32 v7, v{O+8}
    v_mul_f32 v{P}, 0, v{O}
    v_mul_f32 v{P+1}, 0, v{O+8}
    v_permlane32_swap_b32 v6, v7       ; v7 = l
    """)
    for i in range(1, 8): k(f"v_fma_f32 v{P}, v{O+i}, 0, v{P}")
    for i in range(9, 12): k(f"v_fma_f32 v{P+1}, v{O+i}, 0, v{P+1}")
    k(f"""
    v_rcp_f32 v6, v7
    v_mov_b32 v{P+2}, {f32(2.0**60)}
    v_cmp_nlt_f32 s[40:41], v7, v{P+2}
    v_cmp_u_f32 s[42:43], v{P}, v{P+1}
    """)
    for i in range(0, 12, 2): k(f"v_pk_mul_f32 v[{O+i}:{O+i+1}], v[{O+i}:{O+i+1}], v[6:7] op_sel_hi:[1,0]")
    k(f"""
    s_or_b64 s[40:41], s[40:41], s[42:43]
    s_or_b32 s40, s40, s41
    s_andn2_b32 s40, s40, s38
    s_cbranch_scc1 {L_slow}
    """)
    for i in range(6): k(f"v_cvt_pk_bf16_f32 v{P+i}, v{O+2*i}, v{O+2*i+1}")
    k(f"""
    buffer_store_dwordx2 v[{P}:{P+1}], v1, s[{SWS}:{SWS+3}], s34 offen{OSC}
    buffer_store_dwordx2 v[{P+2}:{P+3}], v1, s[{SWS}:{SWS+3}], s34 offen offset:128{OSC}
    s_mov_b64 exec, 0xffffffff
    buffer_store_dwordx2 v[{P+4}:{P+5}], v1, s[{SWS}:{SWS+3}], s35 offen{OSC}
    """)
    k.end(SWS, 1)
    k(f"{L_end}:")
    k("s_endpgm")
    L_j2 = k.lab("j2"); L_wo = k.lab("wo"); L_go = k.lab("go"); L_t2 = k.lab("t2"); L_st = k.lab("st"); L_d = k.lab("d"); L_bar = k.lab("bar")
    slot = lambda s: s * 1024
    k(f"""
    {L_hk}:
    s_waitcnt vmcnt(0)
    s_cmp_lg_u32 s36, 0
    s_cbranch_scc1 {L_r1} ; @seq=NT
    s_barrier
    {"s_setprio 1" if PRIO else ""}
    {"s_memrealtime s[88:89]" if PROF else ""}
    """)
    if TLB:
        k(f"""
        s_load_dwordx2 s[52:53], s[0:1], {ARG['out']}
        s_mov_b32 s54, {SIZE['out']}
        s_mov_b32 s55, 0x00020000
        s_lshr_b32 s40, s2, 3
        s_lshl_b32 s40, s40, 3
        s_add_u32 s40, s40, s30
        s_lshl_b32 s40, s40, {6 + TLB}
        v_lshlrev_b32 v1, {TLB}, v2
        s_add_u32 s41, s40, {HF_OFF}
        s_cmp_lt_u32 s41, {WOF_OFF}
        s_cselect_b32 s41, s41, {WS_SIZE}
        v_add_u32 v6, s41, v1
        v_add_u32 v1, s40, v1
        buffer_load_dword v{CS}, v6, s[{SWS}:{SWS+3}], 0 offen
        s_waitcnt lgkmcnt(0)
        buffer_load_dword v{CS+1}, v1, s[52:55], 0 offen
        """)
    k(f"""
    s_cmp_ge_u32 s2, 164
    s_cbranch_scc1 {L_hkr} ; @both
    s_mul_i32 s34, s30, 5120
    s_mov_b32 s{SRC+3}, 0x00020000
    v_and_b32 v6, 3, v2                ; c
    s_cmp_ge_u32 s2, 96
    s_cbranch_scc1 {L_j2}
    ; ---- W1/W3 strip: ct = J/6, j = J%6
    s_mul_i32 s40, s2, 171
    s_lshr_b32 s40, s40, 10            ; ct
    s_mul_i32 s41, s40, 6
    s_sub_u32 s41, s2, s41             ; j
    s_bitcmp1_b32 s41, 0
    s_cselect_b32 s{SRC}, s26, s24
    s_cselect_b32 s{SRC+1}, s27, s25
    s_mov_b32 s{SRC+2}, {SIZE['w1']}
    s_lshr_b32 s42, s41, 1
    s_lshl_b32 s42, s42, 6
    s_mul_i32 s43, s40, 192
    s_add_u32 s42, s42, s43
    s_mul_i32 s43, s30, {80*3072}
    s_add_u32 s42, s42, s43
    v_lshrrev_b32 v1, 2, v2
    v_mul_u32_u24 v1, 3072, v1
    v_lshl_add_u32 v1, v6, 4, v1
    """)
    for f in range(5):
        k(f"s_add_u32 m0, s34, {slot(f)}")
        if f: k(f"s_add_u32 s42, s42, {16*3072}")
        k(f"buffer_load_dwordx4 v1, s[{SRC}:{SRC+3}], s42 offen lds")
    k(f"""
    s_mul_i32 s44, s40, {41*6}
    s_add_u32 s44, s44, s41
    s_lshl_b32 s44, s44, 10
    s_add_u32 s44, s44, {W13F_OFF}
    s_mul_i32 s45, s30, {5*6144}
    s_add_u32 s45, s45, s44
    s_add_u32 s45, s45, 6144
    s_mov_b32 s46, 6144
    s_branch {L_hkr} ; @seq=T
    {L_j2}:
    s_sub_u32 s40, s2, 96
    s_lshl_b32 s40, s40, 3
    s_add_u32 s40, s40, s30            ; u
    s_mov_b32 s46, 1024
    s_cmp_lt_u32 s2, 116
    s_cbranch_scc1 {L_wo}
    s_sub_u32 s40, s40, 160
    s_mul_i32 s41, s40, 1366
    s_lshr_b32 s41, s41, 16            ; ct
    s_mul_i32 s42, s41, 48
    s_sub_u32 s42, s40, s42            ; ks
    s_mov_b32 s{SRC}, s22
    s_mov_b32 s{SRC+1}, s23
    s_mov_b32 s{SRC+2}, {SIZE['w2']}
    s_mul_i32 s45, s40, 5120
    s_add_u32 s45, s45, {W2F_OFF}
    s_lshl_b32 s42, s42, 5
    s_mov_b32 s43, 16
    s_mov_b32 s44, 4
    s_mov_b32 s47, 8
    s_branch {L_go}
    {L_wo}:
    s_mul_i32 s41, s40, 3277
    s_lshr_b32 s41, s41, 16            ; ct
    s_mul_i32 s42, s41, 20
    s_sub_u32 s42, s40, s42            ; ks
    s_mov_b32 s{SRC}, s20
    s_mov_b32 s{SRC+1}, s21
    s_mov_b32 s{SRC+2}, {SIZE['wo']}
    s_mul_i32 s45, s40, 5120
    s_add_u32 s45, s45, {WOF_OFF}
    s_mul_i32 s48, s42, 40
    s_mul_i32 s49, s42, 160
    s_sub_u32 s49, s49, {16*160-16}
    s_cmp_ge_u32 s42, 16
    s_cselect_b32 s42, s49, s48
    s_cselect_b32 s43, 80, 20
    s_cselect_b32 s44, 40, 4
    s_cselect_b32 s47, 20, 8
    {L_go}:
    s_mul_i32 s42, s42, 1280
    s_mul_i32 s41, s41, 160
    s_add_u32 s42, s42, s41
    s_mul_i32 s41, s43, 1280
    s_add_u32 s41, s41, s42
    v_mul_u32_u24 v1, s44, v4          ; B * bit5
    v_bfe_u32 v7, v2, 4, 1
    v_mad_u32_u24 v1, s47, v7, v1      ; + C * bit4
    v_mul_u32_u24 v7, s44, v7          ; B * bit4
    v_mad_u32_u24 v7, s43, v4, v7      ; + A * bit5
    v_bfe_u32 v{RA}, v2, 2, 2
    v_add_u32 v1, v1, v{RA}
    v_mul_u32_u24 v1, 1280, v1
    v_lshl_add_u32 v1, v6, 4, v1
    v_bfe_u32 v{RA}, v2, 3, 1
    v_mad_u32_u24 v7, s47, v{RA}, v7
    v_bfe_u32 v{RA}, v2, 1, 2
    v_add_u32 v7, v7, v{RA}
    v_mul_u32_u24 v7, 1280, v7
    v_and_b32 v6, 1, v2
    v_lshl_add_u32 v7, v6, 4, v7
    """)
    for f in range(5):
        k(f"s_add_u32 m0, s34, {slot(f) - 64*(f//2)}")
        k(f"buffer_load_dwordx4 v{7 if f == 4 else 1}, s[{SRC}:{SRC+3}], s{41 if f & 1 else 42} offen offset:{64*(f//2)} lds")
    k(f"s_branch {L_hkr} ; @seq=T")
    k(f"""
    {L_r1}:
    """)
    k.stamp(3)
    k(f"""
    s_cmp_ge_u32 s2, 164
    s_cbranch_scc1 {L_hkr} ; @both
    s_add_u32 s40, s34, {slot(0)}
    v_bfe_u32 v1, v2, 2, 2             ; r
    v_and_b32 v6, 3, v2                ; c
    s_cmp_ge_u32 s2, 96
    s_cbranch_scc1 {L_t2}
    v_lshl_add_u32 v1, v4, 3, v1
    v_lshl_add_u32 v1, v1, 6, s40
    v_bfe_u32 v7, v2, 4, 1
    v_lshl_add_u32 v1, v7, 5, v1
    v_lshl_add_u32 v1, v6, 3, v1
    """)
    for f in range(5):
        for h in range(2): k(f"ds_read_b64_tr_b16 {vr(RP+4*f+2*h,2)}, v1 offset:{slot(f) - slot(0) + 256*h}")
    k(f"""
    v_lshrrev_b32 v1, 2, v2
    v_xor_b32 v1, v1, v7
    v_and_b32 v1, 1, v1
    v_add_u32 v1, -1, v1
    v_and_b32 v{SEL}, 0x3f803f80, v1
    v_mov_b32 v{SEL+1}, v{SEL}
    v_mov_b32 v{SEL+2}, v{SEL}
    v_mov_b32 v{SEL+3}, v{SEL}
    s_lshr_b32 s40, s30, 2
    s_lshl_b32 s40, s40, 9
    s_and_b32 s41, s30, 3
    s_lshl_b32 s41, s41, 2
    s_add_u32 s40, s40, s41
    s_add_u32 s44, s44, s40
    v_lshlrev_b32 v1, 4, v3
    s_waitcnt lgkmcnt(0)
    """)
    for f in range(5):
        k(f"v_mfma_f32_16x16x32_bf16 {vr(CS,4)}, {vr(SEL,4)}, {vr(RP+4*f,4)}, {vr(CS,4) if f else 0}")
    k(f"""
    v_cvt_pk_bf16_f32 v{CS+1}, v{CS}, v{CS}
    v_and_b32 v{CS+2}, 0xffff0000, v{CS+1}
    v_sub_f32 v{CS+2}, v{CS}, v{CS+2}
    v_cvt_pk_bf16_f32 v{CS+1}, v{CS}, v{CS+2}
    buffer_store_dword v{CS+1}, v1, s[{SWS}:{SWS+3}], s44 offen{CSC}
    s_branch {L_st}
    {L_t2}:
    v_lshrrev_b32 v7, 4, v2            ; g
    v_lshl_add_u32 v1, v7, 3, v1
    v_lshlrev_b32 v1, 5, v1
    v_lshl_add_u32 v7, v6, 3, v1
    v_lshl_add_u32 v1, v7, 1, s40
    v_add_u32 v7, s40, v7
    """)
    for f in range(4):
        for h in range(2): k(f"ds_read_b64_tr_b16 {vr(RP+4*f+2*h,2)}, v1 offset:{(f//2)*2048 + 8*(f&1) + 256*h}")
    for h in range(2): k(f"ds_read_b64_tr_b16 {vr(RP+16+2*h,2)}, v7 offset:{4096 + 128*h}")
    k("s_waitcnt lgkmcnt(0)")
    k(f"{L_st}:")
    for f in range(5):
        k(f"buffer_store_dwordx4 {vr(RP+4*f,4)}, v{GL}, s[{SWS}:{SWS+3}], s45 offen{RSC}")
        k(f"s_add_u32 s45, s45, s46")
    k.stamp(4)
    k(f"s_branch {L_hkr} ; @seq=T")
    L1 = k.lab("s1"); L2 = k.lab("s2")
    def qk1(c):
        k(f"v_mfma_f32_32x32x16_bf16 {vr(S[0],16)}, {vr(KL[0],4)}, {vr(QL[0],4)}, {c}")
        k(f"v_mfma_f32_32x32x8_bf16 {vr(S[0],16)}, {vr(KH[0],2)}, {vr(QH,2)}, {vr(S[0],16)}")
    k(f"""
    {L_slow}:
    s_mov_b32 s38, -1
    v_add_u32 v6, -1, v4
    v_and_b32 v{QH}, v{QH}, v6
    v_and_b32 v{QH+1}, v{QH+1}, v6
    v_mul_u32_u24 v{AV}, 320, v4
    v_lshl_add_u32 v{AV}, v3, 4, v{AV}
    v_mov_b32 v6, 0xff800000
    s_mov_b32 s37, s31
    s_mov_b32 s36, 0
    {L1}:
    buffer_load_dwordx2 {vr(KL[0],2)}, v{L8}, s[{SWS}:{SWS+3}], s37 offen
    buffer_load_dwordx2 {vr(KL[0]+2,2)}, v{L8}, s[{SWS}:{SWS+3}], s37 offen offset:512
    buffer_load_dwordx2 {vr(KH[0],2)}, v5, s[{SWS}:{SWS+3}], s37 offen
    s_waitcnt vmcnt(0)
    """)
    qk1(0)
    maxred(S[0], 6, False)
    k(f"""
    s_add_u32 s37, s37, {TS}
    s_add_u32 s36, s36, 1
    s_cmp_lt_u32 s36, 64
    s_cbranch_scc1 {L1}
    v_mov_b32 v7, v6
    v_permlane32_swap_b32 v6, v7
    v_max_f32 v6, v6, v7
    """)
    for i in range(16): k(f"v_sub_f32 v{NM+i}, 0, v6")
    for i in range(16): k(f"v_mov_b32 v{O+i}, 0")
    k(f"""
    s_mov_b32 s37, s31
    s_mov_b32 s36, 0
    {L2}:
    buffer_load_dwordx2 {vr(KL[0],2)}, v{L8}, s[{SWS}:{SWS+3}], s37 offen
    buffer_load_dwordx2 {vr(KL[0]+2,2)}, v{L8}, s[{SWS}:{SWS+3}], s37 offen offset:512
    buffer_load_dwordx2 {vr(KH[0],2)}, v5, s[{SWS}:{SWS+3}], s37 offen
    s_mov_b64 exec, s[50:51]
    buffer_load_dwordx4 {vr(V[0],4)}, v{AV}, s[{SWS}:{SWS+3}], s37 offen offset:1280
    buffer_load_dwordx4 {vr(V[0]+4,4)}, v{AV}, s[{SWS}:{SWS+3}], s37 offen offset:1920
    s_mov_b64 exec, -1
    s_waitcnt vmcnt(0)
    """)
    qk1(vr(NM, 16))
    exps(0, 0, 16); cvts(0, 0, 8); pv(0, 0, 0); pv(0, 0, 1)
    k(f"""
    s_add_u32 s37, s37, {TS}
    s_add_u32 s36, s36, 1
    s_cmp_lt_u32 s36, 64
    s_cbranch_scc1 {L2}
    s_branch {L_epi}
    """)
    return k
```

```python
from common import *

import os
AHEAD = int(os.environ.get("AHEAD", "4"))
ROT = int(os.environ.get("ROT", "0"))
SC = os.environ.get("SC", " sc1")
WPF = {2: os.environ.get("PF3", ""), 3: os.environ.get("PF4", "")}
RD2 = int(os.environ.get("RD2", "0"))

def loader(k, SWS, GL, nch, wbytes, idx):
    wq = wbytes // 4; slot = wbytes + 8192
    Lp = k.lab("pre"); Ll = k.lab("ll")
    k(f"""
    s_mul_i32 s26, s23, {wq}
    s_add_u32 s24, s24, s26
    s_lshl_b32 s27, s23, 11
    s_add_u32 s27, s27, {wbytes}
    s_mul_i32 s31, s30, {wbytes}
    s_add_u32 s24, s24, s31
    s_lshl_b32 s31, s30, 11
    s_add_u32 s25, s25, s31
    s_mov_b32 s28, 0
    s_mov_b32 s29, 0
    {"s_memrealtime s[88:89]" if PROF else ""}
    s_waitcnt lgkmcnt(0)
    {"s_memrealtime s[90:91]" if PROF else ""}
    s_branch {Lp}
    {Ll}:
    {f"s_cmp_lg_u32 s29, {AHEAD}" if PROF else ""}
    {f"s_cbranch_scc1 {Ll}x" if PROF else ""}
    {"s_memrealtime s[92:93]" if PROF else ""}
    s_waitcnt vmcnt({5*(AHEAD-1)})
    {"s_memrealtime s[94:95]" if PROF else ""}
    {Ll}x:
    s_waitcnt vmcnt({5*(AHEAD-1)})
    s_barrier
    {Lp}:
    s_add_u32 m0, s28, s27
    s_add_u32 s29, s29, 1
    buffer_load_dwordx4 v{GL}, s[{SWS}:{SWS+3}], s25 offen lds
    buffer_load_dwordx4 v{GL}, s[{SWS}:{SWS+3}], s25 offen offset:1024 lds
    s_add_u32 m0, s28, s26
    s_add_u32 s30, s30, 1
    buffer_load_dwordx4 v{GL}, s[{SWS}:{SWS+3}], s24 offen lds
    buffer_load_dwordx4 v{GL}, s[{SWS}:{SWS+3}], s24 offen offset:1024 lds
    """)
    if wq < 3072: k("s_mov_b32 exec_hi, 0")
    k(f"buffer_load_dwordx4 v{GL}, s[{SWS}:{SWS+3}], s24 offen offset:2048 lds")
    if wq < 3072: k("s_mov_b32 exec_hi, -1")
    k(f"""
    s_cmp_eq_u32 s30, {nch}
    s_cselect_b32 s31, {-(nch-1)}, 1
    s_cmov_b32 s30, 0
    s_mul_i32 s32, s31, {wbytes}
    s_lshl_b32 s31, s31, 11
    s_add_u32 s24, s24, s32
    s_add_u32 s25, s25, s31
    s_add_u32 s28, s28, {slot}
    s_cmp_eq_u32 s28, {8*slot}
    s_cmov_b32 s28, 0
    s_cmp_lt_u32 s29, {AHEAD}
    s_cbranch_scc1 {Lp} ; @seq={"T"*(AHEAD-1)}N
    s_cmp_lt_u32 s29, {nch}
    s_cbranch_scc1 {Ll} ; @seq=TTN
    """)
    npf = 0
    for which in WPF.get(idx, ""):
        size = {"4": 4*41*6144, "5": 4*48*5120}[which]; per = size // 128
        k(f"""
        {"s_bfe_u32 s34, s2, 0x20001" if which == "4" else "s_and_b32 s34, s2, 1"}
        s_mul_i32 s34, s34, {size}
        s_lshr_b32 s35, s2, 3
        s_lshl_b32 s35, s35, 2
        s_add_u32 s35, s35, s23
        s_mul_i32 s35, s35, {per}
        s_add_u32 s34, s34, s35
        s_add_u32 s34, s34, {W13F_OFF if which == "4" else W2F_OFF}
        v_lshlrev_b32 v1, 3, v{GL}
        buffer_load_dword v{3+npf}, v1, s[{SWS}:{SWS+3}], s34 offen
        """)
        npf += 1
    for i in range(AHEAD):
        k(f"s_waitcnt vmcnt({5*(AHEAD-1-i)+npf})")
        k("s_barrier")
    k("s_barrier")
    k.end(SWS, idx)

def ringloop(k, nch, nt, wbytes, LA, LB, A, B, mfma, b2=False):
    slot = wbytes + 8192
    L = k.lab("loop")
    k("s_mov_b32 s27, 0")
    k.stamp(1)
    k("s_barrier")
    k.stamp(2)
    def rdb(r, off):
        if b2: k(f"ds_read2_b64 {vr(r,4)}, v{LB} offset0:{off//8} offset1:{off//8+16}")
        else: k(f"ds_read_b128 {vr(r,4)}, v{LB} offset:{off}")
    rdb(B[0], 0)
    for j in range(nt): k(f"ds_read_b128 {vr(A+4*j,4)}, v{LA} offset:{j*1024}")
    k(f"{L}:")
    for s in range(2):
        if s == 1:
            k(f"""
            s_add_u32 s27, s27, 1
            s_and_b32 s25, s27, 7
            s_mov_b32 s25, {-7*slot}
            s_cmov_b32 s25, {slot}
            v_add_u32 v{LA}, s25, v{LA}
            v_add_u32 v{LB}, s25, v{LB}
            s_cmp_lt_u32 s27, {nch}
            s_barrier
            """)
        rdb(B[1-s], (1-s)*1024)
        for j in range(nt):
            k(f"s_waitcnt lgkmcnt({[nt, 2, 0][RD2]})")
            mfma(j, A + 4 * j, B[s])
            if RD2 == 0 or (RD2 == 1 and j < 2): k(f"ds_read_b128 {vr(A+4*j,4)}, v{LA} offset:{(1-s)*nt*1024 + j*1024}")
    k(f"s_cbranch_scc1 {L}")
    k.stamp(6)
    k("s_waitcnt lgkmcnt(0)")

def gemm16(name, nks, woff, aoff, first):
    nch = nks // 2
    k = Kern(name, 256, 512, 8 * 18432)
    SWS, SRM = 12, 16
    idx = 2 if first else 4
    L_end = k.lab("end"); L_ld = k.lab("ld")
    a = Alloc(8)
    GL = a(); LA = a(); LB = a(); RM = a(); RM2 = a(); FM = a(); FM2 = a()
    RES = a(10, 2); ACC = a(20, 4); A = a(20, 4); B = [a(4, 4), a(4, 4)]
    k(f"""
    s_cmp_ge_u32 s2, 256
    s_cbranch_scc1 {L_end}
    """)
    k.stamp(0)
    load_srds(k, [("ws", SWS), ("x" if first else "out", SRM)])
    k(f"""
    v_lshrrev_b32 v1, 6, v0
    v_and_b32 v2, 63, v0
    v_readfirstlane_b32 s22, v1        ; wave
    s_bfe_u32 s20, s2, 0x20001         ; x>>1
    s_lshl_b32 s20, s20, 3
    s_bfe_u32 s30, s2, 0x30003
    s_add_u32 s20, s20, s30            ; rt
    s_and_b32 s21, s2, 1
    s_lshl_b32 s21, s21, 2
    s_lshr_b32 s31, s2, 6
    s_add_u32 s21, s21, s31            ; ct
    v_lshlrev_b32 v{GL}, 4, v2
    s_and_b32 s23, s22, 3
    s_lshl_b32 s20, s20, 2
    s_add_u32 s20, s20, s23            ; tile16
    s_cmp_ge_u32 s22, 4
    s_cbranch_scc1 {L_ld}
    v_and_b32 v3, 15, v2               ; n
    v_lshrrev_b32 v4, 4, v2            ; g
    v_mul_u32_u24 v{RM2}, 1280, v3
    v_lshl_add_u32 v{RM}, v4, 4, v{RM2}
    v_lshl_add_u32 v{RM2}, v4, 3, v{RM2}
    v_lshlrev_b32 v{FM2}, 4, v3
    v_lshl_add_u32 v{FM}, v4, 9, v{FM2}
    v_lshrrev_b32 v1, 1, v4
    v_lshl_add_u32 v{FM2}, v1, 9, v{FM2}
    v_and_b32 v1, 1, v4
    v_lshl_add_u32 v{FM2}, v1, 3, v{FM2}
    v_add_u32 v{FM2}, 4096, v{FM2}
    s_mul_i32 s26, s20, {16*1280}
    s_mul_i32 s28, s21, 160
    s_add_u32 s26, s26, s28
    s_lshr_b32 s28, s20, 1
    s_mul_i32 s28, s28, 40960
    s_and_b32 s29, s20, 1
    s_lshl_b32 s29, s29, 8
    s_add_u32 s28, s28, s29
    s_mul_i32 s29, s21, 5120
    s_add_u32 s28, s28, s29
    s_add_u32 s28, s28, {HF_OFF}
    s_waitcnt lgkmcnt(0)
    """)
    def rw(op, rm):
        sc = (SC if first else os.environ.get("OUTSC", "")) if op == "store" else ""
        if rm:
            k(f"buffer_{op}_dwordx4 v[{RES}:{RES+3}], v{RM}, s[{SRM}:{SRM+3}], s26 offen{sc}")
            k(f"buffer_{op}_dwordx4 v[{RES+4}:{RES+7}], v{RM}, s[{SRM}:{SRM+3}], s26 offen offset:64{sc}")
            k(f"buffer_{op}_dwordx2 v[{RES+8}:{RES+9}], v{RM2}, s[{SRM}:{SRM+3}], s26 offen offset:128{sc}")
        else:
            k(f"buffer_{op}_dwordx4 v[{RES}:{RES+3}], v{FM}, s[{SWS}:{SWS+3}], s28 offen{sc}")
            k(f"buffer_{op}_dwordx4 v[{RES+4}:{RES+7}], v{FM}, s[{SWS}:{SWS+3}], s28 offen offset:2048{sc}")
            k(f"buffer_{op}_dwordx2 v[{RES+8}:{RES+9}], v{FM2}, s[{SWS}:{SWS+3}], s28 offen{sc}")
    rw("load", first)
    k(f"""
    v_mov_b32 v{LA}, v{GL}
    s_lshl_b32 s25, s23, 11
    s_add_u32 s25, s25, 10240
    v_add_u32 v{LB}, s25, v{GL}
    {f"v_lshlrev_b32 v1, 3, v3" if first else ""}
    {f"v_sub_u32 v{LB}, v{LB}, v1" if first else ""}
    s_waitcnt vmcnt(0)
    """)
    for i in range(10):
        k(f"v_lshlrev_b32 v{ACC+2*i}, 16, v{RES+i}")
        k(f"v_and_b32 v{ACC+2*i+1}, 0xffff0000, v{RES+i}")
    ringloop(k, nch, 5, 10240, LA, LB, A, B,
             lambda j, ra, rb: k(f"v_mfma_f32_16x16x32_bf16 {vr(ACC+4*j,4)}, {vr(ra,4)}, {vr(rb,4)}, {vr(ACC+4*j,4)}"), b2=first)
    for i in range(10):
        k(f"v_cvt_pk_bf16_f32 v{RES+i}, v{ACC+2*i}, v{ACC+2*i+1}")
    rw("store", not first)
    if first:
        k(f"""
        v_mov_b32 v5, 0x3f803f80
        v_mov_b32 v6, 0
        v_mov_b32 v7, 0
        """)
        for i in range(10):
            k(f"v_dot2_f32_bf16 v6, v{RES+i}, v5, v6")
            k(f"v_dot2_f32_bf16 v7, v{RES+i}, v{RES+i}, v7")
        k(f"""
        s_lshl_b32 s29, s21, 14
        s_lshl_b32 s20, s20, 7
        s_add_u32 s29, s29, s20
        s_add_u32 s29, s29, {ST_OFF}
        v_lshrrev_b32 v1, 5, v2
        v_lshlrev_b32 v1, 2, v1
        v_lshl_add_u32 v1, v3, 3, v1
        v_permlane32_swap_b32 v6, v7
        v_add_f32 v6, v6, v7
        v_mov_b32 v7, v6
        v_permlane16_swap_b32 v6, v7
        v_add_f32 v6, v6, v7
        buffer_store_dword v6, v1, s[{SWS}:{SWS+3}], s29 offen{os.environ.get('STSC','')}
        """)
    k.end(SWS, idx)
    k(f"""
    {L_ld}:
    s_mul_i32 s24, s21, {nks*5120}
    s_add_u32 s24, s24, {woff}
    s_mul_i32 s25, s20, {nks*1024}
    s_add_u32 s25, s25, {aoff}
    """)
    rot(k, nch)
    loader(k, SWS, GL, nch, 10240, idx)
    k(f"{L_end}:")
    k("s_endpgm")
    return k

def rot(k, nch):
    if ROT: k(f"s_lshl_b32 s31, s31, 1\ns_add_u32 s30, s30, s31\ns_and_b32 s30, s30, 7\ns_mul_i32 s30, s30, {nch}\ns_lshr_b32 s30, s30, 3")
    else: k("s_mov_b32 s30, 0")

def build_k4():
    k = Kern("ffn1_kernel", 256, 512, 163840)
    SWS = 12
    L_end = k.lab("end"); L_ld = k.lab("ld")
    a = Alloc(8)
    GL = a(); LA = a(); LB = a()
    ST = a(8, 4); MN = a(8, 4); A = a(24, 4); CSF = A; B = [a(4, 4), a(4, 4)]; ACC = a(96, 4)
    k(f"""
    s_cmp_ge_u32 s2, 256
    s_cbranch_scc1 {L_end}
    """)
    k.stamp(0)
    load_srds(k, [("ws", SWS)])
    k(f"""
    v_lshrrev_b32 v1, 6, v0
    v_and_b32 v2, 63, v0
    v_readfirstlane_b32 s22, v1        ; wave
    s_and_b32 s20, s2, 1
    s_lshl_b32 s20, s20, 3
    s_bfe_u32 s30, s2, 0x30003
    s_add_u32 s20, s20, s30
    s_bfe_u32 s21, s2, 0x20001
    s_lshl_b32 s21, s21, 2
    s_lshr_b32 s31, s2, 6
    s_add_u32 s21, s21, s31            ; ct
    v_lshlrev_b32 v{GL}, 4, v2
    s_and_b32 s23, s22, 3
    s_lshl_b32 s20, s20, 2
    s_add_u32 s20, s20, s23            ; tile32
    s_mul_i32 s24, s21, {41*6144}
    s_add_u32 s24, s24, {W13F_OFF}
    s_cmp_ge_u32 s22, 4
    s_cbranch_scc1 {L_ld}
    v_and_b32 v3, 31, v2               ; m
    v_lshrrev_b32 v4, 5, v2            ; hf
    v_lshlrev_b32 v1, 16, v4
    v_lshl_add_u32 v1, v3, 3, v1
    s_lshl_b32 s25, s20, 8
    s_add_u32 s25, s25, {ST_OFF}
    s_add_u32 s26, s25, 16384
    s_add_u32 s27, s25, 32768
    s_add_u32 s28, s25, 49152
    s_add_u32 s29, s24, 3072
    s_waitcnt lgkmcnt(0)
    """)
    for i in range(4): k(f"buffer_load_dwordx2 v[{ST+2*i}:{ST+2*i+1}], v1, s[{SWS}:{SWS+3}], s{25+i} offen")
    for j in range(6): k(f"buffer_load_dwordx4 v[{CSF+4*j}:{CSF+4*j+3}], v{GL}, s[{SWS}:{SWS+3}], s{24 if j < 3 else 29} offen offset:{(j%3)*1024}")
    k(f"""
    v_mov_b32 v{LA}, v{GL}
    s_lshl_b32 s25, s23, 11
    s_add_u32 s25, s25, 12288
    v_add_u32 v{LB}, s25, v{GL}
    v_lshrrev_b32 v1, 4, v3
    v_mul_u32_u24 v1, {192*256}, v1
    v_and_b32 v5, 15, v3
    v_lshl_add_u32 v1, v5, 4, v1
    v_lshl_add_u32 v3, v4, 8, v1
    s_mul_i32 s26, s20, {2*192*256}
    s_mul_i32 s27, s21, {12*256}
    s_add_u32 s26, s26, s27
    s_add_u32 s26, s26, {HH_OFF}
    s_waitcnt vmcnt(6)
    v_pk_add_f32 v[{ST}:{ST+1}], v[{ST}:{ST+1}], v[{ST+2}:{ST+3}]
    v_pk_add_f32 v[{ST+4}:{ST+5}], v[{ST+4}:{ST+5}], v[{ST+6}:{ST+7}]
    v_pk_add_f32 v[{ST}:{ST+1}], v[{ST}:{ST+1}], v[{ST+4}:{ST+5}]
    v_mov_b32 v{ST+2}, v{ST}
    v_mov_b32 v{ST+3}, v{ST+1}
    v_permlane32_swap_b32 v{ST}, v{ST+2}
    v_permlane32_swap_b32 v{ST+1}, v{ST+3}
    v_pk_add_f32 v[{ST}:{ST+1}], v[{ST}:{ST+1}], v[{ST+2}:{ST+3}]
    v_mul_f32 v{ST}, {f32(-1.0/640)}, v{ST}          ; -mean
    v_mul_f32 v{ST+1}, {f32(1.0/640)}, v{ST+1}
    v_fma_f32 v{ST+1}, -v{ST}, v{ST}, v{ST+1}
    v_max_f32 v{ST+1}, 0, v{ST+1}
    v_add_f32 v{ST+1}, {f32(1e-5)}, v{ST+1}
    v_rsq_f32 v{ST+4}, v{ST+1}
    v_cvt_pk_bf16_f32 v{MN}, v{ST}, v{ST}
    v_and_b32 v{ST+3}, 0xffff0000, v{MN}
    v_sub_f32 v{ST+3}, v{ST}, v{ST+3}
    v_cvt_pk_bf16_f32 v{MN+4}, v{ST+3}, v{ST+3}
    v_mov_b32 v{MN+1}, v{MN}
    v_mov_b32 v{MN+2}, v{MN}
    v_mov_b32 v{MN+3}, v{MN}
    v_mov_b32 v{MN+5}, v{MN+4}
    v_mov_b32 v{MN+6}, v{MN+4}
    v_mov_b32 v{MN+7}, v{MN+4}
    v_mul_f32 v{ST+6}, v{ST+4}, v{ST+4}              ; rstd^2
    v_mul_f32 v{ST+4}, {f32(-LOG2E)}, v{ST+4}        ; -log2e*rstd
    s_waitcnt vmcnt(0)
    """)
    for j in range(6): k(f"v_mfma_f32_32x32x16_bf16 {vr(ACC+16*j,16)}, {vr(CSF+4*j,4)}, {vr(MN,4)}, 0")
    for j in range(6): k(f"v_mfma_f32_32x32x16_bf16 {vr(ACC+16*j,16)}, {vr(CSF+4*j,4)}, {vr(MN+4,4)}, {vr(ACC+16*j,16)}")
    def mf4(j, ra, rb):
        if os.environ.get("FAKE16"):
            o = ACC + 16*j + (8 if rb == B[1] else 0)
            k(f"v_mfma_f32_16x16x32_bf16 {vr(o,4)}, {vr(ra,4)}, {vr(rb,4)}, {vr(o,4)}")
            k(f"v_mfma_f32_16x16x32_bf16 {vr(o+4,4)}, {vr(rb,4)}, {vr(ra,4)}, {vr(o+4,4)}")
        else: k(f"v_mfma_f32_32x32x16_bf16 {vr(ACC+16*j,16)}, {vr(ra,4)}, {vr(rb,4)}, {vr(ACC+16*j,16)}")
    ringloop(k, 20, 6, 12288, LA, LB, A, B, mf4)
    T = A
    for p in range(3):
        G = ACC + 32 * p; U = G + 16
        for h in range(2):
            t = T + 8 * h; g = G + 8 * h; u = U + 8 * h
            for i in range(0, 8, 2): k(f"v_pk_mul_f32 v[{t+i}:{t+i+1}], v[{g+i}:{g+i+1}], v[{ST+4}:{ST+5}] op_sel_hi:[1,0]")
            for i in range(8): k(f"v_exp_f32 v{t+i}, v{t+i}")
            for i in range(0, 8, 2): k(f"v_pk_mul_f32 v[{g+i}:{g+i+1}], v[{g+i}:{g+i+1}], v[{u+i}:{u+i+1}]")
            for i in range(0, 8, 2): k(f"v_pk_add_f32 v[{t+i}:{t+i+1}], v[{t+i}:{t+i+1}], 1.0 op_sel_hi:[1,0]")
            for i in range(8): k(f"v_rcp_f32 v{t+i}, v{t+i}")
            for i in range(0, 8, 2): k(f"v_pk_mul_f32 v[{g+i}:{g+i+1}], v[{g+i}:{g+i+1}], v[{ST+6}:{ST+7}] op_sel_hi:[1,0]")
            for i in range(0, 8, 2): k(f"v_pk_mul_f32 v[{g+i}:{g+i+1}], v[{g+i}:{g+i+1}], v[{t+i}:{t+i+1}]")
            for i in range(4): k(f"v_cvt_pk_bf16_f32 v{u+i}, v{g+2*i}, v{g+2*i+1}")
            k(f"buffer_store_dwordx4 {vr(u,4)}, v3, s[{SWS}:{SWS+3}], s26 offen offset:{(4*p+2*h)*256}{SC}")
    k.end(SWS, 3)
    k(f"""
    {L_ld}:
    s_add_u32 s24, s24, 6144
    s_mul_i32 s25, s20, 40960
    s_add_u32 s25, s25, {HF_OFF}
    """)
    rot(k, 20)
    loader(k, SWS, GL, 20, 12288, 3)
    k(f"{L_end}:")
    k("s_endpgm")
    return k

def build_k345():
    return [gemm16("oproj_kernel", 20, WOF_OFF, OF_OFF, True), build_k4(), gemm16("ffn2_kernel", 48, W2F_OFF, HH_OFF, False)]
```

```python
from asmlib import *
T, D, H, F = 2048, 640, 32, 1536
TS = 2560
HS = 64 * TS
KV_OFF = 0
Q_OFF = 0x600000
OF_OFF = 0xC00000
HF_OFF = int(os.environ.get('HFO', '0x1000000'), 0)
ST_OFF = 0x1300000
HH_OFF = int(os.environ.get('HHO', '0x1400000'), 0)
WOF_OFF = 0x1C00000
W2F_OFF = 0x1D00000
W13F_OFF = 0x2000000
W13S = 6144 + 20 * 12288 + int(os.environ.get('W13P', '0'))
HFS = 20480 + int(os.environ.get('HFP', '0'))
WS_SIZE = 0x2800000
BASE = int(os.environ.get('BASE', '0'), 0)
KV_OFF += BASE; Q_OFF += BASE; OF_OFF += BASE; HF_OFF += BASE; ST_OFF += BASE; HH_OFF += BASE; WOF_OFF += BASE; W2F_OFF += BASE; W13F_OFF += BASE; WS_SIZE += BASE
ARG = dict(x=0, wqkv=8, wo=16, w1=32, w3=40, w2=48, out=56, dbg=64, ws=72)
SIZE = dict(x=T*D*2, wqkv=D*3*D*2, wo=D*D*2, w1=D*F*2, w3=D*F*2, w2=F*D*2, out=T*D*2, dbg=256, ws=WS_SIZE)
LOG2E = 1.4426950408889634
import struct
def f32(x): return "0x%08x" % struct.unpack("<I", struct.pack("<f", x))[0]

def load_srds(k, spec):
    for name, s in spec:
        k(f"s_load_dwordx2 s[{s}:{s+1}], s[0:1], {ARG[name]}")
    for name, s in spec:
        k(f"s_mov_b32 s{s+2}, {SIZE[name]}")
        k(f"s_mov_b32 s{s+3}, 0x00020000")

def code_prefetch(k, swave, dst):
    if os.environ.get("NOCP"): return
    L = k.lab("pc")
    k(f"""
    s_getpc_b64 s[40:41]
    {L}:
    s_lshl_b32 s42, s{swave}, 13
    v_lshl_add_u32 v6, v2, 7, s42
    v_min_u32 v6, code_end - {L} - 4, v6
    global_load_dword v{dst}, v6, s[40:41]
    """)
```

```python
from common import *

import os
AHEAD = int(os.environ.get("AHEAD", "4"))
ROT = int(os.environ.get("ROT", "0"))
SC = os.environ.get("SC", " sc1")
WPF = {2: os.environ.get("PF3", ""), 3: os.environ.get("PF4", "5")}
RD2 = int(os.environ.get("RD2", "0"))

def loader(k, SWS, GL, nch, wbytes, idx):
    wq = wbytes // 4; slot = wbytes + 8192
    Lp = k.lab("pre"); Ll = k.lab("ll")
    k(f"""
    s_mul_i32 s26, s23, {wq}
    s_add_u32 s24, s24, s26
    s_lshl_b32 s27, s23, 11
    s_add_u32 s27, s27, {wbytes}
    s_mul_i32 s31, s30, {wbytes}
    s_add_u32 s24, s24, s31
    s_lshl_b32 s31, s30, 11
    s_add_u32 s25, s25, s31
    s_mov_b32 s28, 0
    s_mov_b32 s29, 0
    {"s_memrealtime s[88:89]" if PROF else ""}
    s_waitcnt lgkmcnt(0)
    {"s_memrealtime s[90:91]" if PROF else ""}
    s_branch {Lp}
    {Ll}:
    {f"s_cmp_lg_u32 s29, {AHEAD}" if PROF else ""}
    {f"s_cbranch_scc1 {Ll}x" if PROF else ""}
    {"s_memrealtime s[92:93]" if PROF else ""}
    s_waitcnt vmcnt({5*(AHEAD-1)})
    {"s_memrealtime s[94:95]" if PROF else ""}
    {Ll}x:
    s_waitcnt vmcnt({5*(AHEAD-1)})
    s_barrier
    {Lp}:
    s_add_u32 m0, s28, s27
    s_add_u32 s29, s29, 1
    buffer_load_dwordx4 v{GL}, s[{SWS}:{SWS+3}], s25 offen lds
    buffer_load_dwordx4 v{GL}, s[{SWS}:{SWS+3}], s25 offen offset:1024 lds
    s_add_u32 m0, s28, s26
    s_add_u32 s30, s30, 1
    buffer_load_dwordx4 v{GL}, s[{SWS}:{SWS+3}], s24 offen lds
    buffer_load_dwordx4 v{GL}, s[{SWS}:{SWS+3}], s24 offen offset:1024 lds
    """)
    if wq < 3072: k("s_mov_b32 exec_hi, 0")
    k(f"buffer_load_dwordx4 v{GL}, s[{SWS}:{SWS+3}], s24 offen offset:2048 lds")
    if wq < 3072: k("s_mov_b32 exec_hi, -1")
    k(f"""
    s_cmp_eq_u32 s30, {nch}
    s_cselect_b32 s31, {-(nch-1)}, 1
    s_cmov_b32 s30, 0
    s_mul_i32 s32, s31, {wbytes}
    s_lshl_b32 s31, s31, 11
    s_add_u32 s24, s24, s32
    s_add_u32 s25, s25, s31
    s_add_u32 s28, s28, {slot}
    s_cmp_eq_u32 s28, {8*slot}
    s_cmov_b32 s28, 0
    s_cmp_lt_u32 s29, {AHEAD}
    s_cbranch_scc1 {Lp} ; @seq={"T"*(AHEAD-1)}N
    s_cmp_lt_u32 s29, {nch}
    s_cbranch_scc1 {Ll} ; @seq=TTN
    """)
    npf = 0
    for which in WPF.get(idx, ""):
        size = {"4": 4*41*6144, "5": 4*48*5120}[which]; per = size // 128
        k(f"""
        {"s_bfe_u32 s34, s2, 0x20001" if which == "4" else "s_and_b32 s34, s2, 1"}
        s_mul_i32 s34, s34, {size}
        s_lshr_b32 s35, s2, 3
        s_lshl_b32 s35, s35, 2
        s_add_u32 s35, s35, s23
        s_mul_i32 s35, s35, {per}
        s_add_u32 s34, s34, s35
        s_add_u32 s34, s34, {W13F_OFF if which == "4" else W2F_OFF}
        v_lshlrev_b32 v1, 3, v{GL}
        buffer_load_dword v{3+npf}, v1, s[{SWS}:{SWS+3}], s34 offen
        """)
        npf += 1
    for i in range(AHEAD):
        k(f"s_waitcnt vmcnt({5*(AHEAD-1-i)+npf})")
        k("s_barrier")
    k("s_barrier")
    k.end(SWS, idx)

def ringloop(k, nch, nt, wbytes, LA, LB, A, B, mfma, b2=False):
    slot = wbytes + 8192
    L = k.lab("loop")
    k("s_mov_b32 s27, 0")
    k.stamp(1)
    k("s_barrier")
    k.stamp(2)
    def rdb(r, off):
        if b2: k(f"ds_read2_b64 {vr(r,4)}, v{LB} offset0:{off//8} offset1:{off//8+16}")
        else: k(f"ds_read_b128 {vr(r,4)}, v{LB} offset:{off}")
    rdb(B[0], 0)
    for j in range(nt): k(f"ds_read_b128 {vr(A+4*j,4)}, v{LA} offset:{j*1024}")
    k(f"{L}:")
    for s in range(2):
        if s == 1:
            k(f"""
            s_add_u32 s27, s27, 1
            s_and_b32 s25, s27, 7
            s_mov_b32 s25, {-7*slot}
            s_cmov_b32 s25, {slot}
            v_add_u32 v{LA}, s25, v{LA}
            v_add_u32 v{LB}, s25, v{LB}
            s_cmp_lt_u32 s27, {nch}
            s_barrier
            """)
        rdb(B[1-s], (1-s)*1024)
        for j in range(nt):
            k(f"s_waitcnt lgkmcnt({[nt, 2, 0][RD2]})")
            mfma(j, A + 4 * j, B[s])
            if RD2 == 0 or (RD2 == 1 and j < 2): k(f"ds_read_b128 {vr(A+4*j,4)}, v{LA} offset:{(1-s)*nt*1024 + j*1024}")
    k(f"s_cbranch_scc1 {L}")
    k.stamp(6)
    k("s_waitcnt lgkmcnt(0)")

def gemm16(name, nks, woff, aoff, first):
    nch = nks // 2
    k = Kern(name, 256, 512, 8 * 18432)
    SWS, SRM = 12, 16
    idx = 2 if first else 4
    L_end = k.lab("end"); L_ld = k.lab("ld")
    a = Alloc(8)
    GL = a(); LA = a(); LB = a(); RM = a(); RM2 = a(); FM = a(); FM2 = a()
    RES = a(10, 2); ACC = a(20, 4); A = a(20, 4); B = [a(4, 4), a(4, 4)]
    k(f"""
    s_cmp_ge_u32 s2, 256
    s_cbranch_scc1 {L_end}
    """)
    k.stamp(0)
    load_srds(k, [("ws", SWS), ("x" if first else "out", SRM)])
    k(f"""
    v_lshrrev_b32 v1, 6, v0
    v_and_b32 v2, 63, v0
    v_readfirstlane_b32 s22, v1        ; wave
    s_bfe_u32 s20, s2, 0x20001         ; x>>1
    s_lshl_b32 s20, s20, 3
    s_bfe_u32 s30, s2, 0x30003
    s_add_u32 s20, s20, s30            ; rt
    s_and_b32 s21, s2, 1
    s_lshl_b32 s21, s21, 2
    s_lshr_b32 s31, s2, 6
    s_add_u32 s21, s21, s31            ; ct
    v_lshlrev_b32 v{GL}, 4, v2
    s_and_b32 s23, s22, 3
    s_lshl_b32 s20, s20, 2
    s_add_u32 s20, s20, s23            ; tile16
    s_cmp_ge_u32 s22, 4
    s_cbranch_scc1 {L_ld}
    v_and_b32 v3, 15, v2               ; n
    v_lshrrev_b32 v4, 4, v2            ; g
    v_mul_u32_u24 v{RM2}, 1280, v3
    v_lshl_add_u32 v{RM}, v4, 4, v{RM2}
    v_lshl_add_u32 v{RM2}, v4, 3, v{RM2}
    v_lshlrev_b32 v{FM2}, 4, v3
    v_lshl_add_u32 v{FM}, v4, 9, v{FM2}
    v_lshrrev_b32 v1, 1, v4
    v_lshl_add_u32 v{FM2}, v1, 9, v{FM2}
    v_and_b32 v1, 1, v4
    v_lshl_add_u32 v{FM2}, v1, 3, v{FM2}
    v_add_u32 v{FM2}, 4096, v{FM2}
    s_mul_i32 s26, s20, {16*1280}
    s_mul_i32 s28, s21, 160
    s_add_u32 s26, s26, s28
    s_lshr_b32 s28, s20, 1
    s_mul_i32 s28, s28, 40960
    s_and_b32 s29, s20, 1
    s_lshl_b32 s29, s29, 8
    s_add_u32 s28, s28, s29
    s_mul_i32 s29, s21, 5120
    s_add_u32 s28, s28, s29
    s_add_u32 s28, s28, {HF_OFF}
    s_waitcnt lgkmcnt(0)
    """)
    def rw(op, rm):
        sc = (SC if first else os.environ.get("OUTSC", " nt")) if op == "store" else ""
        if rm:
            k(f"buffer_{op}_dwordx4 v[{RES}:{RES+3}], v{RM}, s[{SRM}:{SRM+3}], s26 offen{sc}")
            k(f"buffer_{op}_dwordx4 v[{RES+4}:{RES+7}], v{RM}, s[{SRM}:{SRM+3}], s26 offen offset:64{sc}")
            k(f"buffer_{op}_dwordx2 v[{RES+8}:{RES+9}], v{RM2}, s[{SRM}:{SRM+3}], s26 offen offset:128{sc}")
        else:
            k(f"buffer_{op}_dwordx4 v[{RES}:{RES+3}], v{FM}, s[{SWS}:{SWS+3}], s28 offen{sc}")
            k(f"buffer_{op}_dwordx4 v[{RES+4}:{RES+7}], v{FM}, s[{SWS}:{SWS+3}], s28 offen offset:2048{sc}")
            k(f"buffer_{op}_dwordx2 v[{RES+8}:{RES+9}], v{FM2}, s[{SWS}:{SWS+3}], s28 offen{sc}")
    rw("load", first)
    k(f"""
    v_mov_b32 v{LA}, v{GL}
    s_lshl_b32 s25, s23, 11
    s_add_u32 s25, s25, 10240
    v_add_u32 v{LB}, s25, v{GL}
    {f"v_lshlrev_b32 v1, 3, v3" if first else ""}
    {f"v_sub_u32 v{LB}, v{LB}, v1" if first else ""}
    s_waitcnt vmcnt(0)
    """)
    for i in range(10):
        k(f"v_lshlrev_b32 v{ACC+2*i}, 16, v{RES+i}")
        k(f"v_and_b32 v{ACC+2*i+1}, 0xffff0000, v{RES+i}")
    ringloop(k, nch, 5, 10240, LA, LB, A, B,
             lambda j, ra, rb: k(f"v_mfma_f32_16x16x32_bf16 {vr(ACC+4*j,4)}, {vr(ra,4)}, {vr(rb,4)}, {vr(ACC+4*j,4)}"), b2=first)
    for i in range(10):
        k(f"v_cvt_pk_bf16_f32 v{RES+i}, v{ACC+2*i}, v{ACC+2*i+1}")
    rw("store", not first)
    if first:
        k(f"""
        v_mov_b32 v5, 0x3f803f80
        v_mov_b32 v6, 0
        v_mov_b32 v7, 0
        """)
        for i in range(10):
            k(f"v_dot2_f32_bf16 v6, v{RES+i}, v5, v6")
            k(f"v_dot2_f32_bf16 v7, v{RES+i}, v{RES+i}, v7")
        k(f"""
        s_lshl_b32 s29, s21, 14
        s_lshl_b32 s20, s20, 7
        s_add_u32 s29, s29, s20
        s_add_u32 s29, s29, {ST_OFF}
        v_lshrrev_b32 v1, 5, v2
        v_lshlrev_b32 v1, 2, v1
        v_lshl_add_u32 v1, v3, 3, v1
        v_permlane32_swap_b32 v6, v7
        v_add_f32 v6, v6, v7
        v_mov_b32 v7, v6
        v_permlane16_swap_b32 v6, v7
        v_add_f32 v6, v6, v7
        buffer_store_dword v6, v1, s[{SWS}:{SWS+3}], s29 offen{os.environ.get('STSC',' sc1')}
        """)
    k.end(SWS, idx)
    k(f"""
    {L_ld}:
    s_mul_i32 s24, s21, {nks*5120}
    s_add_u32 s24, s24, {woff}
    s_mul_i32 s25, s20, {nks*1024}
    s_add_u32 s25, s25, {aoff}
    """)
    rot(k, nch)
    loader(k, SWS, GL, nch, 10240, idx)
    k(f"{L_end}:")
    k("s_endpgm")
    return k

def rot(k, nch):
    if ROT: k(f"s_lshl_b32 s31, s31, 1\ns_add_u32 s30, s30, s31\ns_and_b32 s30, s30, 7\ns_mul_i32 s30, s30, {nch}\ns_lshr_b32 s30, s30, 3")
    else: k("s_mov_b32 s30, 0")

def build_k4():
    k = Kern("ffn1_kernel", 256, 512, 163840)
    SWS = 12
    L_end = k.lab("end"); L_ld = k.lab("ld")
    a = Alloc(8)
    GL = a(); LA = a(); LB = a()
    ST = a(8, 4); MN = a(8, 4); A = a(24, 4); CSF = A; B = [a(4, 4), a(4, 4)]; ACC = a(96, 4)
    k(f"""
    s_cmp_ge_u32 s2, 256
    s_cbranch_scc1 {L_end}
    """)
    k.stamp(0)
    load_srds(k, [("ws", SWS)])
    k(f"""
    v_lshrrev_b32 v1, 6, v0
    v_and_b32 v2, 63, v0
    v_readfirstlane_b32 s22, v1        ; wave
    """)
    if int(os.environ.get("MAP4", "1")):
        k("""
        s_bfe_u32 s20, s2, 0x20001
        s_lshl_b32 s20, s20, 2
        s_bfe_u32 s30, s2, 0x20003
        s_add_u32 s20, s20, s30
        s_and_b32 s21, s2, 1
        s_lshl_b32 s21, s21, 3
        s_lshr_b32 s31, s2, 5
        s_add_u32 s21, s21, s31            ; ct
        """)
    else: k("""
    s_and_b32 s20, s2, 1
    s_lshl_b32 s20, s20, 3
    s_bfe_u32 s30, s2, 0x30003
    s_add_u32 s20, s20, s30
    s_bfe_u32 s21, s2, 0x20001
    s_lshl_b32 s21, s21, 2
    s_lshr_b32 s31, s2, 6
    s_add_u32 s21, s21, s31            ; ct
    """)
    k(f"""
    v_lshlrev_b32 v{GL}, 4, v2
    s_and_b32 s23, s22, 3
    s_lshl_b32 s20, s20, 2
    s_add_u32 s20, s20, s23            ; tile32
    s_mul_i32 s24, s21, {41*6144}
    s_add_u32 s24, s24, {W13F_OFF}
    s_cmp_ge_u32 s22, 4
    s_cbranch_scc1 {L_ld}
    v_and_b32 v3, 31, v2               ; m
    v_lshrrev_b32 v4, 5, v2            ; hf
    v_lshlrev_b32 v1, 16, v4
    v_lshl_add_u32 v1, v3, 3, v1
    s_lshl_b32 s25, s20, 8
    s_add_u32 s25, s25, {ST_OFF}
    s_add_u32 s26, s25, 16384
    s_add_u32 s27, s25, 32768
    s_add_u32 s28, s25, 49152
    s_add_u32 s29, s24, 3072
    s_waitcnt lgkmcnt(0)
    """)
    for i in range(4): k(f"buffer_load_dwordx2 v[{ST+2*i}:{ST+2*i+1}], v1, s[{SWS}:{SWS+3}], s{25+i} offen")
    for j in range(6): k(f"buffer_load_dwordx4 v[{CSF+4*j}:{CSF+4*j+3}], v{GL}, s[{SWS}:{SWS+3}], s{24 if j < 3 else 29} offen offset:{(j%3)*1024}")
    k(f"""
    v_mov_b32 v{LA}, v{GL}
    s_lshl_b32 s25, s23, 11
    s_add_u32 s25, s25, 12288
    v_add_u32 v{LB}, s25, v{GL}
    v_lshrrev_b32 v1, 4, v3
    v_mul_u32_u24 v1, {192*256}, v1
    v_and_b32 v5, 15, v3
    v_lshl_add_u32 v1, v5, 4, v1
    v_lshl_add_u32 v3, v4, 8, v1
    s_mul_i32 s26, s20, {2*192*256}
    s_mul_i32 s27, s21, {12*256}
    s_add_u32 s26, s26, s27
    s_add_u32 s26, s26, {HH_OFF}
    s_waitcnt vmcnt(6)
    v_pk_add_f32 v[{ST}:{ST+1}], v[{ST}:{ST+1}], v[{ST+2}:{ST+3}]
    v_pk_add_f32 v[{ST+4}:{ST+5}], v[{ST+4}:{ST+5}], v[{ST+6}:{ST+7}]
    v_pk_add_f32 v[{ST}:{ST+1}], v[{ST}:{ST+1}], v[{ST+4}:{ST+5}]
    v_mov_b32 v{ST+2}, v{ST}
    v_mov_b32 v{ST+3}, v{ST+1}
    v_permlane32_swap_b32 v{ST}, v{ST+2}
    v_permlane32_swap_b32 v{ST+1}, v{ST+3}
    v_pk_add_f32 v[{ST}:{ST+1}], v[{ST}:{ST+1}], v[{ST+2}:{ST+3}]
    v_mul_f32 v{ST}, {f32(-1.0/640)}, v{ST}          ; -mean
    v_mul_f32 v{ST+1}, {f32(1.0/640)}, v{ST+1}
    v_fma_f32 v{ST+1}, -v{ST}, v{ST}, v{ST+1}
    v_max_f32 v{ST+1}, 0, v{ST+1}
    v_add_f32 v{ST+1}, {f32(1e-5)}, v{ST+1}
    v_rsq_f32 v{ST+4}, v{ST+1}
    v_cvt_pk_bf16_f32 v{MN}, v{ST}, v{ST}
    v_and_b32 v{ST+3}, 0xffff0000, v{MN}
    v_sub_f32 v{ST+3}, v{ST}, v{ST+3}
    v_cvt_pk_bf16_f32 v{MN+4}, v{ST+3}, v{ST+3}
    v_mov_b32 v{MN+1}, v{MN}
    v_mov_b32 v{MN+2}, v{MN}
    v_mov_b32 v{MN+3}, v{MN}
    v_mov_b32 v{MN+5}, v{MN+4}
    v_mov_b32 v{MN+6}, v{MN+4}
    v_mov_b32 v{MN+7}, v{MN+4}
    v_mul_f32 v{ST+6}, v{ST+4}, v{ST+4}              ; rstd^2
    v_mul_f32 v{ST+4}, {f32(-LOG2E)}, v{ST+4}        ; -log2e*rstd
    s_waitcnt vmcnt(0)
    """)
    for j in range(6): k(f"v_mfma_f32_32x32x16_bf16 {vr(ACC+16*j,16)}, {vr(CSF+4*j,4)}, {vr(MN,4)}, 0")
    for j in range(6): k(f"v_mfma_f32_32x32x16_bf16 {vr(ACC+16*j,16)}, {vr(CSF+4*j,4)}, {vr(MN+4,4)}, {vr(ACC+16*j,16)}")
    def mf4(j, ra, rb):
        if os.environ.get("FAKE16"):
            o = ACC + 16*j + (8 if rb == B[1] else 0)
            k(f"v_mfma_f32_16x16x32_bf16 {vr(o,4)}, {vr(ra,4)}, {vr(rb,4)}, {vr(o,4)}")
            k(f"v_mfma_f32_16x16x32_bf16 {vr(o+4,4)}, {vr(rb,4)}, {vr(ra,4)}, {vr(o+4,4)}")
        else: k(f"v_mfma_f32_32x32x16_bf16 {vr(ACC+16*j,16)}, {vr(ra,4)}, {vr(rb,4)}, {vr(ACC+16*j,16)}")
    ringloop(k, 20, 6, 12288, LA, LB, A, B, mf4)
    T = A
    for p in range(3):
        G = ACC + 32 * p; U = G + 16
        for h in range(2):
            t = T + 8 * h; g = G + 8 * h; u = U + 8 * h
            for i in range(0, 8, 2): k(f"v_pk_mul_f32 v[{t+i}:{t+i+1}], v[{g+i}:{g+i+1}], v[{ST+4}:{ST+5}] op_sel_hi:[1,0]")
            for i in range(8): k(f"v_exp_f32 v{t+i}, v{t+i}")
            for i in range(0, 8, 2): k(f"v_pk_mul_f32 v[{g+i}:{g+i+1}], v[{g+i}:{g+i+1}], v[{u+i}:{u+i+1}]")
            for i in range(0, 8, 2): k(f"v_pk_add_f32 v[{t+i}:{t+i+1}], v[{t+i}:{t+i+1}], 1.0 op_sel_hi:[1,0]")
            for i in range(8): k(f"v_rcp_f32 v{t+i}, v{t+i}")
            for i in range(0, 8, 2): k(f"v_pk_mul_f32 v[{g+i}:{g+i+1}], v[{g+i}:{g+i+1}], v[{ST+6}:{ST+7}] op_sel_hi:[1,0]")
            for i in range(0, 8, 2): k(f"v_pk_mul_f32 v[{g+i}:{g+i+1}], v[{g+i}:{g+i+1}], v[{t+i}:{t+i+1}]")
            for i in range(4): k(f"v_cvt_pk_bf16_f32 v{u+i}, v{g+2*i}, v{g+2*i+1}")
            k(f"buffer_store_dwordx4 {vr(u,4)}, v3, s[{SWS}:{SWS+3}], s26 offen offset:{(4*p+2*h)*256}{SC}")
    k.end(SWS, 3)
    k(f"""
    {L_ld}:
    s_add_u32 s24, s24, 6144
    s_mul_i32 s25, s20, 40960
    s_add_u32 s25, s25, {HF_OFF}
    """)
    rot(k, 20)
    loader(k, SWS, GL, 20, 12288, 3)
    k(f"{L_end}:")
    k("s_endpgm")
    return k

def build_k345():
    return [gemm16("oproj_kernel", 20, WOF_OFF, OF_OFF, True), build_k4(), gemm16("ffn2_kernel", 48, W2F_OFF, HH_OFF, False)]
```

```python
import re, sys, os
PROF = int(os.environ.get('PROF', '0'))
HPROF = int(os.environ.get('HPROF', '0'))

TRANS = re.compile(r"^v_(exp|log|rcp|rsq|sqrt|sin|cos)_")
REG = re.compile(r"^(-|\|)?([vas])(\d+)\|?$")
REGR = re.compile(r"^(-|\|)?([vas])\[(\d+):(\d+)\]\|?$")

def regs_of(tok):
    tok = tok.strip()
    if tok.startswith("neg(") or tok.startswith("abs("):
        tok = tok[4:-1]
    if tok.startswith("-|"):
        tok = tok[1:]
    m = REG.match(tok)
    if m: return [(m.group(2), int(m.group(3)))]
    m = REGR.match(tok)
    if m: return [(m.group(2), i) for i in range(int(m.group(3)), int(m.group(4)) + 1)]
    if tok == "vcc": return [("s", 106), ("s", 107)]
    if tok == "vcc_lo": return [("s", 106)]
    if tok == "vcc_hi": return [("s", 107)]
    if tok == "exec": return [("s", 126), ("s", 127)]
    if tok == "exec_lo": return [("s", 126)]
    if tok == "exec_hi": return [("s", 127)]
    if tok == "m0": return [("s", 124)]
    return []

def mfma_passes(op):
    if "_16b" in op: return 2
    if "_4b" in op: return 8
    if "_2b" in op: return 16
    if "32x32" in op: return 8
    if "16x16" in op: return 4
    raise ValueError(op)

class Ins:
    __slots__ = ("text", "op", "kind", "wr", "rd", "passes", "A", "B", "C", "D", "wide", "lds", "dpp", "sdwa", "target", "nop", "data", "label", "sread")
    def __init__(self, text):
        self.text = text
        t = text.split(";")[0].strip()
        self.label = None; self.op = None; self.kind = None
        self.wr = []; self.rd = []; self.target = None; self.nop = 0; self.data = []
        self.wide = False; self.lds = False; self.dpp = False; self.sdwa = False
        if not t or t.startswith("."):
            self.kind = "none"; return
        if t.endswith(":"):
            self.kind = "label"; self.label = t[:-1]; return
        parts = t.split(None, 1)
        op = parts[0]; self.op = op
        rest = parts[1] if len(parts) > 1 else ""
        ops = []; cur = ""; depth = 0
        for ch in rest:
            if ch in "[(": depth += 1
            if ch in "])": depth -= 1
            if ch == "," and depth == 0:
                ops.append(cur.strip()); cur = ""
            else: cur += ch
        if cur.strip(): ops.append(cur.strip())
        mods = []
        if ops:
            last = ops[-1].split()
            ops[-1] = last[0]; mods = last[1:]
        R = [regs_of(o) for o in ops]
        allr = lambda L: [r for x in L for r in x]
        if op.startswith("v_mfma"):
            self.kind = "mfma"; self.passes = mfma_passes(op)
            self.D, self.A, self.B, self.C = R[0], R[1], R[2], R[3]
            self.wr = R[0]; self.rd = R[1] + R[2] + R[3]
        elif op.startswith("v_"):
            self.kind = "valu"
            self.dpp = op.endswith("_dpp") or any(m.startswith(("row_", "quad_perm", "wave_")) for m in mods)
            self.sdwa = op.endswith("_sdwa") or any(m.startswith("op_sel:") for m in mods)
            if op == "v_nop": pass
            elif "permlane" in op and "swap" in op:
                self.wr = R[0] + R[1]; self.rd = R[0] + R[1]
            elif op.startswith("v_cmp"):
                self.wr = R[0]; self.rd = allr(R[1:])
                assert not op.startswith("v_cmpx")
            elif "_co_" in op:
                self.wr = R[0] + R[1]; self.rd = allr(R[2:])
            else:
                self.wr = R[0]; self.rd = allr(R[1:])
                if op.startswith(("v_fmac", "v_dot2c", "v_mac")) or self.sdwa or self.dpp or op.startswith("v_writelane"):
                    self.rd = self.rd + R[0]
                if op.startswith("v_cndmask") and len(ops) == 3: self.rd += regs_of("vcc")
        elif op.startswith("ds_"):
            self.kind = "ds"
            if op.startswith(("ds_read", "ds_bpermute", "ds_permute", "ds_swizzle")) or "_rtn" in op:
                self.wr = R[0]; self.rd = allr(R[1:])
            else:
                self.rd = allr(R)
        elif op.startswith(("buffer_", "global_")):
            self.kind = "vmem"
            self.lds = "lds" in mods or "_lds_" in op
            if op in ("buffer_wbl2", "buffer_inv"): pass
            elif "_load" in op:
                if self.lds: self.rd = allr(R) + regs_of("m0")
                else:
                    self.wr = R[0]; self.rd = allr(R[1:])
                    if "d16" in op: self.data = R[0]
            elif "_store" in op:
                self.rd = allr(R)
                self.data = R[0] if op.startswith("buffer") else R[1]
                self.wide = op.endswith(("x3", "x4"))
            elif "atomic" in op:
                self.rd = allr(R)
                if "sc0" in mods: self.wr = R[0]
            else: raise ValueError(op)
        elif op.startswith("s_"):
            self.kind = "salu"
            if op == "s_nop": self.nop = int(ops[0], 0)
            elif op.startswith(("s_cbranch", "s_branch")):
                self.kind = "branch"; self.target = ops[0]
            elif op == "s_endpgm": self.kind = "end"
            elif op == "s_waitcnt": self.kind = "wait"; self.data = t
            elif op.startswith(("s_memtime", "s_memrealtime")): pass
            elif op.startswith(("s_load", "s_buffer_load")):
                self.kind = "smem"; self.wr = R[0]; self.rd = allr(R[1:])
            elif op.startswith(("s_cmp", "s_bitcmp", "s_barrier", "s_setprio", "s_sleep", "s_setreg")):
                self.rd = allr(R)
            else:
                self.wr = R[0]; self.rd = allr(R[1:])
                if op.startswith("s_addk"): self.rd = self.rd + R[0]
                if "saveexec" in op: self.wr = self.wr + regs_of("exec")
        else:
            raise ValueError("unknown instruction: " + text)

MD_C = {2: 4, 4: 6, 8: 10, 16: 18}
MD_AB = {2: 5, 4: 8, 8: 12, 16: 20}
MC_W = {2: 1, 4: 3, 8: 7, 16: 15}

def need_states(hist, ins):
    need = 0
    rd = set(ins.rd); wr = set(ins.wr)
    for age, p in hist:
        n = 0
        pw = set(p.wr)
        if p.kind == "valu":
            vw = {r for r in pw if r[0] != "s"}; sw = pw - vw
            isdot = p.op.startswith("v_dot")
            if ins.kind == "mfma" and vw & rd: n = max(n, 3 if isdot else 2)
            if ins.kind == "valu":
                if TRANS.match(p.op) and not TRANS.match(ins.op) and vw & rd: n = max(n, 1)
                if ins.op.startswith(("v_readlane", "v_readfirstlane")) and vw & rd: n = max(n, 1)
                if ("permlane" in ins.op or ins.dpp) and vw & rd: n = max(n, 2)
                if sw & rd: n = max(n, 4 if ins.op.startswith(("v_readlane", "v_writelane")) else 2)
                if p.sdwa and vw & (rd | wr): n = max(n, 1)
                if isdot and vw & (rd | wr) and not (ins.op == p.op and ins.wr == p.wr): n = max(n, 3)
            if ins.kind in ("vmem", "ds"):
                if sw & rd: n = max(n, 5)
                if isdot and vw & rd: n = max(n, 3)
            if ins.kind in ("salu", "branch", "smem") and sw & rd: n = max(n, 1)
        elif p.kind == "mfma":
            D = set(p.D)
            if ins.kind == "mfma":
                if D & set(ins.C):
                    if ins.C == p.D and ins.passes == p.passes: n = max(n, 2 if p.passes == 2 else 0)
                    else: n = max(n, MD_C[p.passes])
                if D & (set(ins.A) | set(ins.B)): n = max(n, MD_AB[p.passes])
                if D & set(ins.D) and not (ins.D == p.D and ins.passes == p.passes): n = max(n, MD_AB[p.passes])
            elif ins.kind in ("valu", "vmem", "ds"):
                if D & (rd | wr): n = max(n, MD_AB[p.passes])
                if ins.kind == "valu" and set(p.C) & wr: n = max(n, MC_W[p.passes])
        elif p.kind == "salu":
            if ("s", 124) in pw and ins.kind == "vmem" and ins.lds: n = max(n, 1)
        elif p.kind == "vmem":
            if p.wide and set(p.data) & wr: n = max(n, 2)
        if n - age > need: need = n - age
    return need

def paths(ins, maxback=1):
    lab = {x.label: i for i, x in enumerate(ins) if x.kind == "label"}
    out = []
    stack = [(0, [], {})]
    while stack:
        pc, tr, taken = stack.pop()
        tr = list(tr)
        while True:
            assert pc < len(ins), "fell off the end"
            x = ins[pc]; tr.append(pc)
            if x.kind == "end": break
            if x.kind == "branch":
                t = lab[x.target]
                ms = re.search(r"@seq=([NT]+)", x.text)
                if ms:
                    n = taken.get(pc, 0); taken = dict(taken); taken[pc] = n + 1
                    if ms.group(1)[min(n, len(ms.group(1)) - 1)] == "T": pc = t
                    else: pc += 1
                    continue
                if "@both" in x.text:
                    stack.append((t, list(tr), taken)); pc += 1; continue
                if x.op == "s_branch":
                    if t <= pc:
                        if taken.get(pc, 0) >= maxback: break
                        taken = dict(taken); taken[pc] = taken.get(pc, 0) + 1
                    pc = t; continue
                if t <= pc:
                    if taken.get(pc, 0) < maxback:
                        taken = dict(taken); taken[pc] = taken.get(pc, 0) + 1
                        pc = t; continue
                else:
                    stack.append((t, list(tr), taken))
            pc += 1
        out.append(tr)
        assert len(out) < 3000, "too many paths"
    return out

def pad_and_check(lines, name="", verbose=True):
    ins = [Ins(l) for l in lines]
    ps = paths(ins)
    pad = [0] * len(ins)
    changed = True
    while changed:
        changed = False
        for tr in ps:
            hist = []
            for pc in tr:
                x = ins[pc]
                if x.kind in ("none", "label"): continue
                if pad[pc]: hist = [(a + pad[pc], p) for a, p in hist]
                n = need_states(hist, x)
                if n > 0:
                    pad[pc] += n; changed = True
                    hist = [(a + n, p) for a, p in hist]
                st = x.nop + 1
                hist = [(a + st, p) for a, p in hist if a + st < 21]
                if x.kind in ("valu", "mfma", "salu", "vmem"): hist.insert(0, (0, x))
    errs = set()
    for tr in ps:
        vm = []; lg = []
        for pc in tr:
            x = ins[pc]
            if x.kind in ("none", "label"): continue
            if x.kind == "wait":
                m = re.search(r"vmcnt\((\d+)\)", x.data)
                if m:
                    n = int(m.group(1)); vm = vm[max(0, len(vm) - n):] if n else []
                m = re.search(r"lgkmcnt\((\d+)\)", x.data)
                if m:
                    n = int(m.group(1))
                    if n == 0: lg = []
                    elif not any(k == "smem" for k, _ in lg): lg = lg[len(lg) - n:] if n < len(lg) else lg
                continue
            use = set(x.rd) | set(x.wr)
            for q, same in ((vm, "vmem"), (lg, "ds")):
                for k, d in q:
                    u = use
                    if x.kind == same and k == same: u = set(x.rd)
                    if d & u: errs.add((pc, "outstanding %s dest used: %s" % (k, x.text.strip())))
            if x.kind == "vmem":
                vm.append(("vmem", set(x.wr)))
                if len(vm) > 63: errs.add((pc, "vmcnt overflow"))
            elif x.kind == "ds":
                lg.append(("ds", set(x.wr)))
                if len(lg) > 15: lg = lg
            elif x.kind == "smem": lg.append(("smem", set(x.wr)))
    for pc, e in sorted(errs)[:8]: print(f"[{name}] WAITCNT ERROR line {pc}: {e}", file=sys.stderr)
    if errs: raise SystemExit(1)
    out = []
    npad = 0
    for i, x in enumerate(ins):
        n = pad[i]
        npad += n
        while n > 0:
            k = min(n, 16); out.append(f"    s_nop {k-1}"); n -= k
        out.append(x.text)
    mv = max([r[1] for x in ins for r in x.rd + x.wr if r[0] == "v"] + [0])
    ma = max([r[1] for x in ins for r in x.rd + x.wr if r[0] == "a"] + [-1])
    if verbose: print(f"[{name}] {sum(1 for x in ins if x.op)} instrs, {len(ps)} paths, {npad} pad states, max v{mv} a{ma}", file=sys.stderr)
    return out, mv + 1, ma + 1

class Kern:
    def __init__(self, name, grid, block, lds):
        self.name = name; self.grid = grid; self.block = block; self.lds = lds
        self.lines = []; self.nl = 0
    def __call__(self, text):
        for l in text.split("\n"):
            l = l.strip()
            if not l: continue
            self.lines.append(l if l.endswith(":") or l.startswith(".") else "    " + l)
    def lab(self, base):
        self.nl += 1
        return f"L_{self.name}_{base}_{self.nl}"
    def stamp(self, slot):
        if HPROF and slot == 0: self("s_memrealtime s[86:87]")
        if PROF: self(f"s_memrealtime s[{86+2*slot}:{87+2*slot}]")
        if PROF and slot == 0: self("s_memtime s[84:85]")
        if PROF and slot == 2 and os.environ.get("CYC"): self("s_memtime s[78:79]")
        if PROF and slot == int(os.environ.get("CYC", "99")): self("s_memtime s[80:81]")
    def end(self, sws, idx):
        if HPROF:
            L = self.lab("hp")
            self(f'''
            s_and_b32 s98, s2, 0x38
            s_cbranch_scc1 {L}
            s_load_dwordx2 s[96:97], s[0:1], 64
            s_waitcnt vmcnt(0)
            s_memrealtime s[100:101]
            s_mov_b64 exec, -1
            v_cmp_eq_u32 vcc, 0, v0
            s_mov_b64 exec, vcc
            s_cbranch_execz {L}
            s_waitcnt lgkmcnt(0)
            s_add_u32 s96, s96, {(4-idx)*512+idx*8}
            s_addc_u32 s97, s97, 0
            s_not_b32 s86, s86
            v_mov_b32 v8, s86
            v_mov_b32 v9, s100
            v_mov_b32 v10, 0
            global_atomic_umax v10, v8, s[96:97]
            global_atomic_umax v10, v9, s[96:97] offset:4
            {L}:
            ''')
        if PROF:
            self("s_waitcnt vmcnt(0)") if PROF > 1 else None
            self("s_memrealtime s[100:101]")
            self("s_memtime s[82:83]")
            self("s_mov_b64 exec, 1")
            self("v_lshrrev_b32 v0, 6, v0")
            self("v_lshlrev_b32 v0, 6, v0")
            self("s_lshl_b32 s2, s2, 9")
            self(f"s_add_u32 s2, s2, {0x2700000 + idx * 131072}")
            self("s_waitcnt lgkmcnt(0)")
            for i in range(8): self(f"v_mov_b32 v{8+i}, s{86+2*i}")
            self(f"buffer_store_dwordx4 v[8:11], v0, s[{sws}:{sws+3}], s2 offen")
            self(f"buffer_store_dwordx4 v[12:15], v0, s[{sws}:{sws+3}], s2 offen offset:16")
            self("s_sub_u32 s82, s82, s84")
            self("v_mov_b32 v16, s82")
            self(f"buffer_store_dword v16, v0, s[{sws}:{sws+3}], s2 offen offset:32")
            self("s_sub_u32 s80, s80, s78")
            self("v_mov_b32 v17, s80")
            self(f"buffer_store_dword v17, v0, s[{sws}:{sws+3}], s2 offen offset:36")
        self("s_endpgm")
    def finish(self):
        body, nv, na = pad_and_check(self.lines, self.name)
        acc = (nv + 3) // 4 * 4
        nfv = acc + na if na else nv
        txt = f".text\n.globl {self.name}\n.p2align 8\n.type {self.name},@function\n{self.name}:\n" + "\n".join(body) + "\n"
        txt += f""".section .rodata,"a"
.p2align 6
.amdhsa_kernel {self.name}
  .amdhsa_next_free_vgpr {nfv}
  .amdhsa_next_free_sgpr 102
  .amdhsa_accum_offset {acc}
  .amdhsa_group_segment_fixed_size 0
  .amdhsa_kernarg_size 80
  .amdhsa_user_sgpr_count 2
  .amdhsa_user_sgpr_kernarg_segment_ptr 1
  .amdhsa_system_sgpr_workgroup_id_x 1
.end_amdhsa_kernel
"""
        return txt

def vr(a, n=1, k="v"):
    return f"{k}{a}" if n == 1 else f"{k}[{a}:{a+n-1}]"

class Alloc:
    def __init__(self, start=0): self.n = start
    def __call__(self, cnt=1, align=1):
        if cnt > 1 and align == 1: align = 2
        self.n = (self.n + align - 1) // align * align
        r = self.n; self.n += cnt
        return r

def write_file(path, kerns, order=None):
    order = order or kerns
    head = "; generated by gen/gen.py (hand-written generator)\n"
    for k in order:
        head += f"; @launch kernel={k.name} grid=({k.grid},1,1) block=({k.block},1,1) lds={k.lds}\n"
    head += '.amdgcn_target "amdgcn-amd-amdhsa--gfx950"\n'
    seen = set(); body = ""
    for k in kerns:
        if k.name in seen: continue
        seen.add(k.name); body += k.finish()
    body += ".text\ncode_end:\n    s_endpgm\n"
    open(path, "w").write(head + body)
```

```python
from common import *
PRIO = int(os.environ.get("PRIO", "2"))
OSC = os.environ.get("OSC", " sc1")
RSC = os.environ.get("RSC", " sc1")
TLB = int(os.environ.get("TLB", "0"))
CSC = os.environ.get("CSC", " sc1")
PJ = int(os.environ.get("PJ", "19"))

def build_k2():
    k = Kern("attn_kernel", 256, 512, 163840)
    SWS, SRC = 12, 16
    L_end = k.lab("end")
    a = Alloc(8)
    QL = [a(4), a(4)]; QH = a(2); AK = a(); AH = a(); AV = a(); GL = a(); L8 = a()
    NM = a(32, 4); S = [a(32, 4), a(32, 4)]; P = a(16, 4); O = a(32, 4)
    KL = [a(4), a(4)]; KH = [a(2), a(2)]; V = [a(8), a(8)]
    RP = a(20, 4); RA = a(2); SEL = a(4); CS = a(4)
    k(f"""
    s_cmp_ge_u32 s2, 256
    s_cbranch_scc1 {L_end}
    """)
    k.stamp(0)
    load_srds(k, [("ws", SWS)])
    k(f"""
    s_load_dwordx2 s[20:21], s[0:1], {ARG['wo']}
    s_load_dwordx4 s[24:27], s[0:1], {ARG['w1']}
    s_load_dwordx2 s[22:23], s[0:1], {ARG['w2']}
    v_lshrrev_b32 v1, 6, v0
    v_and_b32 v2, 63, v0           ; lane
    v_readfirstlane_b32 s30, v1    ; wave
    s_and_b32 s28, s2, 7
    s_lshl_b32 s28, s28, 2
    s_lshr_b32 s29, s2, 6
    s_add_u32 s28, s28, s29        ; head
    v_lshlrev_b32 v{GL}, 4, v2
    v_lshlrev_b32 v{L8}, 3, v2
    s_mul_i32 s31, s28, {HS}
    {f's_add_u32 s31, s31, {KV_OFF}' if KV_OFF else ''}
    s_lshl_b32 s34, s30, 11
    s_add_u32 s35, s31, s34
    s_mov_b32 m0, s34
    v_and_b32 v3, 31, v2           ; m
    v_lshrrev_b32 v4, 5, v2        ; hf
    s_bfe_u32 s29, s2, 0x30003     ; qb
    s_lshr_b32 s39, s30, 2         ; par
    s_lshl_b32 s32, s29, 2
    s_and_b32 s33, s30, 3
    s_add_u32 s32, s32, s33
    s_lshl_b32 s32, s32, 1
    s_mul_i32 s33, s32, {TS}
    s_add_u32 s33, s33, s31
    s_add_u32 s33, s33, {Q_OFF-KV_OFF}
    s_add_u32 s32, s32, s39
    s_mul_i32 s37, s39, {TS}
    s_add_u32 s36, s33, s37
    s_sub_u32 s38, s33, s37
    v_lshlrev_b32 v5, 3, v3
    v_xor_b32 v1, s39, v4
    v_mul_u32_u24 v1, {TS}, v1
    v_add_u32 v1, v1, v5
    s_waitcnt lgkmcnt(0)
    """)
    def dma(b):
        if b: k(f"s_add_u32 m0, s34, {b*16384}"); k("s_add_u32 s35, s35, 16384")
        for i in range(2): k(f"buffer_load_dwordx4 v{GL}, s[{SWS}:{SWS+3}], s35 offen offset:{i*1024} lds")
    dma(0)
    k(f"""
    buffer_load_dwordx2 {vr(QL[0],2)}, v{L8}, s[{SWS}:{SWS+3}], s36 offen
    buffer_load_dwordx2 {vr(QL[0]+2,2)}, v{L8}, s[{SWS}:{SWS+3}], s36 offen offset:512
    buffer_load_dwordx2 {vr(QL[1],2)}, v{L8}, s[{SWS}:{SWS+3}], s38 offen offset:{TS}
    buffer_load_dwordx2 {vr(QL[1]+2,2)}, v{L8}, s[{SWS}:{SWS+3}], s38 offen offset:{TS+512}
    buffer_load_dwordx2 {vr(QH,2)}, v1, s[{SWS}:{SWS+3}], s33 offen offset:1024
    v_add_u32 v{AK}, s37, v{L8}
    v_add_u32 v5, 1024, v5
    v_add_u32 v{AH}, s37, v5
    v_mul_u32_u24 v{AV}, 320, v4
    v_lshl_add_u32 v{AV}, v3, 4, v{AV}
    s_add_u32 s37, s37, 1280
    v_add_u32 v{AV}, s37, v{AV}
    s_mov_b32 s50, 0x000fffff
    s_mov_b32 s51, 0x000fffff
    """)
    for i in range(32): k(f"v_mov_b32 v{O+i}, 0")
    dma(1)
    k("v_cmp_eq_u32 vcc, 20, v3"); k("v_mov_b32 v6, 0x3f803f80")
    for i in range(16): k(f"v_cndmask_b32 v{V[0]+i}, 0, v6, vcc")
    dma(2)
    def rdK(b, off):
        k(f"ds_read2st64_b64 {vr(KL[b],4)}, v{AK} offset0:{off//512} offset1:{off//512+1}")
        k(f"ds_read_b64 {vr(KH[b],2)}, v{AH} offset:{off}")
    def rdV(b, off):
        k("s_mov_b64 exec, s[50:51]")
        k(f"ds_read_b128 {vr(V[b],4)}, v{AV} offset:{off}")
        k(f"ds_read_b128 {vr(V[b]+4,4)}, v{AV} offset:{off+640}")
        k("s_mov_b64 exec, -1")
    def qkh(b, kh, c): k(f"v_mfma_f32_32x32x4_2b_bf16 {vr(S[b],32)}, {vr(kh,2)}, {vr(QH,2)}, {c}")
    def qkl(b, kl, q): k(f"v_mfma_f32_32x32x16_bf16 {vr(S[b]+16*q,16)}, {vr(kl,4)}, {vr(QL[q],4)}, {vr(S[b]+16*q,16)}")
    def pv(b, q, h): k(f"v_mfma_f32_32x32x16_bf16 {vr(O+16*q,16)}, {vr(V[b]+4*h,4)}, {vr(P+8*q+4*h,4)}, {vr(O+16*q,16)}")
    def exps(b, lo, hi):
        for i in range(lo, hi): k(f"v_exp_f32 v{S[b]+i}, v{S[b]+i}")
    def cvts(b, lo, hi):
        for i in range(lo, hi): k(f"v_cvt_pk_bf16_f32 v{P+i}, v{S[b]+2*i}, v{S[b]+2*i+1}")
    def maxred(s, dst, init):
        if init: k(f"v_max3_f32 v{dst}, v{s}, v{s+1}, v{s+2}"); k(f"v_max_f32 v{dst}, v{dst}, v{s+3}"); st = 4
        else: st = 0
        for i in range(st, 16, 2): k(f"v_max3_f32 v{dst}, v{dst}, v{s+i}, v{s+i+1}")
    k("s_waitcnt vmcnt(4)")
    k("s_barrier")
    k.stamp(2)
    k(f"ds_read_b64 {vr(P+4,2)}, v5")
    k(f"ds_read2st64_b64 {vr(P,4)}, v{L8} offset1:1")
    rdK(0, 0); rdK(1, 2*TS); rdV(0, 0)
    k("s_waitcnt lgkmcnt(6)")
    k(f"v_mfma_f32_32x32x16_bf16 {vr(S[1],16)}, {vr(P,4)}, {vr(QL[0],4)}, 0")
    k(f"v_mfma_f32_32x32x16_bf16 {vr(S[1]+16,16)}, {vr(P,4)}, {vr(QL[1],4)}, 0")
    qkh(1, P + 4, vr(S[1], 32))
    maxred(S[1], 6, True); maxred(S[1] + 16, 7, True)
    k(f"""
    v_permlane32_swap_b32 v6, v7
    v_max_f32 v6, v6, v7
    v_mov_b32 v7, v6
    v_permlane32_swap_b32 v6, v7
    """)
    for i in range(32): k(f"v_sub_f32 v{NM+i}, 0, v{6 + i//16}")
    k("s_waitcnt lgkmcnt(4)")
    k(f"v_mfma_f32_32x32x16_bf16 {vr(S[0],16)}, {vr(KL[0],4)}, {vr(QL[0],4)}, {vr(NM,16)}")
    k(f"v_mfma_f32_32x32x16_bf16 {vr(S[0]+16,16)}, {vr(KL[0],4)}, {vr(QL[1],4)}, {vr(NM+16,16)}")
    qkh(0, KH[0], vr(S[0], 32))
    L_loop = k.lab("loop"); L_epi = k.lab("epi"); L_slow = k.lab("slow")
    L_r1 = k.lab("r1"); L_r1r = k.lab("r1r"); L_hk = k.lab("hk"); L_hkr = k.lab("hkr")
    k("s_mov_b32 s36, 0            ; round")
    k("s_mov_b32 s38, 0")
    def iteration(j, first=False, top=None, mid=None, late=None):
        c = j & 1; n = 1 - c
        exps(c, 0, 2)
        if not first: pv(n, 1, 1)
        if top: top()
        k("s_waitcnt lgkmcnt(0)")
        if j == 6:
            k(f"v_add_u32 v{AK}, {16*TS}, v{AK}"); k(f"v_add_u32 v{AH}, {16*TS}, v{AH}")
        if j == 7: k(f"v_add_u32 v{AV}, {16*TS}, v{AV}")
        rdV(n, ((j + 1) & 7) * 2 * TS)
        rdK(c, ((j + 2) & 7) * 2 * TS)
        qkh(n, KH[n], vr(NM, 32))
        exps(c, 2, 8); cvts(c, 0, 4); exps(c, 8, 10)
        pv(c, 0, 0)
        exps(c, 10, 16); cvts(c, 4, 5)
        qkl(n, KL[n], 0)
        cvts(c, 5, 8); exps(c, 16, 19)
        pv(c, 0, 1)
        if mid: mid()
        exps(c, 19, 23)
        qkl(n, KL[n], 1)
        exps(c, 23, 24); cvts(c, 8, 12); exps(c, 24, 26)
        pv(c, 1, 0)
        if late: late()
        exps(c, 26, 32); cvts(c, 12, 16)
    def sync(n):
        def f():
            k(f"s_waitcnt vmcnt({n})"); k("s_barrier")
            if PRIO == 1: k("s_setprio 1")
        return f
    lo = (lambda: k("s_setprio 0")) if PRIO == 1 else None
    if PRIO == 1: k("s_setprio 1")
    iteration(0, first=True, mid=lambda: dma(3), late=lo)
    iteration(1, top=sync(4), mid=lambda: dma(4))
    iteration(2, mid=lambda: dma(5))
    iteration(3, mid=lambda: dma(6), late=lo)
    iteration(4, top=sync(4), mid=lambda: dma(7))
    iteration(5, mid=lambda: dma(8))
    iteration(6, mid=lambda: dma(9))
    iteration(7, late=lo)
    k(f"{L_loop}:")
    def hook():
        k("s_cmp_lg_u32 s36, 1"); k(f"s_cbranch_scc1 {L_hk} ; @seq=TNT"); k(f"{L_hkr}:")
    def lastlo():
        if PRIO:
            Ls = k.lab("np")
            k(f"s_cmp_lg_u32 s36, {PJ//8}"); k(f"s_cbranch_scc1 {Ls}"); k("s_setprio 0"); k(f"{Ls}:")
    def cnt(): k("s_add_u32 s36, s36, 1"); k("s_cmp_lt_u32 s36, 3")
    for j in range(8):
        iteration(j, top=hook if j == 0 else None, mid=lastlo if j == PJ % 8 else None, late=cnt if j == 7 else None)
    k(f"s_cbranch_scc1 {L_loop} ; @seq=TTN")
    k(f"""
    s_mul_i32 s33, s30, 5120
    v_add_u32 v1, s33, v{GL}
    """)
    pv(1, 1, 1)
    k.stamp(5)
    k(f"""
    s_xor_b32 s33, s30, 4
    s_mul_i32 s33, s33, 5120
    v_add_u32 v6, s33, v{GL}
    """)
    for i in range(3): k(f"ds_write_b128 v1, {vr(O+16+4*i,4)} offset:{i*1024}")
    k(f"""
    s_mul_i32 s33, s32, {2*80*256}
    s_add_u32 s33, s33, {OF_OFF}
    s_lshl_b32 s34, s28, 9
    s_add_u32 s34, s34, s33            ; chunk 2h
    s_lshr_b32 s35, s28, 2
    s_lshl_b32 s35, s35, 1
    s_and_b32 s40, s28, 1
    s_add_u32 s35, s35, s40
    s_lshl_b32 s35, s35, 1
    s_bfe_u32 s40, s28, 0x10001
    s_add_u32 s35, s35, s40
    s_lshl_b32 s35, s35, 7
    s_add_u32 s35, s35, s33
    s_add_u32 s35, s35, {64*256}
    v_lshrrev_b32 v1, 4, v3
    v_mul_u32_u24 v1, {80*256}, v1
    v_and_b32 v7, 15, v3
    v_lshl_add_u32 v1, v7, 3, v1
    v_lshl_add_u32 v1, v4, 7, v1
    s_waitcnt lgkmcnt(0)
    s_barrier
    """)
    k.stamp(6)
    for i in range(3): k(f"ds_read_b128 {vr(O+16+4*i,4)}, v6 offset:{i*1024}")
    for i in range(12):
        if i % 4 == 0: k(f"s_waitcnt lgkmcnt({2 - i//4})")
        k(f"v_add_f32 v{O+i}, v{O+i}, v{O+16+i}")
    k(f"{L_epi}:")
    k(f"""
    v_mov_b32 v6, v{O+8}
    v_mov_b32 v7, v{O+8}
    v_mul_f32 v{P}, 0, v{O}
    v_mul_f32 v{P+1}, 0, v{O+8}
    v_permlane32_swap_b32 v6, v7       ; v7 = l
    """)
    for i in range(1, 8): k(f"v_fma_f32 v{P}, v{O+i}, 0, v{P}")
    for i in range(9, 12): k(f"v_fma_f32 v{P+1}, v{O+i}, 0, v{P+1}")
    k(f"""
    v_rcp_f32 v6, v7
    v_mov_b32 v{P+2}, {f32(2.0**60)}
    v_cmp_nlt_f32 s[40:41], v7, v{P+2}
    v_cmp_u_f32 s[42:43], v{P}, v{P+1}
    """)
    for i in range(0, 12, 2): k(f"v_pk_mul_f32 v[{O+i}:{O+i+1}], v[{O+i}:{O+i+1}], v[6:7] op_sel_hi:[1,0]")
    k(f"""
    s_or_b64 s[40:41], s[40:41], s[42:43]
    s_or_b32 s40, s40, s41
    s_andn2_b32 s40, s40, s38
    s_cbranch_scc1 {L_slow}
    """)
    for i in range(6): k(f"v_cvt_pk_bf16_f32 v{P+i}, v{O+2*i}, v{O+2*i+1}")
    k(f"""
    buffer_store_dwordx2 v[{P}:{P+1}], v1, s[{SWS}:{SWS+3}], s34 offen{OSC}
    buffer_store_dwordx2 v[{P+2}:{P+3}], v1, s[{SWS}:{SWS+3}], s34 offen offset:256{OSC}
    s_mov_b64 exec, 0xffffffff
    buffer_store_dwordx2 v[{P+4}:{P+5}], v1, s[{SWS}:{SWS+3}], s35 offen{OSC}
    """)
    k.end(SWS, 1)
    k(f"{L_end}:")
    k("s_endpgm")
    L_j2 = k.lab("j2"); L_wo = k.lab("wo"); L_go = k.lab("go"); L_t2 = k.lab("t2"); L_st = k.lab("st"); L_d = k.lab("d"); L_bar = k.lab("bar")
    slot = lambda s: s * 1024
    k(f"""
    {L_hk}:
    s_waitcnt vmcnt(0)
    s_cmp_lg_u32 s36, 0
    s_cbranch_scc1 {L_r1} ; @seq=NT
    s_barrier
    {"s_setprio 1" if PRIO else ""}
    {"s_memrealtime s[88:89]" if PROF else ""}
    """)
    if TLB:
        k(f"""
        s_load_dwordx2 s[52:53], s[0:1], {ARG['out']}
        s_mov_b32 s54, {SIZE['out']}
        s_mov_b32 s55, 0x00020000
        s_lshr_b32 s40, s2, 3
        s_lshl_b32 s40, s40, 3
        s_add_u32 s40, s40, s30
        s_lshl_b32 s40, s40, {6 + TLB}
        v_lshlrev_b32 v1, {TLB}, v2
        s_add_u32 s41, s40, {HF_OFF}
        s_cmp_lt_u32 s41, {WOF_OFF}
        s_cselect_b32 s41, s41, {WS_SIZE}
        v_add_u32 v6, s41, v1
        v_add_u32 v1, s40, v1
        buffer_load_dword v{CS}, v6, s[{SWS}:{SWS+3}], 0 offen
        s_waitcnt lgkmcnt(0)
        buffer_load_dword v{CS+1}, v1, s[52:55], 0 offen
        """)
    k(f"""
    s_cmp_ge_u32 s2, 164
    s_cbranch_scc1 {L_hkr} ; @both
    s_mul_i32 s34, s30, 5120
    s_mov_b32 s{SRC+3}, 0x00020000
    v_and_b32 v6, 3, v2                ; c
    s_cmp_ge_u32 s2, 96
    s_cbranch_scc1 {L_j2}
    ; ---- W1/W3 strip: ct = J/6, j = J%6
    s_mul_i32 s40, s2, 171
    s_lshr_b32 s40, s40, 10            ; ct
    s_mul_i32 s41, s40, 6
    s_sub_u32 s41, s2, s41             ; j
    s_bitcmp1_b32 s41, 0
    s_cselect_b32 s{SRC}, s26, s24
    s_cselect_b32 s{SRC+1}, s27, s25
    s_mov_b32 s{SRC+2}, {SIZE['w1']}
    s_lshr_b32 s42, s41, 1
    s_lshl_b32 s42, s42, 6
    s_mul_i32 s43, s40, 192
    s_add_u32 s42, s42, s43
    s_mul_i32 s43, s30, {80*3072}
    s_add_u32 s42, s42, s43
    v_lshrrev_b32 v1, 2, v2
    v_mul_u32_u24 v1, 3072, v1
    v_lshl_add_u32 v1, v6, 4, v1
    """)
    for f in range(5):
        k(f"s_add_u32 m0, s34, {slot(f)}")
        if f: k(f"s_add_u32 s42, s42, {16*3072}")
        k(f"buffer_load_dwordx4 v1, s[{SRC}:{SRC+3}], s42 offen lds")
    k(f"""
    s_mul_i32 s44, s40, {W13S}
    s_add_u32 s44, s44, {W13F_OFF}
    s_lshr_b32 s42, s41, 1
    s_lshl_b32 s42, s42, 1
    s_add_u32 s42, s42, s41            ; 4p + gu
    s_lshl_b32 s42, s42, 9
    s_add_u32 s44, s44, s42
    s_add_u32 s45, s44, s42
    s_mul_i32 s42, s30, 5
    s_lshr_b32 s43, s42, 1
    s_mul_i32 s43, s43, 12288
    s_add_u32 s45, s45, s43
    s_and_b32 s42, s42, 1
    s_cselect_b32 s46, 11776-512, 0
    s_add_u32 s46, s46, 512
    s_lshl_b32 s42, s42, 9
    s_add_u32 s45, s45, s42
    s_add_u32 s45, s45, 6144
    s_mov_b32 s53, {512 ^ 11776}
    s_branch {L_hkr} ; @seq=T
    {L_j2}:
    s_sub_u32 s40, s2, 96
    s_lshl_b32 s40, s40, 3
    s_add_u32 s40, s40, s30            ; u
    s_mov_b32 s46, 1024
    s_mov_b32 s53, 0
    s_cmp_lt_u32 s2, 116
    s_cbranch_scc1 {L_wo}
    s_sub_u32 s40, s40, 160
    s_mul_i32 s41, s40, 1366
    s_lshr_b32 s41, s41, 16            ; ct
    s_mul_i32 s42, s41, 48
    s_sub_u32 s42, s40, s42            ; ks
    s_mov_b32 s{SRC}, s22
    s_mov_b32 s{SRC+1}, s23
    s_mov_b32 s{SRC+2}, {SIZE['w2']}
    s_mul_i32 s45, s40, 5120
    s_add_u32 s45, s45, {W2F_OFF}
    s_lshl_b32 s42, s42, 5
    s_mov_b32 s43, 16
    s_mov_b32 s44, 4
    s_mov_b32 s47, 8
    s_branch {L_go}
    {L_wo}:
    s_mul_i32 s41, s40, 3277
    s_lshr_b32 s41, s41, 16            ; ct
    s_mul_i32 s42, s41, 20
    s_sub_u32 s42, s40, s42            ; ks
    s_mov_b32 s{SRC}, s20
    s_mov_b32 s{SRC+1}, s21
    s_mov_b32 s{SRC+2}, {SIZE['wo']}
    s_mul_i32 s45, s40, 5120
    s_add_u32 s45, s45, {WOF_OFF}
    s_mul_i32 s48, s42, 40
    s_mul_i32 s49, s42, 160
    s_sub_u32 s49, s49, {16*160-16}
    s_cmp_ge_u32 s42, 16
    s_cselect_b32 s42, s49, s48
    s_cselect_b32 s43, 80, 20
    s_cselect_b32 s44, 40, 4
    s_cselect_b32 s47, 20, 8
    {L_go}:
    s_mul_i32 s42, s42, 1280
    s_mul_i32 s41, s41, 160
    s_add_u32 s42, s42, s41
    s_mul_i32 s41, s43, 1280
    s_add_u32 s41, s41, s42
    v_mul_u32_u24 v1, s44, v4          ; B * bit5
    v_bfe_u32 v7, v2, 4, 1
    v_mad_u32_u24 v1, s47, v7, v1      ; + C * bit4
    v_mul_u32_u24 v7, s44, v7          ; B * bit4
    v_mad_u32_u24 v7, s43, v4, v7      ; + A * bit5
    v_bfe_u32 v{RA}, v2, 2, 2
    v_add_u32 v1, v1, v{RA}
    v_mul_u32_u24 v1, 1280, v1
    v_lshl_add_u32 v1, v6, 4, v1
    v_bfe_u32 v{RA}, v2, 3, 1
    v_mad_u32_u24 v7, s47, v{RA}, v7
    v_bfe_u32 v{RA}, v2, 1, 2
    v_add_u32 v7, v7, v{RA}
    v_mul_u32_u24 v7, 1280, v7
    v_and_b32 v6, 1, v2
    v_lshl_add_u32 v7, v6, 4, v7
    """)
    for f in range(5):
        k(f"s_add_u32 m0, s34, {slot(f) - 64*(f//2)}")
        k(f"buffer_load_dwordx4 v{7 if f == 4 else 1}, s[{SRC}:{SRC+3}], s{41 if f & 1 else 42} offen offset:{64*(f//2)} lds")
    k(f"s_branch {L_hkr} ; @seq=T")
    k(f"""
    {L_r1}:
    """)
    k.stamp(3)
    k(f"""
    s_cmp_ge_u32 s2, 164
    s_cbranch_scc1 {L_hkr} ; @both
    s_add_u32 s40, s34, {slot(0)}
    v_bfe_u32 v1, v2, 2, 2             ; r
    v_and_b32 v6, 3, v2                ; c
    s_cmp_ge_u32 s2, 96
    s_cbranch_scc1 {L_t2}
    v_lshl_add_u32 v1, v4, 3, v1
    v_lshl_add_u32 v1, v1, 6, s40
    v_bfe_u32 v7, v2, 4, 1
    v_lshl_add_u32 v1, v7, 5, v1
    v_lshl_add_u32 v1, v6, 3, v1
    """)
    for f in range(5):
        for h in range(2): k(f"ds_read_b64_tr_b16 {vr(RP+4*f+2*h,2)}, v1 offset:{slot(f) - slot(0) + 256*h}")
    k(f"""
    v_lshrrev_b32 v1, 2, v2
    v_xor_b32 v1, v1, v7
    v_and_b32 v1, 1, v1
    v_add_u32 v1, -1, v1
    v_and_b32 v{SEL}, 0x3f803f80, v1
    v_mov_b32 v{SEL+1}, v{SEL}
    v_mov_b32 v{SEL+2}, v{SEL}
    v_mov_b32 v{SEL+3}, v{SEL}
    s_lshr_b32 s40, s30, 2
    s_lshl_b32 s40, s40, 8
    s_and_b32 s41, s30, 3
    s_lshl_b32 s41, s41, 2
    s_add_u32 s40, s40, s41
    s_add_u32 s44, s44, s40
    v_and_b32 v1, 15, v2
    v_lshlrev_b32 v1, 4, v1
    v_lshl_add_u32 v{RA}, v4, 8, v1
    v_lshl_add_u32 v{RA}, v7, 11, v{RA}
    v_lshl_add_u32 v1, v7, 10, v1
    s_waitcnt lgkmcnt(0)
    """)
    for f in range(5):
        k(f"v_mfma_f32_16x16x32_bf16 {vr(CS,4)}, {vr(SEL,4)}, {vr(RP+4*f,4)}, {vr(CS,4) if f else 0}")
    k(f"""
    v_cvt_pk_bf16_f32 v{CS+1}, v{CS}, v{CS}
    v_and_b32 v{CS+2}, 0xffff0000, v{CS+1}
    v_sub_f32 v{CS+2}, v{CS}, v{CS+2}
    v_cvt_pk_bf16_f32 v{CS+1}, v{CS}, v{CS+2}
    buffer_store_dword v{CS+1}, v1, s[{SWS}:{SWS+3}], s44 offen{CSC}
    s_branch {L_st}
    {L_t2}:
    v_lshrrev_b32 v7, 4, v2            ; g
    v_lshl_add_u32 v1, v7, 3, v1
    v_lshlrev_b32 v1, 5, v1
    v_lshl_add_u32 v7, v6, 3, v1
    v_lshl_add_u32 v1, v7, 1, s40
    v_add_u32 v7, s40, v7
    v_mov_b32 v{RA}, v{GL}
    """)
    for f in range(4):
        for h in range(2): k(f"ds_read_b64_tr_b16 {vr(RP+4*f+2*h,2)}, v1 offset:{(f//2)*2048 + 8*(f&1) + 256*h}")
    for h in range(2): k(f"ds_read_b64_tr_b16 {vr(RP+16+2*h,2)}, v7 offset:{4096 + 128*h}")
    k("s_waitcnt lgkmcnt(0)")
    k(f"{L_st}:")
    for f in range(5):
        k(f"buffer_store_dwordx4 {vr(RP+4*f,4)}, v{RA}, s[{SWS}:{SWS+3}], s45 offen{RSC}")
        if f < 4: k(f"s_add_u32 s45, s45, s46"); k("s_xor_b32 s46, s46, s53")
    k.stamp(4)
    k(f"s_branch {L_hkr} ; @seq=T")
    L1 = k.lab("s1"); L2 = k.lab("s2")
    def qk1(c):
        k(f"v_mfma_f32_32x32x16_bf16 {vr(S[0],16)}, {vr(KL[0],4)}, {vr(QL[0],4)}, {c}")
        k(f"v_mfma_f32_32x32x8_bf16 {vr(S[0],16)}, {vr(KH[0],2)}, {vr(QH,2)}, {vr(S[0],16)}")
    k(f"""
    {L_slow}:
    s_mov_b32 s38, -1
    v_add_u32 v6, -1, v4
    v_and_b32 v{QH}, v{QH}, v6
    v_and_b32 v{QH+1}, v{QH+1}, v6
    v_mul_u32_u24 v{AV}, 320, v4
    v_lshl_add_u32 v{AV}, v3, 4, v{AV}
    v_mov_b32 v6, 0xff800000
    s_mov_b32 s37, s31
    s_mov_b32 s36, 0
    {L1}:
    buffer_load_dwordx2 {vr(KL[0],2)}, v{L8}, s[{SWS}:{SWS+3}], s37 offen
    buffer_load_dwordx2 {vr(KL[0]+2,2)}, v{L8}, s[{SWS}:{SWS+3}], s37 offen offset:512
    buffer_load_dwordx2 {vr(KH[0],2)}, v5, s[{SWS}:{SWS+3}], s37 offen
    s_waitcnt vmcnt(0)
    """)
    qk1(0)
    maxred(S[0], 6, False)
    k(f"""
    s_add_u32 s37, s37, {TS}
    s_add_u32 s36, s36, 1
    s_cmp_lt_u32 s36, 64
    s_cbranch_scc1 {L1}
    v_mov_b32 v7, v6
    v_permlane32_swap_b32 v6, v7
    v_max_f32 v6, v6, v7
    """)
    for i in range(16): k(f"v_sub_f32 v{NM+i}, 0, v6")
    for i in range(16): k(f"v_mov_b32 v{O+i}, 0")
    k(f"""
    s_mov_b32 s37, s31
    s_mov_b32 s36, 0
    {L2}:
    buffer_load_dwordx2 {vr(KL[0],2)}, v{L8}, s[{SWS}:{SWS+3}], s37 offen
    buffer_load_dwordx2 {vr(KL[0]+2,2)}, v{L8}, s[{SWS}:{SWS+3}], s37 offen offset:512
    buffer_load_dwordx2 {vr(KH[0],2)}, v5, s[{SWS}:{SWS+3}], s37 offen
    s_mov_b64 exec, s[50:51]
    buffer_load_dwordx4 {vr(V[0],4)}, v{AV}, s[{SWS}:{SWS+3}], s37 offen offset:1280
    buffer_load_dwordx4 {vr(V[0]+4,4)}, v{AV}, s[{SWS}:{SWS+3}], s37 offen offset:1920
    s_mov_b64 exec, -1
    s_waitcnt vmcnt(0)
    """)
    qk1(vr(NM, 16))
    exps(0, 0, 16); cvts(0, 0, 8); pv(0, 0, 0); pv(0, 0, 1)
    k(f"""
    s_add_u32 s37, s37, {TS}
    s_add_u32 s36, s36, 1
    s_cmp_lt_u32 s36, 64
    s_cbranch_scc1 {L2}
    s_branch {L_epi}
    """)
    return k
```

```python
from common import *
E = lambda n, d: int(os.environ.get(n, d))
SC = os.environ.get("SC", " sc1")
OUTSC = os.environ.get("OUTSC", " nt")
SWS = 12

def wprefetch(k, GL, npf):
    size = 4*48*5120; per = size // 128
    k(f"""
    s_and_b32 s34, s2, 1
    s_mul_i32 s34, s34, {size}
    s_lshr_b32 s35, s2, 3
    s_lshl_b32 s35, s35, 2
    s_add_u32 s35, s35, s23
    s_mul_i32 s35, s35, {per}
    s_add_u32 s34, s34, s35
    s_add_u32 s34, s34, {W2F_OFF}
    v_lshlrev_b32 v1, 3, v{GL}
    buffer_load_dword v3, v1, s[{SWS}:{SWS+3}], s34 offen
    """)

def dma(k, va, so, off): k(f"buffer_load_dwordx4 v{va}, s[{SWS}:{SWS+3}], s{so} offen{f' offset:{off}' if off else ''} lds")

def gemm16(name, nks, woff, aoff, first):
    npair = nks // 4; SLOT = 36864
    P = E("P3" if first else "P5", 4)
    k = Kern(name, 256, 512, 4 * SLOT)
    SRM = 16
    idx = 2 if first else 4
    L_end = k.lab("end"); L_c = k.lab("comp")
    a = Alloc(8)
    GL = a(); LA = a(); LB = a(); RM = a(); RM2 = a(); FM2 = a()
    RES = a(10, 2); ACC = a(20, 4); A = a(20, 4); B = [a(4, 4), a(4, 4)]
    k(f"""
    s_cmp_ge_u32 s2, 256
    s_cbranch_scc1 {L_end}
    """)
    k.stamp(0)
    k(f"""
    s_load_dwordx2 s[{SWS}:{SWS+1}], s[0:1], {ARG['ws']}
    v_lshrrev_b32 v1, 6, v0
    v_and_b32 v2, 63, v0
    s_bfe_u32 s20, s2, 0x20001         ; x>>1
    v_readfirstlane_b32 s22, v1        ; wave
    s_lshl_b32 s20, s20, 3
    s_bfe_u32 s30, s2, 0x30003
    s_add_u32 s20, s20, s30            ; rt
    s_and_b32 s21, s2, 1
    s_lshl_b32 s21, s21, 2
    s_lshr_b32 s31, s2, 6
    s_add_u32 s21, s21, s31            ; ct
    v_lshlrev_b32 v{GL}, 4, v2
    s_and_b32 s23, s22, 3
    s_lshl_b32 s20, s20, 2
    s_add_u32 s20, s20, s23            ; tile16
    s_mov_b32 s{SWS+2}, {WS_SIZE}
    s_mov_b32 s{SWS+3}, 0x00020000
    s_cmp_lt_u32 s22, 4
    s_cbranch_scc1 {L_c}
    """)
    Le = k.lab("ev"); Lo = k.lab("od"); Le2 = k.lab("ev2"); Lo2 = k.lab("od2")
    cnt = lambda c0, n: sum(5 if (c & 1) == 0 else 4 for c in range(c0, c0 + n))
    k(f"""
    s_mul_i32 s25, s20, {nks*1024}
    s_add_u32 s25, s25, {aoff}
    s_lshl_b32 s27, s23, 12
    s_add_u32 s27, s27, 20480
    s_mul_i32 s24, s21, {nks*5120}
    s_add_u32 s24, s24, {woff}
    s_mul_i32 s26, s23, 3072
    s_lshl_b32 s28, s23, 11
    s_add_u32 s28, s28, 12288
    s_add_u32 s29, s24, s28
    s_add_u32 s24, s24, s26
    s_mov_b32 s30, 0
    s_mov_b32 s33, {-3*SLOT}
    s_mov_b32 m0, s27
    """)
    k.stamp(1)
    k("s_waitcnt lgkmcnt(0)")
    k.stamp(2)
    nE = (P + 1) // 2; nO = P // 2
    k(f"s_branch {Le2}")
    k(f"{Le}:")
    k(f"s_waitcnt vmcnt({cnt(P + 1, P - 1)})")
    k("s_barrier")
    k(f"{Le2}:")
    dma(k, GL, 25, 0); dma(k, GL, 25, 1024)
    k("s_mov_b32 m0, s26")
    k(f"s_cmp_lt_u32 s30, {P-1}")
    dma(k, GL, 24, 0); dma(k, GL, 24, 1024); dma(k, GL, 24, 2048)
    k("s_mov_b32 m0, s27")
    k("s_add_u32 s24, s24, 20480")
    k(f"s_cmp_lt_u32 s30, {P-1}")
    k(f"s_cbranch_scc1 {Lo2} ; @seq={'T'*nO}N")
    k(f"s_waitcnt vmcnt({cnt(P, P - 1)})")
    k("s_barrier")
    k(f"{Lo2}:")
    dma(k, GL, 25, 2048); dma(k, GL, 25, 3072)
    k("s_mov_b32 m0, s28")
    k("s_add_u32 s30, s30, 2")
    dma(k, GL, 29, 0); dma(k, GL, 29, 1024)
    k(f"""
    s_add_u32 s29, s29, 20480
    s_add_u32 s25, s25, 4096
    s_and_b32 s31, s30, 7
    s_cselect_b32 s31, {SLOT}, s33
    s_add_u32 s27, s27, s31
    s_add_u32 s26, s26, s31
    s_add_u32 s28, s28, s31
    s_mov_b32 m0, s27
    s_cmp_lt_u32 s30, {P}
    s_cbranch_scc1 {Le2} ; @seq={'T'*(nE-1)}N
    s_cmp_lt_u32 s30, {2*npair}
    s_cbranch_scc1 {Le} ; @seq=TN
    """)
    k.stamp(3)
    for i in range(P):
        k(f"s_waitcnt vmcnt({cnt(2*npair - P + i + 1, P - 1 - i)})")
        k("s_barrier")
    k.end(SWS, idx)
    k(f"""
    {L_c}:
    s_load_dwordx2 s[{SRM}:{SRM+1}], s[0:1], {ARG['x' if first else 'out']}
    s_mov_b32 s{SRM+2}, {SIZE['x']}
    s_mov_b32 s{SRM+3}, 0x00020000
    v_and_b32 v3, 15, v2               ; n
    v_lshrrev_b32 v4, 4, v2            ; g
    v_mul_u32_u24 v{RM2}, 1280, v3
    v_lshl_add_u32 v{RM}, v4, 4, v{RM2}
    v_lshl_add_u32 v{RM2}, v4, 3, v{RM2}
    v_lshrrev_b32 v1, 1, v4
    v_and_b32 v5, 1, v4
    v_lshlrev_b32 v{FM2}, 4, v3
    v_lshl_add_u32 v{FM2}, v1, 8, v{FM2}
    v_lshl_add_u32 v{FM2}, v5, 3, v{FM2}
    s_mul_i32 s26, s20, {16*1280}
    s_mul_i32 s28, s21, 2560
    s_mul_i32 s29, s20, {HFS}
    s_add_u32 s28, s28, s29
    s_add_u32 s28, s28, {HF_OFF}
    s_mul_i32 s29, s21, 160
    s_add_u32 s26, s26, s29
    s_waitcnt lgkmcnt(0)
    """)
    def rw(op, rm):
        sc = (SC if first else OUTSC) if op == "store" else ""
        if rm:
            k(f"buffer_{op}_dwordx4 v[{RES}:{RES+3}], v{RM}, s[{SRM}:{SRM+3}], s26 offen{sc}")
            k(f"buffer_{op}_dwordx4 v[{RES+4}:{RES+7}], v{RM}, s[{SRM}:{SRM+3}], s26 offen offset:64{sc}")
            k(f"buffer_{op}_dwordx2 v[{RES+8}:{RES+9}], v{RM2}, s[{SRM}:{SRM+3}], s26 offen offset:128{sc}")
        else:
            k(f"buffer_{op}_dwordx4 v[{RES}:{RES+3}], v{GL}, s[{SWS}:{SWS+3}], s28 offen{sc}")
            k(f"buffer_{op}_dwordx4 v[{RES+4}:{RES+7}], v{GL}, s[{SWS}:{SWS+3}], s28 offen offset:1024{sc}")
            k(f"buffer_{op}_dwordx2 v[{RES+8}:{RES+9}], v{FM2}, s[{SWS}:{SWS+3}], s28 offen offset:2048{sc}")
    rw("load", first)
    k(f"""
    v_mov_b32 v{LA}, v{GL}
    s_lshl_b32 s25, s23, 12
    s_add_u32 s25, s25, 20480
    v_lshl_add_u32 v{LB}, v1, 9, s25
    v_lshl_add_u32 v{LB}, v5, 7, v{LB}
    v_lshl_add_u32 v{LB}, v3, 3, v{LB}
    s_mov_b32 s27, 0
    s_mov_b32 s33, {-3*SLOT}
    s_waitcnt vmcnt(0)
    """)
    for i in range(10):
        k(f"v_lshlrev_b32 v{ACC+2*i}, 16, v{RES+i}")
        k(f"v_and_b32 v{ACC+2*i+1}, 0xffff0000, v{RES+i}")
    def rdb(r, off):
        k(f"ds_read_b64 {vr(r,2)}, v{LB} offset:{off}")
        k(f"ds_read_b64 {vr(r+2,2)}, v{LB} offset:{off+256}")
    L = k.lab("loop"); Lx = k.lab("x")
    k.stamp(1)
    k("s_barrier")
    k.stamp(2)
    rdb(B[0], 0)
    for j in range(5): k(f"ds_read_b128 {vr(A+4*j,4)}, v{LA} offset:{j*1024}")
    k(f"{L}:")
    mf = lambda j, rb: k(f"v_mfma_f32_16x16x32_bf16 {vr(ACC+4*j,4)}, {vr(A+4*j,4)}, {vr(rb,4)}, {vr(ACC+4*j,4)}")
    for s in range(4):
        n = (s + 1) & 3
        if s == 1: k("s_barrier")
        if s == 2:
            k(f"""
            s_add_u32 s27, s27, 1
            s_and_b32 s25, s27, 3
            s_cselect_b32 s25, {SLOT}, s33
            s_cmp_eq_u32 s27, {npair}
            """)
        if s == 3:
            k(f"""
            s_cbranch_scc1 {Lx} ; @seq=NT
            v_add_u32 v{LA}, s25, v{LA}
            v_add_u32 v{LB}, s25, v{LB}
            s_barrier
            """)
        rdb(B[n & 1], n * 1024)
        for j in range(5):
            k(f"s_waitcnt lgkmcnt(6)")
            mf(j, B[s & 1])
            k(f"ds_read_b128 {vr(A+4*j,4)}, v{LA} offset:{n*5120 + j*1024}")
    k(f"s_branch {L}")
    k(f"{Lx}:")
    k.stamp(6)
    for j in range(5):
        k(f"s_waitcnt lgkmcnt({4-j})")
        mf(j, B[1])
    for i in range(10):
        k(f"v_cvt_pk_bf16_f32 v{RES+i}, v{ACC+2*i}, v{ACC+2*i+1}")
    rw("store", not first)
    if first:
        k(f"""
        v_mov_b32 v5, 0x3f803f80
        v_mov_b32 v6, 0
        v_mov_b32 v7, 0
        """)
        for i in range(10):
            k(f"v_dot2_f32_bf16 v6, v{RES+i}, v5, v6")
            k(f"v_dot2_f32_bf16 v7, v{RES+i}, v{RES+i}, v7")
        k(f"""
        s_lshl_b32 s29, s21, 14
        s_lshl_b32 s20, s20, 7
        s_add_u32 s29, s29, s20
        s_add_u32 s29, s29, {ST_OFF}
        v_lshrrev_b32 v1, 5, v2
        v_lshlrev_b32 v1, 2, v1
        v_lshl_add_u32 v1, v3, 3, v1
        v_permlane32_swap_b32 v6, v7
        v_add_f32 v6, v6, v7
        v_mov_b32 v7, v6
        v_permlane16_swap_b32 v6, v7
        v_add_f32 v6, v6, v7
        buffer_store_dword v6, v1, s[{SWS}:{SWS+3}], s29 offen sc1
        """)
    k.end(SWS, idx)
    k(f"{L_end}:")
    k("s_endpgm")
    return k

def build_k4():
    SLOT = 20480
    PRE = E("PRE4", 3); AH = E("AH4", 6); STG = E("STG", 1)
    k = Kern("ffn1_kernel", 256, 512, 8 * SLOT)
    L_end = k.lab("end"); L_c = k.lab("comp")
    a = Alloc(8)
    GL = a(); LA = a(); LB = a(); OA = a(); C1 = a(4, 4); I2 = a(4, 4)
    ACC = a(96, 4); A = [a(24, 4), a(24, 4)]; B = [a(16, 4) for _ in range(4)]; X = a(16, 4); PD = a(2); PA = a(); PS = a()
    LP = E("LP4", 0); LC = E("LC4", 4); LI = E("LI4", -1)
    k(f"""
    s_cmp_ge_u32 s2, 256
    s_cbranch_scc1 {L_end}
    """)
    k.stamp(0)
    k(f"""
    s_load_dwordx2 s[{SWS}:{SWS+1}], s[0:1], {ARG['ws']}
    v_lshrrev_b32 v1, 6, v0
    v_and_b32 v2, 63, v0
    s_bfe_u32 s20, s2, 0x20001
    v_readfirstlane_b32 s22, v1        ; wave
    s_lshl_b32 s20, s20, 2
    s_bfe_u32 s30, s2, 0x20003
    s_add_u32 s20, s20, s30
    s_and_b32 s21, s2, 1
    s_lshl_b32 s21, s21, 3
    s_lshr_b32 s31, s2, 5
    s_add_u32 s21, s21, s31            ; ct
    v_lshlrev_b32 v{GL}, 4, v2
    s_and_b32 s23, s22, 3
    s_mul_i32 s24, s21, {W13S}
    s_add_u32 s24, s24, {W13F_OFF}
    s_mov_b32 s{SWS+2}, {WS_SIZE}
    s_mov_b32 s{SWS+3}, 0x00020000
    s_cmp_lt_u32 s22, 4
    s_cbranch_scc1 {L_c}
    """)
    Lp = k.lab("iss"); Lw = k.lab("w")
    k(f"""
    s_lshl_b32 s25, s20, 2
    s_add_u32 s25, s25, s23
    s_mul_i32 s25, s25, {2*HFS}
    s_add_u32 s25, s25, {HF_OFF}
    s_lshl_b32 s27, s23, 11
    s_add_u32 s27, s27, 12288
    s_mul_i32 s26, s23, 3072
    s_add_u32 s24, s24, s26
    s_add_u32 s24, s24, 6144
    v_add_u32 v{LA}, {HFS-1024}, v{GL}
    s_mov_b32 s30, 0
    s_mov_b32 s33, {-7*SLOT}
    s_mov_b32 m0, s27
    """)
    k.stamp(1)
    k("s_waitcnt lgkmcnt(0)")
    k.stamp(2)
    if E("UNR4", 1):
        BO = E("BO4", 0); RMP = E("RMP4", 10)
        pos = {}
        for b in range(20): pos.setdefault(min(5 * PRE + RMP * b, 5 * (AH + b) - BO, 101), []).append(b)
        n = 0
        def one(va, so, off):
            nonlocal n
            dma(k, va, so, off); n += 1
        def bars(extra=0):
            for b in pos.get(n + (n == 100 and extra is not None and 0), []):
                k(f"s_waitcnt vmcnt({n - 5*(b+1)})"); k("s_barrier")
        k("s_sub_u32 s28, s26, s27"); k(f"s_sub_u32 s29, {SLOT}, s28"); k(f"s_sub_u32 s30, {-7*SLOT}, s28")
        for c in range(20):
            one(GL, 25, 0); bars()
            one(LA, 25, 1024)
            k("s_add_u32 m0, m0, s28"); k("s_addk_i32 s25, 1024"); bars()
            one(GL, 24, 0); bars(); one(GL, 24, 1024); bars(); one(GL, 24, 2048)
            if c < 19: k(f"s_add_u32 m0, m0, s{30 if c % 8 == 7 else 29}"); k("s_addk_i32 s24, 12288")
            bars()
        k.stamp(3)
        npf = 0
        if E("PF4", 1): wprefetch(k, GL, 0); npf = 1
        for b in pos.get(101, []):
            k(f"s_waitcnt vmcnt({5*(19-b)+npf})")
            k("s_barrier")
    else:
        after = {}; b = 0
        while True:
            c = min(PRE + 2 * b, AH + b)
            if c > 20: break
            after[c] = b; b += 1
        nb = b
        mask = sum(1 << c for c in range(1, 21) if c not in after)
        seq = "".join("N" if c in after else "T" for c in range(1, 21))
        ramp = [c for c in sorted(after) if c - after[c] < AH]
        k(f"{Lp}:")
        if E("ND4", 0): k(f"s_cmp_ge_u32 s30, 3"); k(f"s_cselect_b32 s{SWS+2}, 0, s{SWS+2}")
        dma(k, GL, 25, 0); dma(k, LA, 25, 1024)
        k("s_mov_b32 m0, s26")
        k("s_add_u32 s30, s30, 1")
        dma(k, GL, 24, 0); dma(k, GL, 24, 1024); dma(k, GL, 24, 2048)
        k(f"""
        s_add_u32 s24, s24, 12288
        s_add_u32 s25, s25, 1024
        s_and_b32 s31, s30, 7
        s_cselect_b32 s31, {SLOT}, s33
        s_add_u32 s27, s27, s31
        s_add_u32 s26, s26, s31
        s_mov_b32 m0, s27
        s_bitcmp1_b32 {hex(mask)}, s30
        s_cbranch_scc1 {Lp} ; @seq={seq}
        s_waitcnt vmcnt({5*(AH-1)})
        """)
        for i, c in enumerate(reversed(ramp)):
            n = len(ramp) - i
            k(f"s_cmp_gt_u32 s30, {c}")
            k(f"s_cbranch_scc1 {Lw} ; @seq={'N'*n}T")
            k(f"s_waitcnt vmcnt({5*(c - after[c] - 1)})")
        k(f"""
        {Lw}:
        s_barrier
        s_cmp_lt_u32 s30, 20
        s_cbranch_scc1 {Lp} ; @seq={'T'*(nb-1)}N
        """)
        k.stamp(3)
        npf = 0
        if E("PF4", 1): wprefetch(k, GL, 0); npf = 1
        for c in range(nb, 20):
            k(f"s_waitcnt vmcnt({5*(19-c)+npf})")
            k("s_barrier")
    k.end(SWS, 3)
    ST = B[2]; CSF = A[1]; MN = B[1]
    k(f"""
    {L_c}:
    s_mul_i32 s40, s30, 3072
    s_add_u32 s40, s40, s24
    s_lshl_b32 s41, s20, 3
    s_add_u32 s41, s41, s31
    s_lshr_b32 s32, s23, 1             ; wr
    s_and_b32 s33, s23, 1              ; wc
    v_and_b32 v3, 15, v2               ; n
    v_lshrrev_b32 v4, 4, v2            ; g
    v_lshlrev_b32 v1, 14, v4
    v_lshl_add_u32 v1, v3, 3, v1
    s_lshl_b32 s20, s20, 1
    s_add_u32 s20, s20, s32
    s_lshl_b32 s25, s20, 9
    s_add_u32 s25, s25, {ST_OFF}
    s_add_u32 s26, s25, 65536
    s_mul_i32 s27, s33, 3072
    s_add_u32 s24, s24, s27
    v_and_b32 v5, 0x1ff, v{GL}
    s_waitcnt lgkmcnt(0)
    """)
    for t in range(4):
        for h in range(2): k(f"buffer_load_dwordx2 {vr(ST+4*t+2*h,2)}, v1, s[{SWS}:{SWS+3}], s{25+h} offen offset:{t*128}")
    for j in range(6): k(f"buffer_load_dwordx4 {vr(CSF+4*j,4)}, v5, s[{SWS}:{SWS+3}], s24 offen offset:{j*512}")
    npf = 0
    if LP:
        k(f"""
        v_and_b32 v6, 31, v2
        v_cmp_gt_u32 vcc, 24, v6
        s_add_u32 s40, s40, 6144
        s_mul_i32 s41, s41, {HFS}
        s_add_u32 s41, s41, {HF_OFF - 24*128}
        v_mov_b32 v{PA}, s41
        v_mov_b32 v7, s40
        v_cndmask_b32 v{PA}, v{PA}, v7, vcc
        v_lshl_add_u32 v{PA}, v6, 7, v{PA}
        v_mov_b32 v{PS}, 1024
        v_mov_b32 v7, 12288
        v_cndmask_b32 v{PS}, v{PS}, v7, vcc
        v_lshrrev_b32 v6, 5, v2
        s_lshl_b32 s40, s23, 1
        s_add_u32 s40, s40, {LC}
        v_add_u32 v6, s40, v6
        v_mad_u32_u24 v{PA}, v6, v{PS}, v{PA}
        buffer_load_dword v{PD}, v{PA}, s[{SWS}:{SWS+3}], 0 offen
        v_lshl_add_u32 v{PA}, v{PS}, 3, v{PA}
        """)
        npf = 1
        if LI < 0: k(f"buffer_load_dword v{PD+1}, v{PA}, s[{SWS}:{SWS+3}], 0 offen"); npf = 2
    k(f"""
    s_lshl_b32 s27, s27, 1
    v_add_u32 v{LA}, s27, v{GL}
    s_lshl_b32 s25, s32, 12
    s_add_u32 s25, s25, 12288
    v_add_u32 v{LB}, s25, v{GL}
    v_lshlrev_b32 v{OA}, 3, v2
    s_mul_i32 s36, s20, {4*96*512}
    s_lshl_b32 s27, s21, 1
    s_add_u32 s27, s27, s33
    s_mul_i32 s27, s27, 1536
    s_add_u32 s36, s36, s27
    s_add_u32 s36, s36, {HH_OFF}
    s_add_u32 s37, s36, {96*512}
    s_add_u32 s38, s36, {2*96*512}
    s_add_u32 s39, s36, {3*96*512}
    v_cmp_lt_u32 vcc, 31, v2
    v_add_u32 v{GL}, 4096, v{LA}
    s_mov_b32 s27, 0
    s_mov_b32 s33, {-6*SLOT}
    s_waitcnt vmcnt({6+npf})
    """)
    for t in range(4): k(f"v_pk_add_f32 {vr(ST+4*t,2)}, {vr(ST+4*t,2)}, {vr(ST+4*t+2,2)}")
    for sw in ("v_permlane32_swap_b32", "v_permlane16_swap_b32"):
        for t in range(4): k(f"v_mov_b32 v{ST+4*t+2}, v{ST+4*t}"); k(f"v_mov_b32 v{ST+4*t+3}, v{ST+4*t+1}")
        for t in range(4): k(f"{sw} v{ST+4*t}, v{ST+4*t+2}"); k(f"{sw} v{ST+4*t+1}, v{ST+4*t+3}")
        for t in range(4): k(f"v_pk_add_f32 {vr(ST+4*t,2)}, {vr(ST+4*t,2)}, {vr(ST+4*t+2,2)}")
    steps = ["v_mul_f32 v{s}, %s, v{s}" % f32(-1.0/640),
             "v_mul_f32 v{q}, %s, v{q}" % f32(1.0/640),
             "v_fma_f32 v{q}, -v{s}, v{s}, v{q}",
             "v_cvt_pk_bf16_f32 v{m}, v{s}, v{s}",
             "v_max_f32 v{q}, 0, v{q}",
             "v_and_b32 v{u}, 0xffff0000, v{m}",
             "v_add_f32 v{i}, %s, v{q}" % f32(1e-5),
             "v_sub_f32 v{u}, v{s}, v{u}",
             "v_rsq_f32 v{c}, v{i}",
             "v_cvt_pk_bf16_f32 v{u}, v{u}, v{u}",
             "v_cndmask_b32 v{m}, v{m}, v{u}, vcc",
             "v_mul_f32 v{c}, %s, v{c}" % f32(-LOG2E),
             "v_mov_b32 v{m1}, v{m}", "v_mov_b32 v{m2}, v{m}", "v_mov_b32 v{m3}, v{m}"]
    for st in steps:
        for t in range(4): k(st.format(s=ST+4*t, q=ST+4*t+1, u=ST+4*t+2, m=MN+4*t, m1=MN+4*t+1, m2=MN+4*t+2, m3=MN+4*t+3, i=I2+t, c=C1+t))
    acc = lambda j, t: ACC + 16 * j + 4 * t
    k(f"s_waitcnt vmcnt({npf})")
    for j in range(6):
        for t in range(4): k(f"v_mfma_f32_16x16x32_bf16 {vr(acc(j,t),4)}, {vr(CSF+4*j,4)}, {vr(MN+4*t,4)}, 0")
    def mf(j, t, ra, rb): k(f"v_mfma_f32_16x16x32_bf16 {vr(acc(j,t),4)}, {vr(ra,4)}, {vr(rb+4*t,4)}, {vr(acc(j,t),4)}")
    rda = lambda r, j, off: f"ds_read_b128 {vr(r,4)}, v{LA} offset:{off + j*1024}" if off + j*1024 < 65536 else f"ds_read_b128 {vr(r,4)}, v{GL} offset:{off + j*1024 - 4096}"
    rdb = lambda r, t, off: f"ds_read_b128 {vr(r+4*t,4)}, v{LB} offset:{off + t*1024}"
    def rdset(s, off): return [rda(A[s], 0, off)] + [rdb(B[s], t, off) for t in range(4)] + [rda(A[s] + 4*j, j, off) for j in range(1, 6)]
    L = k.lab("loop")
    k.stamp(1)
    k("s_barrier")
    k.stamp(2)
    for r in rdset(0, 0): k(r)
    BP = E("BP", 1); RSP = E("RSP", 1)
    def phase(s, fill, first_wait=True):
        for i in range(24):
            j, t = divmod(i, 4)
            if i == 0 and first_wait: k("s_waitcnt lgkmcnt(0)")
            if not (E("NOMF", 0) and i % E("NOMF", 0)): mf(j, t, A[s] + 4*j, B[s])
            for x in fill.get(i, []): k(x)
    def fills(s, off, pre=()):
        f = {BP - 1: list(pre) + ["s_barrier"]}
        for n, r in enumerate(rdset(s, off)[:E("NRD", 10)]): f.setdefault(BP - 1 + n * RSP, []).append(r)
        return f
    nit = 8 if STG else 9
    k(f"{L}:")
    f = fills(1, SLOT)
    f.setdefault(20, []).extend(["s_add_u32 s27, s27, 1", "s_and_b32 s25, s27, 3", f"s_cselect_b32 s25, {2*SLOT}, s33"])
    f.setdefault(21, []).append(f"v_add_u32 v{LA}, s25, v{LA}")
    f.setdefault(22, []).extend([f"v_add_u32 v{LB}, s25, v{LB}", f"s_cmp_lt_u32 s27, {nit}"])
    if LP and LI >= 0:
        Lq = k.lab("q")
        f.setdefault(12, []).extend([f"s_cmp_lg_u32 s27, {LI}", f"s_cbranch_scc1 {Lq} ; @seq=NT", f"buffer_load_dword v{PD+1}, v{PA}, s[{SWS}:{SWS+3}], 0 offen", f"{Lq}:"])
    phase(0, f)
    phase(1, fills(0, 0))
    k(f"s_cbranch_scc1 {L}")
    k.stamp(6)
    def epi(ft, pk):
        o = []
        G = lambda t: acc(2*ft, t); U = lambda t: acc(2*ft + 1, t)
        half = lambda ts: None
        for ts in ((0, 1), (2, 3)):
            if pk:
                sel = lambda t: f"op_sel:[0,{t&1}] op_sel_hi:[1,{t&1}]"
                for t in ts:
                    for i in (0, 2): o.append(f"v_pk_mul_f32 {vr(U(t)+i,2)}, {vr(U(t)+i,2)}, {vr(G(t)+i,2)}")
                for t in ts:
                    for i in (0, 2): o.append(f"v_pk_mul_f32 {vr(G(t)+i,2)}, {vr(G(t)+i,2)}, {vr(C1+(t&2),2)} {sel(t)}")
            else:
                for t in ts:
                    for i in range(4): o.append(f"v_mul_f32 v{U(t)+i}, v{U(t)+i}, v{G(t)+i}"); o.append(f"v_mul_f32 v{G(t)+i}, v{G(t)+i}, v{C1+t}")
            for t in ts:
                for i in range(4): o.append(f"v_exp_f32 v{G(t)+i}, v{G(t)+i}")
            for t in ts:
                if pk:
                    for i in (0, 2): o.append(f"v_pk_fma_f32 {vr(G(t)+i,2)}, {vr(G(t)+i,2)}, {vr(I2+(t&2),2)}, {vr(I2+(t&2),2)} op_sel:[0,{t&1},{t&1}] op_sel_hi:[1,{t&1},{t&1}]")
                else:
                    for i in range(4): o.append(f"v_fma_f32 v{G(t)+i}, v{G(t)+i}, v{I2+t}, v{I2+t}")
            for t in ts:
                for i in range(4): o.append(f"v_rcp_f32 v{G(t)+i}, v{G(t)+i}")
            for t in ts:
                if pk:
                    for i in (0, 2): o.append(f"v_pk_mul_f32 {vr(U(t)+i,2)}, {vr(U(t)+i,2)}, {vr(G(t)+i,2)}")
                else:
                    for i in range(4): o.append(f"v_mul_f32 v{U(t)+i}, v{U(t)+i}, v{G(t)+i}")
            for t in ts:
                for i in range(2): o.append(f"v_cvt_pk_bf16_f32 v{G(t)+i}, v{U(t)+2*i}, v{U(t)+2*i+1}")
                o.append(f"buffer_store_dwordx2 {vr(G(t),2)}, v{OA}, s[{SWS}:{SWS+3}], s{36+t} offen offset:{ft*512}{SC}")
        return o
    if not STG:
        phase(0, fills(1, SLOT))
        phase(1, {})
        for ft in range(3):
            for x in epi(ft, True): k(x)
    else:
        AR = {(0, 0): A[0], (1, 0): A[0] + 8, (2, 0): A[0] + 16, (0, 1): A[1], (1, 1): A[1] + 8, (2, 1): A[1] + 16,
              (0, 2): X, (0, 3): X + 8, (1, 2): A[0], (1, 3): A[1], (2, 2): X, (2, 3): X + 8}
        ra = lambda ft, c: [rda(AR[ft, c] + 4*h, 2*ft + h, c * SLOT) for h in range(2)]
        rb = lambda c: [rdb(B[c], t, c * SLOT) for t in range(4)]
        def blk(ft, c):
            return [f"v_mfma_f32_16x16x32_bf16 {vr(acc(2*ft+h,t),4)}, {vr(AR[ft,c]+4*h,4)}, {vr(B[c]+4*t,4)}, {vr(acc(2*ft+h,t),4)}" for h in range(2) for t in range(4)]
        def weave(mm, fill):
            for i, m in enumerate(mm):
                k(m)
                for x in fill.get(i, []): k(x)
        def spread(items, lo, hi):
            f = {}
            for n, x in enumerate(items): f.setdefault(lo + n * (hi - lo) // len(items), []).append(x)
            return f
        k("s_waitcnt lgkmcnt(0)")
        weave(blk(0, 0) + blk(1, 0), spread(["s_barrier"] + rb(1) + ra(0, 1) + ["s_barrier"] + rb(2) + ra(0, 2) + ["s_barrier"] + rb(3) + ra(0, 3), 0, 16))
        k("s_waitcnt lgkmcnt(12)")
        weave(blk(0, 1), spread(ra(1, 1) + ra(1, 2), 0, 8))
        k("s_waitcnt lgkmcnt(10)")
        weave(blk(0, 2), spread(ra(1, 3) + ra(2, 1), 0, 8))
        k("s_waitcnt lgkmcnt(8)")
        weave(blk(0, 3), spread(ra(2, 2), 0, 8))
        k("s_waitcnt lgkmcnt(2)")
        def wcost(x): return 8 if x.startswith(("v_exp", "v_rcp")) else 4
        def mix(mm, ep, skip, extra={}):
            tot = sum(wcost(x) for x in ep); n = len(mm) - skip
            for i in range(skip):
                k(mm[i])
                for x in extra.get(i, []): k(x)
            done = 0; i = skip
            for x in ep:
                k(x); done += wcost(x)
                while i < len(mm) and done * n >= (i - skip + 1) * tot - tot // 2 * 0: k(mm[i]); i += 1
            assert i == len(mm)
        m1 = blk(1, 1) + blk(1, 2) + blk(1, 3); m2 = blk(2, 0) + blk(2, 1) + blk(2, 2) + blk(2, 3)
        mix(m1 + m2[:4], epi(0, False), 2, {0: ra(2, 3)})
        k("s_waitcnt lgkmcnt(0)")
        mix(m2[4:], epi(1, False), 0)
        for x in epi(2, True): k(x)
    k.end(SWS, 3)
    k(f"{L_end}:")
    k("s_endpgm")
    return k

def build_k345():
    return [gemm16("oproj_kernel", 20, WOF_OFF, OF_OFF, True), build_k4(), gemm16("ffn2_kernel", 48, W2F_OFF, HH_OFF, False)]
```

```python
from common import *

def build_k1():
    k = Kern("qkv_kernel", 240, 512, 4 * 32768 + 2048)
    SX, SW, SWS = 12, 16, 20
    STAT = 4 * 32768
    L_end = k.lab("end"); L_help = k.lab("help")
    k(f"""
    s_cmp_ge_u32 s2, 240
    s_cbranch_scc1 {L_end}
    """)
    k.stamp(0)
    load_srds(k, [("x", SX), ("wqkv", SW), ("ws", SWS)])
    k(f"""
    s_and_b32 s27, s2, 7
    s_lshr_b32 s25, s2, 3        ; j = 0..29
    s_lshl_b32 s24, s27, 1
    s_cmp_ge_u32 s25, 15
    s_cselect_b32 s27, 15, 0
    s_cselect_b32 s28, 1, 0
    s_sub_u32 s25, s25, s27      ; ct
    s_add_u32 s24, s24, s28      ; rt
    v_lshrrev_b32 v1, 6, v0
    v_and_b32 v2, 63, v0         ; lane
    v_readfirstlane_b32 s26, v1  ; wave
    v_and_b32 v3, 31, v2         ; m
    v_lshrrev_b32 v4, 5, v2      ; hf
    v_bfe_u32 v5, v3, 1, 3
    v_xor_b32 v5, v5, v4
    v_lshlrev_b32 v5, 4, v5
    v_lshl_add_u32 v5, v3, 7, v5
    s_cmp_ge_u32 s26, 4
    s_cbranch_scc1 {L_help}
    """)
    PF = int(os.environ.get("PF", "0"))
    if PF:
        k(f"""
        s_lshr_b32 s40, s2, 3
        s_lshl_b32 s40, s40, 13       ; j*8192
        v_lshlrev_b32 v6, 7, v2
        s_mul_i32 s41, s26, 245760
        s_add_u32 s41, s41, s40
        s_add_u32 s41, s41, {3*245760}
        s_add_u32 s42, s41, {4*245760}
        s_and_b32 s43, s2, 7
        s_mul_i32 s43, s43, 327680
        s_add_u32 s43, s43, s40
        s_add_u32 s44, s43, 245760
        s_cmp_ge_u32 s40, {10*8192}
        s_cselect_b32 s44, s43, s44
        s_cmp_eq_u32 s26, 3
        s_cselect_b32 s43, s43, s44
        s_waitcnt lgkmcnt(0)
        buffer_load_dword v145, v6, s[{SW}:{SW+3}], s41 offen
        s_cmp_lt_u32 s26, 2
        s_cbranch_scc1 {L_end}_pf
        buffer_load_dword v146, v6, s[{SX}:{SX+3}], s43 offen
        {L_end}_pf:
        buffer_load_dword v147, v6, s[{SW}:{SW+3}], s42 offen
        """)
    code_prefetch(k, 26, 144)
    a = Alloc(8)
    XA = a(4); WA = a(2); SEL = a(4); CS = a(4); OFF = a(8)
    FB = [a(16, 4), a(16, 4)]
    ACC = a(64, 4)
    T0 = FB[0]
    k(f"""
    s_lshr_b32 s27, s26, 1       ; wr
    s_and_b32 s28, s26, 1        ; wc
    s_lshl_b32 s29, s27, 13
    v_add_u32 v{XA}, s29, v5
    v_xor_b32 v{XA+1}, 32, v{XA}
    v_xor_b32 v{XA+2}, 64, v{XA}
    v_xor_b32 v{XA+3}, 0x60, v{XA}
    v_bfe_u32 v6, v2, 2, 2       ; r
    v_lshl_add_u32 v7, v4, 3, v6 ; row
    v_lshlrev_b32 v7, 8, v7
    v_bfe_u32 v1, v2, 4, 1
    v_lshl_add_u32 v7, v1, 5, v7
    v_and_b32 v1, 3, v2
    v_lshl_add_u32 v7, v1, 3, v7
    v_add_u32 v7, 16384, v7
    s_lshl_b32 s30, s28, 1
    s_add_u32 s30, s30, s27      ; n0
    s_xor_b32 s31, s30, 1        ; n1
    v_xor_b32 v1, s30, v6
    v_lshl_add_u32 v{WA}, v1, 6, v7
    v_xor_b32 v{WA+1}, 64, v{WA}
    ; selector
    v_lshrrev_b32 v1, 2, v2
    v_lshrrev_b32 v6, 4, v2
    v_xor_b32 v1, v1, v6
    v_and_b32 v1, 1, v1
    v_add_u32 v1, -1, v1
    v_and_b32 v{SEL}, 0x3f803f80, v1
    v_mov_b32 v{SEL+1}, v{SEL}
    v_mov_b32 v{SEL+2}, v{SEL}
    v_mov_b32 v{SEL+3}, v{SEL}
    """)
    for i in range(4): k(f"v_mov_b32 v{CS+i}, 0")
    for i in range(64): k(f"v_mov_b32 v{ACC+i}, 0")
    L_V = k.lab("v")
    k(f"""
    s_lshl_b32 s32, s24, 2
    s_lshl_b32 s33, s27, 1
    s_add_u32 s32, s32, s33
    s_mul_i32 s32, s32, {TS}
    s_cmp_ge_u32 s25, 10
    s_cbranch_scc1 {L_V}
    """)
    def reads(buf, off, s):
        b = FB[buf]
        if os.environ.get("NORD"): return
        k(f"ds_read_b64_tr_b16 v[{b+8}:{b+9}], v{WA} offset:{off + s*4096}")
        k(f"ds_read_b64_tr_b16 v[{b+10}:{b+11}], v{WA} offset:{off + s*4096 + 1024}")
        k(f"ds_read_b128 v[{b}:{b+3}], v{XA+s} offset:{off}")
        k(f"ds_read_b128 v[{b+4}:{b+7}], v{XA+s} offset:{off + 4096}")
        k(f"ds_read_b64_tr_b16 v[{b+12}:{b+13}], v{WA+1} offset:{off + s*4096}")
        k(f"ds_read_b64_tr_b16 v[{b+14}:{b+15}], v{WA+1} offset:{off + s*4096 + 1024}")
    def acc(ts, ns): return ACC + (ts * 2 + ns) * 16
    def mfmas(buf, isv):
        b = FB[buf]
        if os.environ.get("NOMF"): return
        k(f"v_mfma_f32_16x16x32_bf16 v[{CS}:{CS+3}], v[{SEL}:{SEL+3}], v[{b+8}:{b+11}], v[{CS}:{CS+3}]")
        for ns in range(2):
            for ts in range(2):
                x = vr(b + 4 * ts, 4); w = vr(b + 8 + 4 * ns, 4); c = vr(acc(ts, ns), 16)
                k(f"v_mfma_f32_32x32x16_bf16 {c}, {x if isv else w}, {w if isv else x}, {c}")
    def mainloop(isv):
        L = k.lab("loop")
        k("s_mov_b32 s34, 5")
        k("s_waitcnt lgkmcnt(0)")
        k.stamp(1)
        k("s_barrier")
        k.stamp(2)
        reads(0, 0, 0)
        k(f"{L}:")
        for half in range(2):
            for s in range(4):
                if s < 3:
                    reads((s + 1) & 1, half * 32768, s + 1)
                    k("s_waitcnt lgkmcnt(6)")
                else:
                    k("s_waitcnt lgkmcnt(0)")
                    k("s_barrier")
                    if half == 1:
                        for r in list(range(XA, XA + 4)) + [WA, WA + 1]: k(f"v_xor_b32 v{r}, 0x10000, v{r}")
                    reads(0, (1 - half) * 32768, 0)
                mfmas(s & 1, isv)
        k(f"""
        s_sub_u32 s34, s34, 1
        s_cmp_lg_u32 s34, 0
        s_cbranch_scc1 {L}
        """)
        k.stamp(3)
        k(f"""
        s_waitcnt lgkmcnt(0)
        v_cvt_pk_bf16_f32 v{T0}, v{CS}, v{CS}
        v_and_b32 v{T0+2}, 0xffff0000, v{T0}
        v_sub_f32 v{T0+2}, v{CS}, v{T0+2}
        v_cvt_pk_bf16_f32 v{T0+1}, v{T0+2}, v{T0+2}
        s_lshl_b32 s35, s30, 8
        v_lshl_add_u32 v1, v3, 3, s35
        ds_write_b64 v1, v[{T0}:{T0+1}] offset:0
        """.replace("ds_write_b64 v1,", f"v_add_u32 v1, {STAT+1024}, v1\nds_write_b64 v1,"))
        k(f"""
        v_xor_b32 v6, 256, v1
        s_lshl_b32 s35, s27, 8
        v_lshl_add_u32 v7, v3, 2, s35
        v_add_u32 v7, {STAT}, v7
        v_add_u32 v4, -1, v4          ; hf==0 ? ~0 : 0
        s_waitcnt lgkmcnt(0)
        s_barrier
        ds_read_b64 v[{T0+2}:{T0+3}], v6
        ds_read_b32 v{T0+4}, v7
        ds_read_b32 v{T0+6}, v7 offset:128
        """)
    def ext_mfma(isv, nwait):
        k(f"""
        v_and_b32 v{T0}, v{T0}, v4
        v_and_b32 v{T0+1}, v{T0+1}, v4
        s_waitcnt lgkmcnt({nwait})
        v_and_b32 v{T0+2}, v{T0+2}, v4
        v_and_b32 v{T0+3}, v{T0+3}, v4
        v_mov_b32 v{T0+5}, v{T0+4}
        v_mov_b32 v{T0+7}, v{T0+6}
        """)
        for ns in range(2):
            for ts in range(2):
                x = vr(T0 + 4 + 2 * ts, 2); w = vr(T0 + 2 * ns, 2); c = vr(acc(ts, ns), 16)
                k(f"v_mfma_f32_32x32x8_bf16 {c}, {x if isv else w}, {w if isv else x}, {c}")
    k(f"""
    s_cmp_ge_u32 s25, 5
    s_cselect_b32 s33, 5, 0
    s_cselect_b32 s36, 0, {Q_OFF}
    s_cselect_b32 s37, 1.0, {f32(LOG2E * 20 ** -0.5)}
    s_sub_u32 s33, s25, s33
    s_add_u32 s32, s32, s36
    s_lshl_b32 s33, s33, 5       ; (ct%5)*32
    """)
    for ns in range(2):
        k(f"s_lshl_b32 s35, s{30+ns}, 3")
        k(f"s_add_u32 s35, s35, s33")
        for rq in range(4):
            o = OFF + ns * 4 + rq
            k(f"""
            v_add3_u32 v1, v4, s35, {2*rq}     ; g4
            v_mul_u32_u24 v6, 205, v1
            v_lshrrev_b32 v6, 10, v6           ; head
            v_mul_u32_u24 v7, 5, v6
            v_sub_u32 v1, v1, v7               ; p
            v_mul_u32_u24 v6, {HS}, v6
            v_and_b32 v7, 1, v1
            v_lshl_add_u32 v6, v7, 9, v6
            v_bfe_u32 v7, v1, 1, 1
            v_lshl_add_u32 v6, v7, 3, v6
            v_lshrrev_b32 v1, 2, v1            ; p==4
            v_lshl_add_u32 v6, v1, 10, v6
            v_sub_u32 v1, 4, v1
            v_lshlrev_b32 v1, v1, v3
            v_add_u32 v{o}, v6, v1
            """)
    mainloop(False)
    RS = T0 + 8
    k(f"ds_read_b32 v{RS}, v7 offset:512")
    k(f"ds_read_b32 v{RS+2}, v7 offset:640")
    ext_mfma(False, 2)
    k("s_waitcnt lgkmcnt(0)")
    k(f"v_mul_f32 v{RS}, s37, v{RS}")
    k(f"v_mul_f32 v{RS+2}, s37, v{RS+2}")
    for ns in range(2):
        for ts in range(2):
            c = acc(ts, ns)
            for i in range(0, 16, 2):
                k(f"v_pk_mul_f32 v[{c+i}:{c+i+1}], v[{c+i}:{c+i+1}], v[{RS+2*ts}:{RS+2*ts+1}] op_sel_hi:[1,0]")
            for i in range(8):
                k(f"v_cvt_pk_bf16_f32 v{c+i}, v{c+2*i}, v{c+2*i+1}")
            for rq in range(4):
                k(f"buffer_store_dwordx2 v[{c+2*rq}:{c+2*rq+1}], v{OFF+ns*4+rq}, s[{SWS}:{SWS+3}], s32 offen offset:{ts*TS}")
    k.end(SWS, 0)
    k(f"{L_V}:")
    k(f"""
    s_sub_u32 s33, s25, 10
    s_lshl_b32 s33, s33, 7
    s_add_u32 s32, s32, 1280
    """)
    for ns in range(2):
        k(f"""
        s_lshl_b32 s35, s{30+ns}, 5
        s_add_u32 s35, s35, s33
        v_add_u32 v1, s35, v3
        v_mul_u32_u24 v6, 3277, v1
        v_lshrrev_b32 v6, 16, v6           ; head
        v_mul_u32_u24 v7, 20, v6
        v_sub_u32 v1, v1, v7               ; d
        v_mul_u32_u24 v6, {HS}, v6
        v_lshl_add_u32 v6, v1, 4, v6
        v_mul_u32_u24 v1, 320, v4
        v_add_u32 v{OFF+ns}, v6, v1
        """)
    k(f"v_lshlrev_b32 v{OFF+2}, 4, v4   ; hf*16")
    mainloop(True)
    RV = FB[1]
    RV2 = a(16, 4)
    k(f"s_lshl_b32 s35, s27, 8")
    k(f"s_add_u32 s35, s35, {STAT+512}")
    k(f"v_add_u32 v7, s35, v{OFF+2}")
    for ts in range(2):
        for rq in range(4):
            r = (RV, RV2)[ts] + 4 * rq
            k(f"ds_read_b128 v[{r}:{r+3}], v7 offset:{ts*128 + rq*32}")
    ext_mfma(True, 8)
    k("s_waitcnt lgkmcnt(0)")
    k(f"s_add_u32 s33, s32, {TS}")
    for ns in range(2):
        for ts in range(2):
            c = acc(ts, ns); r = (RV, RV2)[ts]
            for i in range(0, 16, 2):
                k(f"v_pk_mul_f32 v[{c+i}:{c+i+1}], v[{c+i}:{c+i+1}], v[{r+i}:{r+i+1}]")
            for i in range(8):
                k(f"v_cvt_pk_bf16_f32 v{c+i}, v{c+2*i}, v{c+2*i+1}")
            for s in range(2):
                k(f"buffer_store_dwordx4 v[{c+4*s}:{c+4*s+3}], v{OFF+ns}, s[{SWS}:{SWS+3}], s{32+ts} offen offset:{s*640}")
    k.end(SWS, 0)
    k(f"{L_help}:")
    a = Alloc(8)
    XA = a(4); GA = a(4); GB = a(4); S = a(4); FR = a(16, 4); TT = a(4)
    k(f"""
    s_sub_u32 s26, s26, 4        ; w
    s_lshl_b32 s29, s26, 12
    v_add_u32 v{XA}, s29, v5
    v_xor_b32 v{XA+1}, 32, v{XA}
    v_xor_b32 v{XA+2}, 64, v{XA}
    v_xor_b32 v{XA+3}, 0x60, v{XA}
    v_lshrrev_b32 v1, 3, v2
    v_mul_u32_u24 v1, 1280, v1
    v_and_b32 v6, 7, v2
    v_lshrrev_b32 v7, 4, v2
    v_xor_b32 v6, v6, v7
    v_lshl_add_u32 v{GA}, v6, 4, v1
    v_xor_b32 v6, 4, v6
    v_lshl_add_u32 v{GA+1}, v6, 4, v1
    v_add_u32 v{GA+1}, {10240-1024}, v{GA+1}
    v_add_u32 v{GA+2}, {2*(10240-1024)}, v{GA}
    v_add_u32 v{GA+3}, {2*(10240-1024)}, v{GA+1}
    s_lshl_b32 s30, s24, 2
    s_add_u32 s30, s30, s26
    s_mul_i32 s30, s30, {32*1280}     ; A soffset
    v_mul_u32_u24 v1, 3840, v7
    v_lshlrev_b32 v7, 2, v7
    v_and_b32 v6, 15, v2
    v_xor_b32 v6, v6, v7
    v_lshl_add_u32 v{GB}, v6, 4, v1
    v_add_u32 v{GB+1}, {15360-1024}, v{GB}
    v_add_u32 v{GB+2}, {2*(15360-1024)}, v{GB}
    v_add_u32 v{GB+3}, {3*(15360-1024)}, v{GB}
    s_mul_i32 s31, s26, {16*3840}
    s_lshl_b32 s27, s25, 8
    s_add_u32 s31, s31, s27           ; B soffset
    s_mov_b32 s32, s29
    """)
    k.stamp(1)
    k("s_waitcnt lgkmcnt(0)")
    k.stamp(2)
    def dma(fill=None):
        fill = fill or (lambda i: None)
        k("s_mov_b32 m0, s32")
        for i in range(4):
            k(f"buffer_load_dwordx4 v{GA+i}, s[{SX}:{SX+3}], s30 offen offset:{i*1024} lds"); fill(i)
        k("s_add_u32 s33, s32, 16384")
        k("s_mov_b32 m0, s33")
        k("s_add_u32 s30, s30, 128")
        for i in range(4):
            k(f"buffer_load_dwordx4 v{GB+i}, s[{SW}:{SW+3}], s31 offen offset:{i*1024} lds"); fill(4 + i)
        k(f"s_add_u32 s31, s31, {64*3840}")
        k("s_add_u32 s32, s32, 32768")
        k("s_and_b32 s32, s32, 0x1ffff")
    Lp = k.lab("pre")
    k("s_mov_b32 s34, 3")
    k(f"{Lp}:")
    dma()
    k(f"""
    s_sub_u32 s34, s34, 1
    s_cmp_lg_u32 s34, 0
    s_cbranch_scc1 {Lp}
    """)
    for i in range(4): k(f"v_mov_b32 v{S+i}, 0")
    k(f"v_mov_b32 v{TT}, 0x3f803f80")
    Lh = k.lab("hloop")
    k.stamp(3)
    k("s_waitcnt vmcnt(16)")
    k.stamp(4)
    k(f"{Lh}:")
    k("s_barrier")
    STM = int(os.environ.get("STM", "0"))
    if STM != 1:
        for s in range(4): k(f"ds_read_b128 v[{FR+4*s}:{FR+4*s+3}], v{XA+s}")
    k(f"s_cmp_ge_u32 s34, {0 if os.environ.get('NODMA') else 7}")
    k(f"s_cmov_b32 s{SX+2}, 0")
    k(f"s_cmov_b32 s{SW+2}, 0")
    for s in range(4):
        k(f"v_add_u32 v{XA+s}, 0x8000, v{XA+s}")
        k(f"v_and_b32 v{XA+s}, 0x1ffff, v{XA+s}")
    def fill(p):
        if STM == 1: return
        if STM == 2:
            if p < 4: return
            k(f"s_waitcnt lgkmcnt({7 - p})")
            for i in range(4 * (p - 4), 4 * (p - 3)):
                k(f"v_dot2_f32_bf16 v{S}, v{FR+i}, v{TT}, v{S}")
                k(f"v_dot2_f32_bf16 v{S+2}, v{FR+i}, v{FR+i}, v{S+2}")
            return
        for i in (2 * p, 2 * p + 1):
            if i % 4 == 0: k(f"s_waitcnt lgkmcnt({3 - i//4})")
            t = TT + 2 * (i & 1)
            k(f"""
            v_lshlrev_b32 v{t}, 16, v{FR+i}
            v_and_b32 v{t+1}, 0xffff0000, v{FR+i}
            v_add_f32 v{S}, v{S}, v{t}
            v_add_f32 v{S+1}, v{S+1}, v{t+1}
            v_fmac_f32 v{S+2}, v{t}, v{t}
            v_fmac_f32 v{S+3}, v{t+1}, v{t+1}
            """)
    dma(fill)
    k(f"""
    s_add_u32 s34, s34, 1
    s_waitcnt vmcnt(16)
    s_cmp_lt_u32 s34, 10
    s_cbranch_scc1 {Lh}
    s_barrier
    v_add_f32 v{S}, v{S}, v{S+1}
    v_add_f32 v{S+2}, v{S+2}, v{S+3}
    v_mov_b32 v{S+1}, v{S}
    v_mov_b32 v{S+3}, v{S+2}
    v_permlane32_swap_b32 v{S}, v{S+1}
    v_permlane32_swap_b32 v{S+2}, v{S+3}
    v_add_f32 v{S}, v{S}, v{S+1}
    v_add_f32 v{S+2}, v{S+2}, v{S+3}
    v_mul_f32 v{S}, {f32(-1.0/640)}, v{S}          ; -mean
    v_mul_f32 v{S+2}, {f32(1.0/640)}, v{S+2}
    v_fma_f32 v{S+2}, -v{S}, v{S}, v{S+2}          ; var
    v_max_f32 v{S+2}, 0, v{S+2}
    v_add_f32 v{S+2}, {f32(1e-5)}, v{S+2}
    v_rsq_f32 v{S+2}, v{S+2}
    v_cvt_pk_bf16_f32 v{S+1}, v{S}, v{S}
    v_and_b32 v{S+3}, 0xffff0000, v{S+1}
    v_sub_f32 v{S+3}, v{S}, v{S+3}
    v_cvt_pk_bf16_f32 v{S}, v{S}, v{S+3}
    s_lshl_b32 s27, s26, 7
    s_add_u32 s27, s27, {STAT}
    v_lshl_add_u32 v1, v3, 2, s27
    ds_write_b32 v1, v{S}
    ds_write_b32 v1, v{S+2} offset:512
    s_waitcnt lgkmcnt(0)
    s_barrier
    s_waitcnt vmcnt(0)
    """)
    k.end(SWS, 0)
    k(f"{L_end}:")
    k("s_endpgm")
    return k
```
